```python
import torch

def _softmax(x, axis=-1):
    return torch.softmax(x, dim=axis)
def _gelu(x):
    return torch.nn.functional.gelu(x, approximate="tanh")
def _silu(x):
    return torch.nn.functional.silu(x)
def _sigmoid(x):
    return torch.sigmoid(x)
def _layernorm(x, axis=-1, eps=1e-5):
    m = x.mean(dim=axis, keepdim=True)
    v = x.var(dim=axis, keepdim=True, unbiased=False)
    return (x - m) / torch.sqrt(v + eps)
def _scatter_add(tgt, idx, src, axis=0):
    return tgt.clone().index_add_(axis, idx, src)
def _segment_sum(src, seg, n):
    out = torch.zeros((n,) + src.shape[1:], dtype=src.dtype)
    return out.index_add_(0, seg, src)
def _pad(x, pw):
    flat = tuple(v for pair in reversed(pw) for v in pair)
    return torch.nn.functional.pad(x, flat)

kernel_name = 'concat_heads__gqa_block_cached__mha_block_cached__near_ridge'

def setup_inputs():

    _w = (lambda a: (lambda t: t.to(torch.bfloat16) if t.is_floating_point() else t)(torch.as_tensor(a)))
    def _A_setup():
        B, Sq, D = 16, 32, 640
        Hq, Hkv, Sk, Dh = 32, 32, 32, 192
        assert Hq % Hkv == 0, (Hq, Hkv)
        return {
            "x": _w((lambda *s: torch.randn(*s, dtype=torch.bfloat16) * 0.8)(B, Sq, D)),
            "k_cache": _w((lambda *s: torch.randn(*s, dtype=torch.bfloat16) * 0.8)(B, Hkv, Sk, Dh)),
            "v_cache": _w((lambda *s: torch.randn(*s, dtype=torch.bfloat16) * 0.05)(B, Hkv, Sk, Dh)),
            "wq": _w((lambda *s: torch.randn(*s, dtype=torch.bfloat16) * 0.8)(D, Hq * Dh) * (D ** -0.5)),
            "wo": _w((lambda *s: torch.randn(*s, dtype=torch.bfloat16) * 0.05)(Hq * Dh, D) * ((Hq * Dh) ** -0.5)),
        }
    _A_in = _A_setup()

    def _B_setup():
        B, Sq, D = 16, 32, 640
        H, Sk, Dh = 32, 32, 192
        return {
            "x": _w((lambda *s: torch.randn(*s, dtype=torch.bfloat16) * 0.8)(B, Sq, D)),
            "k_cache": _w((lambda *s: torch.randn(*s, dtype=torch.bfloat16) * 0.8)(B, H, Sk, Dh)),
            "v_cache": _w((lambda *s: torch.randn(*s, dtype=torch.bfloat16) * 0.05)(B, H, Sk, Dh)),
            "wq": _w((lambda *s: torch.randn(*s, dtype=torch.bfloat16) * 0.8)(D, H * Dh) * (D ** -0.5)),
            "wo": _w((lambda *s: torch.randn(*s, dtype=torch.bfloat16) * 0.05)(H * Dh, D) * ((H * Dh) ** -0.5)),
        }
    _B_in = _B_setup()

    return {
        "A_x": _A_in["x"],
        "A_k_cache": _A_in["k_cache"],
        "A_v_cache": _A_in["v_cache"],
        "A_wq": _A_in["wq"],
        "A_wo": _A_in["wo"],
        "B_x": _B_in["x"],
        "B_k_cache": _B_in["k_cache"],
        "B_v_cache": _B_in["v_cache"],
        "B_wq": _B_in["wq"],
        "B_wo": _B_in["wo"],
    }

def reference(A_x, A_k_cache, A_v_cache, A_wq, A_wo, B_x, B_k_cache, B_v_cache, B_wq, B_wo):
    def _A_ref(x, k_cache, v_cache, wq, wo):
        B, Sq, D = x.shape
        Hq, Dh = 32, 192
        Hkv = k_cache.shape[1]
        rep = Hq // Hkv
        q = (lambda x, *d: x.permute(*d))((x @ wq).reshape(B, Sq, Hq, Dh), 0, 2, 1, 3)
        k = (lambda x, n, axis: torch.repeat_interleave(x, n, dim=axis))(k_cache, rep, axis=1)
        v = (lambda x, n, axis: torch.repeat_interleave(x, n, dim=axis))(v_cache, rep, axis=1)
        scores = torch.einsum("bhqd,bhkd->bhqk", q, k) * (Dh ** -0.5)
        p = _softmax(scores, axis=-1)
        o = torch.einsum("bhqk,bhkd->bhqd", p, v)
        return (lambda x, *d: x.permute(*d))(o, 0, 2, 1, 3).reshape(B, Sq, Hq * Dh) @ wo

    def _B_ref(x, k_cache, v_cache, wq, wo):
        B, Sq, D = x.shape
        H, Dh = 32, 192
        q = (lambda x, *d: x.permute(*d))((x @ wq).reshape(B, Sq, H, Dh), 0, 2, 1, 3)
        scores = torch.einsum("bhqd,bhkd->bhqk", q, k_cache) * (Dh ** -0.5)
        p = _softmax(scores, axis=-1)
        o = torch.einsum("bhqk,bhkd->bhqd", p, v_cache)
        return (lambda x, *d: x.permute(*d))(o, 0, 2, 1, 3).reshape(B, Sq, H * Dh) @ wo

    a = _A_ref(A_x, A_k_cache, A_v_cache, A_wq, A_wo)
    b = _B_ref(B_x, B_k_cache, B_v_cache, B_wq, B_wo)
    return torch.concatenate([a, b], axis=-1)
```

```python
class Asm:
    def __init__(self):
        self.lines = []
        self.nlabel = 0
    def e(self, s, *a):
        self.lines.append('    ' + (s % a if a else s))
    def c(self, s):
        self.lines.append('    ; ' + s)
    def label(self, name):
        self.lines.append(name + ':')
    def newlabel(self, base='L'):
        self.nlabel += 1
        return '%s_%d' % (base, self.nlabel)
    def raw(self, s):
        self.lines.append(s)
    def text(self):
        return '\n'.join(self.lines) + '\n'

def vr(base, n=1):
    return 'v%d' % base if n == 1 else 'v[%d:%d]' % (base, base + n - 1)
def sr(base, n=1):
    return 's%d' % base if n == 1 else 's[%d:%d]' % (base, base + n - 1)

HEADER = '''; Kernarg layout for this problem (104 bytes, ptrs only, base s[0:1]):
'''

def kernel_begin(a, name):
    a.raw('.globl %s' % name)
    a.raw('.p2align 8')
    a.raw('.type %s,@function' % name)
    a.label(name)

def kernel_desc(name, vgpr, sgpr=102, accum=None):
    if accum is None:
        accum = (vgpr + 3) // 4 * 4
    return '''.amdhsa_kernel %s
  .amdhsa_next_free_vgpr %d
  .amdhsa_next_free_sgpr %d
  .amdhsa_accum_offset %d
  .amdhsa_group_segment_fixed_size 0
  .amdhsa_kernarg_size 104
  .amdhsa_user_sgpr_count 2
  .amdhsa_user_sgpr_kernarg_segment_ptr 1
  .amdhsa_system_sgpr_workgroup_id_x 1
.end_amdhsa_kernel
''' % (name, vgpr, sgpr, accum)
```

```python
import sys
from asmlib import *

NAME = 'concat_heads__gqa_block_cached__mha_block_cached__near_ridge'
WS_P = 0
WS_PART = 4 << 20
WS_SIZE = 32 << 20

S_BETA, S_HG, S_MB, S_HL = 4, 5, 6, 7
SRD_X, SRD_WQ, SRD_K, SRD_V, SRD_WO, SRD_WS, SRD_OUT, SRD_DBG = 8, 12, 16, 20, 24, 28, 32, 36
S_WAVE = 3

def prologue(a, nwg, endlabel):
    a.e('s_cmp_ge_u32 s2, %d', nwg)
    a.e('s_cbranch_scc1 %s', endlabel)
    a.e('s_and_b32 s40, s2, 7')
    a.e('s_lshr_b32 s41, s2, 3')
    a.e('s_lshr_b32 s%d, s40, 2', S_BETA)
    a.e('s_and_b32 s%d, s40, 3', S_HG)
    a.e('s_and_b32 s%d, s41, 3', S_MB)
    a.e('s_lshr_b32 s%d, s41, 2', S_HL)
    a.e('s_mul_i32 s42, s%d, 40', S_BETA)
    a.e('s_add_u32 s44, s0, s42')
    a.e('s_addc_u32 s45, s1, 0')
    a.e('s_load_dwordx2 s[%d:%d], s[44:45], 0', SRD_X, SRD_X+1)
    a.e('s_load_dwordx2 s[%d:%d], s[44:45], 8', SRD_K, SRD_K+1)
    a.e('s_load_dwordx2 s[%d:%d], s[44:45], 16', SRD_V, SRD_V+1)
    a.e('s_load_dwordx2 s[%d:%d], s[44:45], 24', SRD_WQ, SRD_WQ+1)
    a.e('s_load_dwordx2 s[%d:%d], s[44:45], 32', SRD_WO, SRD_WO+1)
    a.e('s_load_dwordx2 s[%d:%d], s[0:1], 80', SRD_OUT, SRD_OUT+1)
    a.e('s_load_dwordx2 s[%d:%d], s[0:1], 88', SRD_DBG, SRD_DBG+1)
    a.e('s_load_dwordx2 s[%d:%d], s[0:1], 96', SRD_WS, SRD_WS+1)
    a.e('v_lshrrev_b32 v1, 6, v0')
    a.e('v_and_b32 v0, 63, v0')
    for srd, sz in ((SRD_X, 655360), (SRD_WQ, 7864320), (SRD_K, 6291456), (SRD_V, 6291456), (SRD_WO, 7864320),
                    (SRD_WS, WS_SIZE), (SRD_OUT, 1310720), (SRD_DBG, 256)):
        a.e('s_mov_b32 s%d, 0x%x', srd+2, sz)
        a.e('s_mov_b32 s%d, 0x20000', srd+3)
    a.e('v_readfirstlane_b32 s%d, v1', S_WAVE)
    a.e('s_waitcnt lgkmcnt(0)')

def div_const(a, vd, vs, d, maxv, tmp_s):
    M = -(-65536 // d)
    for x in range(maxv+1):
        assert (x*M) >> 16 == x // d, (x, d)
    assert maxv * M < (1 << 24) * 256
    a.e('v_mul_u32_u24 v%d, 0x%x, v%d', vd, M, vs)
    a.e('v_lshrrev_b32 v%d, 16, v%d', vd, vd)

class Dma:
    def __init__(self, voff, srd, gbase_s, gconst, lconst, half=False):
        self.voff, self.srd, self.gbase_s, self.gconst, self.lconst, self.half = voff, srd, gbase_s, gconst, lconst, half

def emit_dma(a, d, s_lds, s_tmp, nt):
    a.e('s_add_u32 m0, s%d, 0x%x', s_lds, d.lconst)
    a.e('s_add_u32 s%d, s%d, 0x%x', s_tmp, d.gbase_s, d.gconst)
    a.e('buffer_load_dwordx4 v%d, s[%d:%d], s%d offen%s lds', d.voff, d.srd, d.srd+3, s_tmp, ' nt' if nt else '')

A_SLOT = 49152
def gen_A(a, name, NT=True):
    END = name + '_end'
    kernel_begin(a, name)
    prologue(a, 256, END)
    a.e('s_lshl_b32 s46, s%d, 3', S_HG)
    a.e('s_add_u32 s46, s46, s%d', S_HL)
    S_H = 46
    a.e('s_cmp_ge_u32 s%d, 4', S_WAVE)
    a.e('s_cbranch_scc1 %s_loader', name)
    XREL, XCUR, WRE, WRO, WCE, WCO = 2, 6, 10, 11, 12, 13
    KAD = 6
    ACC, AF0, AF1, BF0, BF1, QB, SACC, TMP = 16, 112, 136, 160, 164, 168, 216, 232
    t0, t1, t2, t3 = TMP, TMP+1, TMP+2, TMP+3
    a.e('v_and_b32 v%d, 31, v0', t0)
    a.e('v_lshrrev_b32 v%d, 5, v0', t1)
    a.e('v_bfe_u32 v%d, v0, 1, 3', t2)
    a.e('v_xor_b32 v%d, v%d, v%d', t2, t2, t1)
    a.e('s_lshl_b32 s47, s%d, 12', S_WAVE)
    a.e('v_lshlrev_b32 v%d, 7, v%d', t3, t0)
    a.e('v_add_u32 v%d, s47, v%d', t3, t3)
    for s in range(4):
        a.e('v_xor_b32 v%d, %d, v%d', XREL+s, 2*s, t2)
        a.e('v_lshl_add_u32 v%d, v%d, 4, v%d', XREL+s, XREL+s, t3)
    a.e('v_bfe_u32 v%d, v0, 2, 2', t0)
    a.e('v_lshrrev_b32 v%d, 5, v0', t1)
    a.e('v_lshl_add_u32 v%d, v%d, 3, v%d', t0, t1, t0)
    a.e('v_mul_u32_u24 v%d, 384, v%d', t0, t0)
    a.e('v_bfe_u32 v%d, v0, 4, 1', t1)
    a.e('v_lshl_add_u32 v%d, v%d, 5, v%d', t0, t1, t0)
    a.e('v_and_b32 v%d, 1, v0', t1)
    a.e('v_lshl_add_u32 v%d, v%d, 4, v%d', t0, t1, t0)
    a.e('v_bfe_u32 v%d, v0, 1, 1', t1)
    a.e('v_lshl_add_u32 v%d, v%d, 3, v%d', t0, t1, t0)
    a.e('v_add_u32 v%d, 16384, v%d', t0, t0)
    a.e('v_bfe_u32 v%d, v0, 3, 1', t1)
    a.e('v_lshlrev_b32 v%d, 6, v%d', t1, t1)
    a.e('v_add_u32 v%d, v%d, v%d', WRE, t0, t1)
    a.e('v_sub_u32 v%d, v%d, v%d', WRO, t0, t1)
    a.e('s_mov_b32 s48, 0')
    a.e('s_mov_b32 s49, 0')

    def addr_update():
        for s in range(4):
            a.e('v_add_u32 v%d, s48, v%d', XCUR+s, XREL+s)
        a.e('v_add_u32 v%d, s48, v%d', WCE, WRE)
        a.e('v_add_u32 v%d, s48, v%d', WCO, WRO)
    def reads_list(s, af, bf):
        r = ['ds_read_b128 v[%d:%d], v%d' % (bf, bf+3, XCUR+s)]
        for t in range(6):
            for u in range(2):
                off = (16*s + 4*u)*384 + 64*t
                r.append('ds_read_b64_tr_b16 v[%d:%d], v%d offset:%d' % (af+4*t+2*u, af+4*t+2*u+1, WCE if t % 2 == 0 else WCO, off))
        return r
    def step(af, bf, nreads, first=False):
        idx = 0
        for t in range(6):
            a.e('s_waitcnt lgkmcnt(%d)', 10 if t == 0 else 11)
            c = '0' if first else 'v[%d:%d]' % (ACC+16*t, ACC+16*t+15)
            a.e('v_mfma_f32_32x32x16_bf16 v[%d:%d], v[%d:%d], v[%d:%d], %s', ACC+16*t, ACC+16*t+15, af+4*t, af+4*t+3, bf, bf+3, c)
            n = 3 if t == 0 else 2
            for _ in range(n):
                a.e(nreads[idx]); idx += 1
    a.e('s_barrier')
    addr_update()
    for r in reads_list(0, AF0, BF0):
        a.e(r)
    for r in range(96):
        a.e('v_mov_b32 v%d, 0', ACC+r)
    a.label(name + '_cloop')
    step(AF0, BF0, reads_list(1, AF1, BF1))
    step(AF1, BF1, reads_list(2, AF0, BF0))
    step(AF0, BF0, reads_list(3, AF1, BF1))
    a.e('s_waitcnt lgkmcnt(0)')
    a.e('s_barrier')
    a.e('s_add_u32 s48, s48, %d', A_SLOT)
    a.e('s_cmp_eq_u32 s48, %d', 3*A_SLOT)
    a.e('s_cselect_b32 s48, 0, s48')
    addr_update()
    step(AF1, BF1, reads_list(0, AF0, BF0))
    a.e('s_add_u32 s49, s49, 1')
    a.e('s_cmp_lt_u32 s49, 10')
    a.e('s_cbranch_scc1 %s_cloop', name)
    a.e('v_and_b32 v%d, 31, v0', t0)
    a.e('v_lshrrev_b32 v%d, 5, v0', t1)
    a.e('v_bfe_u32 v%d, v0, 1, 3', t2)
    a.e('v_xor_b32 v%d, v%d, v%d', t2, t2, t1)
    a.e('s_mul_i32 s47, s%d, 12288', S_WAVE)
    a.e('s_add_u32 s47, s47, s48')
    a.e('v_mul_u32_u24 v%d, 384, v%d', t3, t0)
    a.e('v_add_u32 v%d, s47, v%d', t3, t3)
    for s in range(4):
        a.e('v_xor_b32 v%d, %d, v%d', KAD+s, 2*s, t2)
        a.e('v_lshl_add_u32 v%d, v%d, 4, v%d', KAD+s, KAD+s, t3)
    a.e('s_waitcnt lgkmcnt(0)')
    for sp in range(12):
        a.e('ds_read_b128 v[%d:%d], v%d offset:%d', AF0+4*sp, AF0+4*sp+3, KAD + sp % 4, 128*(sp//4))
    for t in range(6):
        for j in range(8):
            a.e('v_cvt_pk_bf16_f32 v%d, v%d, v%d', QB+8*t+j, ACC+16*t+2*j, ACC+16*t+2*j+1)
    for sp in range(12):
        a.e('s_waitcnt lgkmcnt(%d)', 11-sp)
        c = '0' if sp == 0 else 'v[%d:%d]' % (SACC, SACC+15)
        a.e('v_mfma_f32_32x32x16_bf16 v[%d:%d], v[%d:%d], v[%d:%d], %s', SACC, SACC+15, AF0+4*sp, AF0+4*sp+3, QB+4*sp, QB+4*sp+3, c)
    a.e('s_nop 15')
    a.e('v_max3_f32 v%d, v%d, v%d, v%d', t0, SACC, SACC+1, SACC+2)
    for r in range(3, 15, 2):
        a.e('v_max3_f32 v%d, v%d, v%d, v%d', t0, t0, SACC+r, SACC+r+1)
    a.e('v_max_f32 v%d, v%d, v%d', t0, t0, SACC+15)
    a.e('v_mov_b32 v%d, v%d', t1, t0)
    a.e('s_nop 1')
    a.e('v_permlane32_swap_b32 v%d, v%d', t0, t1)
    a.e('v_max_f32 v%d, v%d, v%d', t0, t0, t1)
    import math, struct
    cval = (192 ** -0.5) * math.log2(math.e)
    cb = struct.unpack('<I', struct.pack('<f', cval))[0]
    a.e('s_mov_b32 s50, 0x%x', cb)
    a.e('v_mul_f32 v%d, s50, v%d', t2, t0)
    for r in range(16):
        a.e('v_fma_f32 v%d, v%d, s50, -v%d', SACC+r, SACC+r, t2)
    for r in range(16):
        a.e('v_exp_f32 v%d, v%d', SACC+r, SACC+r)
    a.e('s_nop 0')
    a.e('v_add_f32 v%d, v%d, v%d', t0, SACC, SACC+1)
    for r in range(2, 16):
        a.e('v_add_f32 v%d, v%d, v%d', t0, t0, SACC+r)
    a.e('v_mov_b32 v%d, v%d', t1, t0)
    a.e('s_nop 1')
    a.e('v_permlane32_swap_b32 v%d, v%d', t0, t1)
    a.e('v_add_f32 v%d, v%d, v%d', t0, t0, t1)
    a.e('v_rcp_f32 v%d, v%d', t0, t0)
    a.e('s_nop 0')
    for r in range(16):
        a.e('v_mul_f32 v%d, v%d, v%d', SACC+r, SACC+r, t0)
    PB = QB
    for j in range(8):
        a.e('v_cvt_pk_bf16_f32 v%d, v%d, v%d', PB+j, SACC+2*j, SACC+2*j+1)
    a.e('v_bfe_u32 v%d, v0, 4, 1', t0)
    a.e('v_lshlrev_b32 v%d, 10, v%d', t0, t0)
    a.e('v_and_b32 v%d, 15, v0', t1)
    a.e('v_lshl_add_u32 v%d, v%d, 4, v%d', t0, t1, t0)
    a.e('v_lshrrev_b32 v%d, 5, v0', t1)
    a.e('v_lshl_add_u32 v%d, v%d, 9, v%d', t0, t1, t0)
    a.e('s_lshl_b32 s47, s%d, 4', S_BETA)
    a.e('s_lshl_b32 s51, s%d, 2', S_MB)
    a.e('s_add_u32 s47, s47, s51')
    a.e('s_add_u32 s47, s47, s%d', S_WAVE)
    a.e('s_lshl_b32 s47, s47, 5')
    a.e('s_add_u32 s47, s47, s%d', S_H)
    a.e('s_lshl_b32 s47, s47, 11')
    a.e('s_add_u32 s47, s47, 0x%x', WS_P)
    a.e('buffer_store_dwordx4 v[%d:%d], v%d, s[%d:%d], s47 offen', PB, PB+3, t0, SRD_WS, SRD_WS+3)
    a.e('buffer_store_dwordx4 v[%d:%d], v%d, s[%d:%d], s47 offen offset:256', PB+4, PB+7, t0, SRD_WS, SRD_WS+3)
    a.e('s_endpgm')
    a.label(name + '_loader')
    a.e('s_cmp_eq_u32 s%d, 7', S_WAVE)
    a.e('s_cbranch_scc1 %s', END)
    XE, XO, W0, K0 = 2, 3, 4, 8
    t0, t1, t2, t3 = 16, 17, 18, 19
    a.e('v_lshrrev_b32 v%d, 3, v0', t0)
    a.e('v_mul_u32_u24 v%d, 1280, v%d', t0, t0)
    a.e('v_and_b32 v%d, 7, v0', t1)
    a.e('v_lshrrev_b32 v%d, 4, v0', t2)
    a.e('v_xor_b32 v%d, v%d, v%d', t1, t1, t2)
    a.e('v_lshl_add_u32 v%d, v%d, 4, v%d', XE, t1, t0)
    a.e('v_xor_b32 v%d, 64, v%d', XO, XE)
    for b in range(3):
        a.e('v_add_u32 v%d, %d, v0', t0, 64*b)
        div_const(a, t1, t0, 24, 191, None)
        a.e('v_mul_u32_u24 v%d, 24, v%d', t2, t1)
        a.e('v_sub_u32 v%d, v%d, v%d', t2, t0, t2)
        a.e('v_bfe_u32 v%d, v%d, 1, 1', t3, t1)
        a.e('v_lshlrev_b32 v%d, 2, v%d', t3, t3)
        a.e('v_xor_b32 v%d, v%d, v%d', t3, t3, t2)
        a.e('v_lshlrev_b32 v%d, 4, v%d', t3, t3)
        a.e('v_mul_u32_u24 v%d, 0x3000, v%d', W0+b, t1)
        a.e('v_add_u32 v%d, v%d, v%d', W0+b, W0+b, t3)
        a.e('v_lshrrev_b32 v%d, 1, v%d', t3, t1)
        a.e('v_xor_b32 v%d, v%d, v%d', t3, t3, t2)
        a.e('v_lshrrev_b32 v%d, 2, v%d', t0, t1)
        a.e('v_lshlrev_b32 v%d, 3, v%d', t0, t0)
        a.e('v_and_b32 v%d, 3, v%d', t1, t1)
        a.e('v_add_u32 v%d, v%d, v%d', t0, t0, t1)
        a.e('v_mul_u32_u24 v%d, 384, v%d', t0, t0)
        a.e('v_lshl_add_u32 v%d, v%d, 4, v%d', K0+2*b, t3, t0)
        a.e('v_xor_b32 v%d, 4, v%d', t3, t3)
        a.e('v_lshl_add_u32 v%d, v%d, 4, v%d', K0+2*b+1, t3, t0)
    S_GX, S_GW, S_GK, S_LDS, S_TMP, S_CNT = 52, 53, 54, 55, 56, 57
    a.e('s_mul_i32 s%d, s%d, %d', S_GX, S_MB, 128*1280)
    a.e('s_mul_i32 s%d, s%d, 384', S_GW, S_H)
    a.e('s_lshl_b32 s%d, s%d, 7', S_GK, S_MB)
    a.e('s_add_u32 s%d, s%d, s%d', S_GK, S_GK, S_H)
    a.e('s_mul_i32 s%d, s%d, 12288', S_GK, S_GK)
    xd = [Dma(XE if q % 2 == 0 else XO, SRD_X, S_GX, 8*q*1280, q*1024) for q in range(16)]
    wd = [Dma(W0 + q % 3, SRD_WQ, S_GW, (q//3)*8*12288, 16384 + q*1024) for q in range(24)]
    kd = []
    for bb in range(4):
        for aa in range(4):
            for b in range(3):
                kd.append(Dma(K0 + 2*b + (aa & 1), SRD_K, S_GK, bb*32*12288 + (16*(aa & 1) + 4*(aa >> 1))*384, bb*12288 + (3*aa+b)*1024))
    parts = [wd[0:9] + xd[0:4], wd[9:18] + xd[4:8], wd[18:24] + xd[8:16]]
    kparts = [kd[0:16], kd[16:32], kd[32:48]]
    for li in range(3):
        lab = '%s_ld%d' % (name, li)
        if li < 2:
            a.e('s_cmp_eq_u32 s%d, %d', S_WAVE, 4+li)
            a.e('s_cbranch_scc0 %s_ld%d' % (name, li+1))
        P = parts[li]; KP = kparts[li]; n = len(P)
        a.e('s_mov_b32 s%d, 0', S_LDS)
        def issue():
            for d in P:
                emit_dma(a, d, S_LDS, S_TMP, NT)
            a.e('s_add_u32 s%d, s%d, 128', S_GX, S_GX)
            a.e('s_add_u32 s%d, s%d, %d', S_GW, S_GW, 64*12288)
            a.e('s_add_u32 s%d, s%d, %d', S_LDS, S_LDS, A_SLOT)
            a.e('s_cmp_eq_u32 s%d, %d', S_LDS, 3*A_SLOT)
            a.e('s_cselect_b32 s%d, 0, s%d', S_LDS, S_LDS)
        issue(); issue()
        a.e('s_mov_b32 s%d, 0', S_CNT)
        a.label(lab + '_loop')
        a.e('s_waitcnt vmcnt(%d)', n)
        a.e('s_barrier')
        issue()
        a.e('s_add_u32 s%d, s%d, 1', S_CNT, S_CNT)
        a.e('s_cmp_lt_u32 s%d, 8', S_CNT)
        a.e('s_cbranch_scc1 %s_loop', lab)
        a.e('s_waitcnt vmcnt(%d)', n)
        a.e('s_barrier')
        for d in KP:
            emit_dma(a, d, S_LDS, S_TMP, NT)
        a.e('s_waitcnt vmcnt(%d)', len(KP))
        a.e('s_barrier')
        a.e('s_waitcnt vmcnt(0)')
        a.e('s_barrier')
        a.e('s_endpgm')
        if li < 2:
            a.label('%s_ld%d' % (name, li+1))
    a.label(END)
    a.e('s_endpgm')

B_SLOT = 26624
B_NS = 5
def gen_B(a, name, NT=True):
    END = name + '_end'
    kernel_begin(a, name)
    prologue(a, 256, END)
    S_NS, S_H0 = 46, 47
    a.e('s_mov_b32 s%d, s%d', S_NS, S_HL)
    a.e('s_lshl_b32 s%d, s%d, 3', S_H0, S_HG)
    a.e('s_cmp_ge_u32 s%d, 4', S_WAVE)
    a.e('s_cbranch_scc1 %s_loader', name)
    VREL, VCUR, WREL, WCUR, PV = 2, 4, 6, 7, 8
    VW, OA, VF0, VF1, WF0, WF1, VWB, PF, TMP = 16, 56, 96, 104, 112, 132, 152, 172, 236
    t0, t1, t2, t3 = TMP, TMP+1, TMP+2, TMP+3
    a.e('v_lshlrev_b32 v%d, 4, v0', PV)
    a.e('s_lshl_b32 s48, s%d, 4', S_BETA)
    a.e('s_lshl_b32 s49, s%d, 2', S_MB)
    a.e('s_add_u32 s48, s48, s49')
    a.e('s_add_u32 s48, s48, s%d', S_WAVE)
    a.e('s_lshl_b32 s48, s48, 5')
    a.e('s_add_u32 s48, s48, s%d', S_H0)
    a.e('s_lshl_b32 s48, s48, 11')
    a.e('s_add_u32 s48, s48, 0x%x', WS_P)
    for hq in range(8):
        for qt in range(2):
            a.e('buffer_load_dwordx4 v[%d:%d], v%d, s[%d:%d], s48 offen offset:%d', PF+8*hq+4*qt, PF+8*hq+4*qt+3, PV, SRD_WS, SRD_WS+3, qt*1024)
        a.e('s_add_u32 s48, s48, 2048')
    a.e('v_and_b32 v%d, 15, v0', t0)
    a.e('v_lshrrev_b32 v%d, 4, v0', t1)
    a.e('v_bfe_u32 v%d, v0, 1, 3', t2)
    a.e('v_xor_b32 v%d, v%d, v%d', t2, t2, t1)
    a.e('s_lshl_b32 s49, s%d, 12', S_WAVE)
    a.e('v_lshlrev_b32 v%d, 7, v%d', t3, t0)
    a.e('v_add_u32 v%d, s49, v%d', t3, t3)
    a.e('v_lshl_add_u32 v%d, v%d, 4, v%d', VREL, t2, t3)
    a.e('v_xor_b32 v%d, 64, v%d', VREL+1, VREL)
    a.e('v_lshrrev_b32 v%d, 5, v0', t0)
    a.e('v_lshlrev_b32 v%d, 4, v%d', t0, t0)
    a.e('v_bfe_u32 v%d, v0, 4, 1', t1)
    a.e('v_lshl_add_u32 v%d, v%d, 2, v%d', t0, t1, t0)
    a.e('v_bfe_u32 v%d, v0, 2, 2', t1)
    a.e('v_add_u32 v%d, v%d, v%d', t0, t0, t1)
    a.e('v_mul_u32_u24 v%d, 160, v%d', t0, t0)
    a.e('v_and_b32 v%d, 3, v0', t1)
    a.e('v_lshl_add_u32 v%d, v%d, 3, v%d', t0, t1, t0)
    a.e('v_add_u32 v%d, 16384, v%d', WREL, t0)
    for r in range(40):
        a.e('v_mov_b32 v%d, 0', OA+r)
    a.e('s_mov_b32 s48, 0')
    a.e('s_mov_b32 s49, 0')
    def addr_update():
        a.e('v_add_u32 v%d, s48, v%d', VCUR, VREL)
        a.e('v_add_u32 v%d, s48, v%d', VCUR+1, VREL+1)
        a.e('v_add_u32 v%d, s48, v%d', WCUR, WREL)
    def next_slot():
        a.e('s_add_u32 s48, s48, %d', B_SLOT)
        a.e('s_cmp_eq_u32 s48, %d', B_NS*B_SLOT)
        a.e('s_cselect_b32 s48, 0, s48')
    def reads_list(s, vf, wf):
        r = []
        for rt in range(2):
            r.append('ds_read_b128 v[%d:%d], v%d offset:%d' % (vf+4*rt, vf+4*rt+3, VCUR+s, rt*2048))
        for nt in range(5):
            for u in range(2):
                r.append('ds_read_b64_tr_b16 v[%d:%d], v%d offset:%d' % (wf+4*nt+2*u, wf+4*nt+2*u+1, WCUR, (32*s+8*u)*160 + 32*nt))
        return r
    def step(vf, wf, nreads, first=False):
        idx = 0
        per = [2, 2, 1, 1, 1, 1, 1, 1, 1, 1]
        issued = 0
        for j in range(10):
            nt, rt = j // 2, j % 2
            if rt == 0:
                a.e('s_waitcnt lgkmcnt(%d)', (12 - (4 + 2*nt)) + issued)
            d = VW + 4*(rt*5 + nt)
            c = '0' if first else 'v[%d:%d]' % (d, d+3)
            a.e('v_mfma_f32_16x16x32_bf16 v[%d:%d], v[%d:%d], v[%d:%d], %s', d, d+3, vf+4*rt, vf+4*rt+3, wf+4*nt, wf+4*nt+3, c)
            for _ in range(per[j]):
                a.e(nreads[idx]); idx += 1; issued += 1
    a.e('s_barrier')
    addr_update()
    for r in reads_list(0, VF0, WF0):
        a.e(r)
    a.e('s_waitcnt vmcnt(0)')
    for hq in range(8):
        for third in range(3):
            step(VF0, WF0, reads_list(1, VF1, WF1), first=(third == 0))
            a.e('s_waitcnt lgkmcnt(0)')
            a.e('s_barrier')
            next_slot()
            addr_update()
            step(VF1, WF1, reads_list(0, VF0, WF0))
        a.e('s_nop 7')
        for nt in range(5):
            d0 = VW + 4*nt; d1 = VW + 4*(5+nt)
            a.e('v_cvt_pk_bf16_f32 v%d, v%d, v%d', VWB+4*nt+0, d0, d0+1)
            a.e('v_cvt_pk_bf16_f32 v%d, v%d, v%d', VWB+4*nt+1, d0+2, d0+3)
            a.e('v_cvt_pk_bf16_f32 v%d, v%d, v%d', VWB+4*nt+2, d1, d1+1)
            a.e('v_cvt_pk_bf16_f32 v%d, v%d, v%d', VWB+4*nt+3, d1+2, d1+3)
        a.e('s_nop 1')
        for nt in range(5):
            for qt in range(2):
                d = OA + 4*(2*nt+qt)
                a.e('v_mfma_f32_16x16x32_bf16 v[%d:%d], v[%d:%d], v[%d:%d], v[%d:%d]', d, d+3, VWB+4*nt, VWB+4*nt+3, PF+8*hq+4*qt, PF+8*hq+4*qt+3, d, d+3)
    a.e('s_nop 7')
    a.e('s_lshl_b32 s48, s%d, 2', S_BETA)
    a.e('s_add_u32 s48, s48, s%d', S_MB)
    a.e('s_lshl_b32 s48, s48, 3')
    a.e('s_add_u32 s48, s48, s%d', S_NS)
    a.e('s_lshl_b32 s48, s48, 2')
    a.e('s_add_u32 s48, s48, s%d', S_HG)
    a.e('s_lshl_b32 s48, s48, 2')
    a.e('s_add_u32 s48, s48, s%d', S_WAVE)
    a.e('s_mul_i32 s48, s48, 10240')
    a.e('s_add_u32 s48, s48, 0x%x', WS_PART)
    for j in range(10):
        a.e('buffer_store_dwordx4 v[%d:%d], v%d, s[%d:%d], s48 offen', OA+4*j, OA+4*j+3, PV, SRD_WS, SRD_WS+3)
        a.e('s_add_u32 s48, s48, 1024')
    a.e('s_endpgm')
    a.label(name + '_loader')
    a.e('s_cmp_eq_u32 s%d, 7', S_WAVE)
    a.e('s_cbranch_scc1 %s', END)
    VE, VO, WO0 = 2, 3, 4
    t0, t1, t2, t3 = 16, 17, 18, 19
    a.e('v_lshrrev_b32 v%d, 3, v0', t0)
    a.e('v_mul_u32_u24 v%d, 384, v%d', t0, t0)
    a.e('v_and_b32 v%d, 7, v0', t1)
    a.e('v_lshrrev_b32 v%d, 4, v0', t2)
    a.e('v_xor_b32 v%d, v%d, v%d', t1, t1, t2)
    a.e('v_lshl_add_u32 v%d, v%d, 4, v%d', VE, t1, t0)
    a.e('v_xor_b32 v%d, 64, v%d', VO, VE)
    for q in range(5):
        a.e('v_add_u32 v%d, %d, v0', t0, 64*q)
        div_const(a, t1, t0, 10, 319, None)
        a.e('v_mul_u32_u24 v%d, 10, v%d', t2, t1)
        a.e('v_sub_u32 v%d, v%d, v%d', t2, t0, t2)
        a.e('v_and_b32 v%d, 0x13, v%d', t3, t1)
        a.e('v_and_b32 v%d, 4, v%d', t0, t1)
        a.e('v_lshl_or_b32 v%d, v%d, 1, v%d', t3, t0, t3)
        a.e('v_and_b32 v%d, 8, v%d', t0, t1)
        a.e('v_lshrrev_b32 v%d, 1, v%d', t0, t0)
        a.e('v_or_b32 v%d, v%d, v%d', t3, t3, t0)
        a.e('v_mul_u32_u24 v%d, 1280, v%d', t3, t3)
        a.e('v_lshl_add_u32 v%d, v%d, 4, v%d', WO0+q, t2, t3)
    S_GV, S_GW, S_LDS, S_TMP, S_CNT, S_TH = 52, 53, 55, 56, 57, 58
    a.e('s_lshl_b32 s%d, s%d, 7', S_GV, S_MB)
    a.e('s_add_u32 s%d, s%d, s%d', S_GV, S_GV, S_H0)
    a.e('s_mul_i32 s%d, s%d, 12288', S_GV, S_GV)
    a.e('s_mul_i32 s%d, s%d, %d', S_GW, S_H0, 192*1280)
    a.e('s_mul_i32 s%d, s%d, 160', S_TMP, S_NS)
    a.e('s_add_u32 s%d, s%d, s%d', S_GW, S_GW, S_TMP)
    vd = [Dma(VE if q % 2 == 0 else VO, SRD_V, S_GV, (q//4)*32*12288 + 8*(q % 4)*384, q*1024) for q in range(16)]
    wd = [Dma(WO0 + q % 5, SRD_WO, S_GW, (q//5)*32*1280, 16384 + q*1024) for q in range(10)]
    parts = [wd[0:5] + vd[0:4], wd[5:10] + vd[4:8], vd[8:16]]
    for li in range(3):
        lab = '%s_ld%d' % (name, li)
        if li < 2:
            a.e('s_cmp_eq_u32 s%d, %d', S_WAVE, 4+li)
            a.e('s_cbranch_scc0 %s_ld%d' % (name, li+1))
        P = parts[li]; n = len(P)
        a.e('s_mov_b32 s%d, 0', S_LDS)
        a.e('s_mov_b32 s%d, 0', S_TH)
        def issue():
            for d in P:
                emit_dma(a, d, S_LDS, S_TMP, NT)
            a.e('s_add_u32 s%d, s%d, %d', S_GW, S_GW, 64*1280)
            a.e('s_add_u32 s%d, s%d, 128', S_GV, S_GV)
            a.e('s_add_u32 s%d, s%d, 1', S_TH, S_TH)
            a.e('s_cmp_eq_u32 s%d, 3', S_TH)
            a.e('s_cselect_b32 s%d, %d, 0', S_TMP, 12288-384)
            a.e('s_cselect_b32 s%d, 0, s%d', S_TH, S_TH)
            a.e('s_add_u32 s%d, s%d, s%d', S_GV, S_GV, S_TMP)
            a.e('s_add_u32 s%d, s%d, %d', S_LDS, S_LDS, B_SLOT)
            a.e('s_cmp_eq_u32 s%d, %d', S_LDS, B_NS*B_SLOT)
            a.e('s_cselect_b32 s%d, 0, s%d', S_LDS, S_LDS)
        for _ in range(B_NS-1):
            issue()
        a.e('s_mov_b32 s%d, 0', S_CNT)
        a.label(lab + '_loop')
        a.e('s_waitcnt vmcnt(%d)', n*(B_NS-2))
        a.e('s_barrier')
        issue()
        a.e('s_add_u32 s%d, s%d, 1', S_CNT, S_CNT)
        a.e('s_cmp_lt_u32 s%d, %d', S_CNT, 24-B_NS+1)
        a.e('s_cbranch_scc1 %s_loop', lab)
        for t in range(24-B_NS+1, 25):
            younger = max(0, 23 - t)
            a.e('s_waitcnt vmcnt(%d)', n*min(younger, B_NS-2))
            a.e('s_barrier')
        a.e('s_endpgm')
        if li < 2:
            a.label('%s_ld%d' % (name, li+1))
    a.label(END)
    a.e('s_endpgm')

def gen_C(a, name):
    END = name + '_end'
    kernel_begin(a, name)
    a.e('s_cmp_ge_u32 s2, 256')
    a.e('s_cbranch_scc1 %s', END)
    a.e('s_load_dwordx2 s[%d:%d], s[0:1], 80', SRD_OUT, SRD_OUT+1)
    a.e('s_load_dwordx2 s[%d:%d], s[0:1], 96', SRD_WS, SRD_WS+1)
    a.e('v_lshrrev_b32 v1, 6, v0')
    a.e('v_and_b32 v0, 63, v0')
    for srd, sz in ((SRD_WS, WS_SIZE), (SRD_OUT, 1310720)):
        a.e('s_mov_b32 s%d, 0x%x', srd+2, sz)
        a.e('s_mov_b32 s%d, 0x20000', srd+3)
    a.e('v_readfirstlane_b32 s3, v1')
    a.e('s_and_b32 s4, s2, 3')
    a.e('s_lshr_b32 s5, s2, 2')
    a.e('s_and_b32 s6, s5, 7')
    a.e('s_lshr_b32 s7, s5, 3')
    a.e('s_and_b32 s8, s7, 3')
    a.e('s_lshr_b32 s9, s7, 2')
    a.e('s_lshl_b32 s10, s5, 4')
    a.e('s_add_u32 s10, s10, s4')
    a.e('s_mul_i32 s10, s10, 10240')
    a.e('s_lshl_b32 s11, s3, 11')
    a.e('s_add_u32 s10, s10, s11')
    a.e('s_add_u32 s10, s10, 0x%x', WS_PART)
    a.e('v_lshlrev_b32 v2, 4, v0')
    a.e('s_waitcnt lgkmcnt(0)')
    for hg in range(4):
        for qt in range(2):
            a.e('buffer_load_dwordx4 v[%d:%d], v2, s[%d:%d], s10 offen offset:%d', 8+8*hg+4*qt, 8+8*hg+4*qt+3, SRD_WS, SRD_WS+3, qt*1024)
        a.e('s_add_u32 s10, s10, %d', 4*10240)
    a.e('s_lshl_b32 s12, s8, 2')
    a.e('s_add_u32 s12, s12, s4')
    a.e('s_mul_i32 s12, s12, %d', 32*2560)
    a.e('s_mul_i32 s13, s9, 1280')
    a.e('s_add_u32 s12, s12, s13')
    a.e('s_mul_i32 s13, s6, 160')
    a.e('s_add_u32 s12, s12, s13')
    a.e('s_lshl_b32 s13, s3, 5')
    a.e('s_add_u32 s12, s12, s13')
    a.e('v_and_b32 v3, 15, v0')
    a.e('v_mul_u32_u24 v3, 2560, v3')
    a.e('v_lshrrev_b32 v4, 4, v0')
    a.e('v_lshl_add_u32 v3, v4, 3, v3')
    a.e('s_waitcnt vmcnt(0)')
    for qt in range(2):
        for j in range(4):
            r = 8+4*qt+j
            a.e('v_add_f32 v%d, v%d, v%d', r, r, r+8)
            a.e('v_add_f32 v%d, v%d, v%d', r+16, r+16, r+24)
            a.e('v_add_f32 v%d, v%d, v%d', r, r, r+16)
        a.e('v_cvt_pk_bf16_f32 v%d, v%d, v%d', 40+2*qt, 8+4*qt, 8+4*qt+1)
        a.e('v_cvt_pk_bf16_f32 v%d, v%d, v%d', 40+2*qt+1, 8+4*qt+2, 8+4*qt+3)
    a.e('buffer_store_dwordx2 v[40:41], v3, s[%d:%d], s12 offen', SRD_OUT, SRD_OUT+3)
    a.e('s_add_u32 s12, s12, %d', 16*2560)
    a.e('buffer_store_dwordx2 v[42:43], v3, s[%d:%d], s12 offen', SRD_OUT, SRD_OUT+3)
    a.label(END)
    a.e('s_endpgm')

def main(outpath, which='ABC'):
    a = Asm()
    names = {'A': 'stage_a_kernel', 'B': 'stage_b_kernel', 'C': 'reduce_kernel'}
    hdr = HEADER
    if 'A' in which: hdr += '; @launch kernel=stage_a_kernel grid=(256,1,1) block=(512,1,1) lds=%d\n' % (3*A_SLOT)
    if 'B' in which: hdr += '; @launch kernel=stage_b_kernel grid=(256,1,1) block=(512,1,1) lds=%d\n' % (B_NS*B_SLOT)
    if 'C' in which: hdr += '; @launch kernel=reduce_kernel grid=(256,1,1) block=(320,1,1) lds=0\n'
    a.raw(hdr + '.amdgcn_target "amdgcn-amd-amdhsa--gfx950"\n.text')
    if 'A' in which: gen_A(a, names['A'])
    if 'B' in which: gen_B(a, names['B'])
    if 'C' in which: gen_C(a, names['C'])
    a.raw('.section .rodata,"a"\n.p2align 6')
    if 'A' in which: a.raw(kernel_desc(names['A'], 256))
    if 'B' in which: a.raw('.p2align 6\n' + kernel_desc(names['B'], 256))
    if 'C' in which: a.raw('.p2align 6\n' + kernel_desc(names['C'], 64))
    open(outpath, 'w').write(a.text())

if __name__ == '__main__':
    main(sys.argv[1], sys.argv[2] if len(sys.argv) > 2 else 'ABC')
```

```python
import sys, os, math, struct
from asmlib import *

NAME = 'concat_heads__gqa_block_cached__mha_block_cached__near_ridge'
KNAME = NAME + '_kernel'
WS_P = 0
WS_PART = 4 << 20
WS_DIAG = 24 << 20
WS_SIZE = 32 << 20

class Cfg:
    DIAG = False
    NT = True
    NT_PF = True
    PART_BF16 = True
    PF_W = 16
    PF_ON = True
    NOLOAD = False
cfg = Cfg()

S_BETA, S_HG, S_MB, S_HL = 4, 5, 6, 7
SRD_X, SRD_WQ, SRD_K, SRD_V, SRD_WO, SRD_WS, SRD_OUT, SRD_DBG = 8, 12, 16, 20, 24, 28, 32, 36
S_WAVE = 3
S_H = 46
S_J = 41
S_FLAG = 43

A_SLOT = 40960
K_BASE = 163840 - 49152
B_SLOT = 26624
B_SEQ = [2, 3, 0, 1, 4, 5]
LDS_TOTAL = 163840

def stamp(a, idx, vreg=30):
    if not cfg.DIAG: return
    a.e('s_memrealtime s[60:61]')
    a.e('s_waitcnt lgkmcnt(0)')
    a.e('v_writelane_b32 v%d, s60, %d', vreg, idx)

def stamp_store(a, vreg=30, vtmp=31, region=0):
    if not cfg.DIAG: return
    a.e('v_lshlrev_b32 v%d, 2, v0', vtmp)
    a.e('s_lshl_b32 s60, s2, 8')
    a.e('s_add_u32 s60, s60, 0x%x', WS_DIAG + region*65536)
    a.e('buffer_store_dword v%d, v%d, s[%d:%d], s60 offen', vreg, vtmp, SRD_WS, SRD_WS+3)

def prologue(a, endlabel):
    a.e('s_cmp_ge_u32 s2, 256')
    a.e('s_cbranch_scc1 %s', endlabel)
    a.e('s_and_b32 s40, s2, 7')
    a.e('s_lshr_b32 s%d, s2, 3', S_J)
    a.e('s_lshr_b32 s%d, s40, 2', S_BETA)
    a.e('s_and_b32 s%d, s40, 3', S_HG)
    a.e('s_and_b32 s%d, s%d, 3', S_MB, S_J)
    a.e('s_lshr_b32 s%d, s%d, 2', S_HL, S_J)
    a.e('s_mul_i32 s42, s%d, 40', S_BETA)
    a.e('s_add_u32 s44, s0, s42')
    a.e('s_addc_u32 s45, s1, 0')
    a.e('s_load_dwordx2 s[%d:%d], s[44:45], 0', SRD_X, SRD_X+1)
    a.e('s_load_dwordx2 s[%d:%d], s[44:45], 24', SRD_WQ, SRD_WQ+1)
    a.e('s_load_dwordx2 s[%d:%d], s[44:45], 8', SRD_K, SRD_K+1)
    a.e('s_load_dwordx2 s[%d:%d], s[44:45], 16', SRD_V, SRD_V+1)
    a.e('s_load_dwordx2 s[%d:%d], s[44:45], 32', SRD_WO, SRD_WO+1)
    a.e('s_load_dwordx2 s[%d:%d], s[0:1], 80', SRD_OUT, SRD_OUT+1)
    a.e('s_load_dwordx2 s[%d:%d], s[0:1], 88', SRD_DBG, SRD_DBG+1)
    a.e('s_load_dwordx2 s[%d:%d], s[0:1], 96', SRD_WS, SRD_WS+1)
    a.e('v_lshrrev_b32 v1, 6, v0')
    a.e('v_and_b32 v0, 63, v0')
    for srd, sz in ((SRD_X, 655360), (SRD_WQ, 7864320), (SRD_K, 6291456), (SRD_V, 6291456), (SRD_WO, 7864320),
                    (SRD_WS, WS_SIZE), (SRD_OUT, 1310720), (SRD_DBG, 256)):
        a.e('s_mov_b32 s%d, 0x%x', srd+2, sz)
        a.e('s_mov_b32 s%d, 0x20000', srd+3)
    a.e('v_readfirstlane_b32 s%d, v1', S_WAVE)
    a.e('s_lshl_b32 s%d, s%d, 3', S_H, S_HG)
    a.e('s_add_u32 s%d, s%d, s%d', S_H, S_H, S_HL)
    a.e('s_lshl_b32 s%d, s40, 2', S_FLAG)
    a.e('s_add_u32 s%d, s%d, s%d', S_FLAG, S_FLAG, S_MB)
    a.e('s_lshl_b32 s%d, s%d, 3', S_FLAG, S_FLAG)
    a.e('s_add_u32 s%d, s%d, s%d', S_FLAG, S_FLAG, S_HL)
    a.e('s_waitcnt lgkmcnt(0)')

def div_const(a, vd, vs, d, maxv):
    M = -(-65536 // d)
    for x in range(maxv+1):
        assert (x*M) >> 16 == x // d, (x, d)
    a.e('v_mul_u32_u24 v%d, 0x%x, v%d', vd, M, vs)
    a.e('v_lshrrev_b32 v%d, 16, v%d', vd, vd)

class LdsTrack:
    def __init__(self, a):
        self.a = a; self.q = []
    def read(self, text, lo, n):
        self.a.e(text); self.q.append((lo, lo+n-1))
    def need(self, *ranges):
        last = -1
        for i, (lo, hi) in enumerate(self.q):
            for (l, n) in ranges:
                if not (hi < l or lo > l+n-1): last = i
        if last >= 0:
            k = len(self.q) - 1 - last
            assert k <= 15, k
            self.a.e('s_waitcnt lgkmcnt(%d)', k)
            self.q = self.q[last+1:]
    def drain(self):
        if self.q:
            self.a.e('s_waitcnt lgkmcnt(0)'); self.q = []

class Dma:
    def __init__(self, voff, srd, gbase_s, gconst, lconst):
        self.voff, self.srd, self.gbase_s, self.gconst, self.lconst = voff, srd, gbase_s, gconst, lconst

def emit_dma(a, d, lds_base, s_tmp, gadd=0):
    if cfg.NOLOAD: return
    a.e('s_mov_b32 m0, 0x%x', lds_base + d.lconst)
    a.e('s_add_u32 s%d, s%d, 0x%x', s_tmp, d.gbase_s, d.gconst + gadd)
    a.e('buffer_load_dwordx4 v%d, s[%d:%d], s%d offen%s lds', d.voff, d.srd, d.srd+3, s_tmp, ' nt' if cfg.NT else '')

def gen_compute(a):
    XREL, XCUR, WRE, WRO, WCE, WCO = 2, 6, 10, 11, 12, 13
    KAD = 2
    ACC, AF0, AF1, BF0, BF1, QB, SACC, TMP = 16, 112, 136, 160, 164, 168, 216, 232
    t0, t1, t2, t3 = TMP, TMP+1, TMP+2, TMP+3
    L = LdsTrack(a)
    a.e('v_and_b32 v%d, 31, v0', t0)
    a.e('v_lshrrev_b32 v%d, 5, v0', t1)
    a.e('v_bfe_u32 v%d, v0, 1, 3', t2)
    a.e('v_xor_b32 v%d, v%d, v%d', t2, t2, t1)
    a.e('s_lshl_b32 s47, s%d, 12', S_WAVE)
    a.e('v_lshlrev_b32 v%d, 7, v%d', t3, t0)
    a.e('v_add_u32 v%d, s47, v%d', t3, t3)
    for s in range(4):
        a.e('v_xor_b32 v%d, %d, v%d', XREL+s, 2*s, t2)
        a.e('v_lshl_add_u32 v%d, v%d, 4, v%d', XREL+s, XREL+s, t3)
    a.e('v_bfe_u32 v%d, v0, 2, 2', t0)
    a.e('v_lshrrev_b32 v%d, 5, v0', t1)
    a.e('v_lshl_add_u32 v%d, v%d, 3, v%d', t0, t1, t0)
    a.e('v_mul_u32_u24 v%d, 384, v%d', t0, t0)
    a.e('v_bfe_u32 v%d, v0, 4, 1', t1)
    a.e('v_lshl_add_u32 v%d, v%d, 5, v%d', t0, t1, t0)
    a.e('v_and_b32 v%d, 1, v0', t1)
    a.e('v_lshl_add_u32 v%d, v%d, 4, v%d', t0, t1, t0)
    a.e('v_bfe_u32 v%d, v0, 1, 1', t1)
    a.e('v_lshl_add_u32 v%d, v%d, 3, v%d', t0, t1, t0)
    a.e('v_add_u32 v%d, 16384, v%d', t0, t0)
    a.e('v_bfe_u32 v%d, v0, 3, 1', t1)
    a.e('v_lshlrev_b32 v%d, 6, v%d', t1, t1)
    a.e('v_add_u32 v%d, v%d, v%d', WRE, t0, t1)
    a.e('v_sub_u32 v%d, v%d, v%d', WRO, t0, t1)

    def a_addr(c):
        sb = (c % 3) * A_SLOT
        for s in range(4):
            a.e('v_add_u32 v%d, 0x%x, v%d', XCUR+s, sb, XREL+s)
        a.e('v_add_u32 v%d, 0x%x, v%d', WCE, sb, WRE)
        a.e('v_add_u32 v%d, 0x%x, v%d', WCO, sb, WRO)
    def a_reads(s, af, bf):
        r = [('ds_read_b128 v[%d:%d], v%d' % (bf, bf+3, XCUR+s), bf, 4)]
        for t in range(6):
            for u in range(2):
                off = (16*s + 4*u)*384 + 64*t
                d = af+4*t+2*u
                r.append(('ds_read_b64_tr_b16 v[%d:%d], v%d offset:%d' % (d, d+1, WCE if t % 2 == 0 else WCO, off), d, 2))
        return r
    def a_step(af, bf, nreads, per, first=False, mid=None, midpos=None):
        idx = 0
        for t in range(6):
            L.need((af+4*t, 4), (bf, 4))
            c = '0' if first else 'v[%d:%d]' % (ACC+16*t, ACC+16*t+15)
            a.e('v_mfma_f32_32x32x16_bf16 v[%d:%d], v[%d:%d], v[%d:%d], %s', ACC+16*t, ACC+16*t+15, af+4*t, af+4*t+3, bf, bf+3, c)
            if mid is not None and t == midpos:
                nreads = mid()
            for _ in range(per[t]):
                if idx < len(nreads):
                    L.read(*nreads[idx]); idx += 1
        assert idx == len(nreads), (idx, len(nreads))

    a.e('s_barrier')
    a_addr(0)
    for r in a_reads(0, AF0, BF0):
        L.read(*r)
    KADR = [14, 15, 1, 248]
    a.e('v_and_b32 v%d, 31, v0', t0)
    a.e('s_mul_i32 s47, s%d, 12288', S_WAVE)
    a.e('s_add_u32 s47, s47, 0x%x', K_BASE)
    a.e('v_mul_u32_u24 v%d, 384, v%d', t3, t0)
    a.e('v_add_u32 v%d, s47, v%d', t3, t3)
    for s in range(4):
        a.e('v_xor_b32 v%d, %d, v%d', KADR[s], 2*s, t2)
        a.e('v_lshl_add_u32 v%d, v%d, 4, v%d', KADR[s], KADR[s], t3)
    def k_reads():
        return [('ds_read_b128 v[%d:%d], v%d offset:%d' % (AF0+4*sp, AF0+4*sp+3, KADR[sp % 4], 128*(sp//4)), AF0+4*sp, 4) for sp in range(12)]
    for c in range(10):
        a_step(AF0, BF0, a_reads(1, AF1, BF1), [3,2,2,2,2,2], first=(c == 0))
        a_step(AF1, BF1, a_reads(2, AF0, BF0), [3,2,2,2,2,2])
        a_step(AF0, BF0, a_reads(3, AF1, BF1), [4,3,3,3,0,0])
        def mid(c=c):
            L.drain()
            a.e('s_barrier')
            if c < 9:
                a_addr(c+1)
                return a_reads(0, AF0, BF0)
            return k_reads()[:6]
        a_step(AF1, BF1, [], [0,4,3,3,3,0] if c < 9 else [0,2,2,2,0,0], mid=mid, midpos=1)
    for r in k_reads()[6:]:
        L.read(*r)
    for t in range(6):
        for j in range(8):
            a.e('v_cvt_pk_bf16_f32 v%d, v%d, v%d', QB+8*t+j, ACC+16*t+2*j, ACC+16*t+2*j+1)
    VW, OA, VF0, VF1 = 16, 56, 96, 104
    WF1, VWBa, VWBb, VWBc, WF0 = 112, 132, 168, 188, 236
    PF = [216, 224, 160, 152]
    VREL, VCUR, WREL, WCUR, PV = 2, 4, 6, 7, 8
    a.e('v_and_b32 v%d, 15, v0', t0)
    a.e('v_lshrrev_b32 v%d, 4, v0', t1)
    a.e('v_bfe_u32 v%d, v0, 1, 3', t2)
    a.e('v_xor_b32 v%d, v%d, v%d', t2, t2, t1)
    a.e('s_lshl_b32 s49, s%d, 12', S_WAVE)
    a.e('v_lshlrev_b32 v%d, 7, v%d', t3, t0)
    a.e('v_add_u32 v%d, s49, v%d', t3, t3)
    a.e('v_lshl_add_u32 v%d, v%d, 4, v%d', VREL, t2, t3)
    a.e('v_xor_b32 v%d, 64, v%d', VREL+1, VREL)
    a.e('v_lshrrev_b32 v%d, 5, v0', t0)
    a.e('v_lshlrev_b32 v%d, 4, v%d', t0, t0)
    a.e('v_bfe_u32 v%d, v0, 4, 1', t1)
    a.e('v_lshl_add_u32 v%d, v%d, 2, v%d', t0, t1, t0)
    a.e('v_bfe_u32 v%d, v0, 2, 2', t1)
    a.e('v_add_u32 v%d, v%d, v%d', t0, t0, t1)
    a.e('v_mul_u32_u24 v%d, 160, v%d', t0, t0)
    a.e('v_and_b32 v%d, 3, v0', t1)
    a.e('v_lshl_add_u32 v%d, v%d, 3, v%d', t0, t1, t0)
    a.e('v_add_u32 v%d, 16384, v%d', WREL, t0)
    a.e('v_lshlrev_b32 v%d, 4, v0', PV)
    def b_addr(t):
        sb = B_SEQ[t % 6] * B_SLOT
        a.e('v_add_u32 v%d, 0x%x, v%d', VCUR, sb, VREL)
        a.e('v_add_u32 v%d, 0x%x, v%d', VCUR+1, sb, VREL+1)
        a.e('v_add_u32 v%d, 0x%x, v%d', WCUR, sb, WREL)
    def b_reads(s, vf, wf):
        r = []
        for rt in range(2):
            r.append(('ds_read_b128 v[%d:%d], v%d offset:%d' % (vf+4*rt, vf+4*rt+3, VCUR+s, rt*2048), vf+4*rt, 4))
        for nt in range(5):
            for u in range(2):
                d = wf+4*nt+2*u
                r.append(('ds_read_b64_tr_b16 v[%d:%d], v%d offset:%d' % (d, d+1, WCUR, (32*s+8*u)*160 + 32*nt), d, 2))
        return r
    L.drain()
    a.e('s_barrier')
    b_addr(0)
    br = b_reads(0, VF0, WF0)
    for sp in range(12):
        c = '0' if sp == 0 else 'v[%d:%d]' % (SACC, SACC+15)
        a.e('v_mfma_f32_32x32x16_bf16 v[%d:%d], v[%d:%d], v[%d:%d], %s', SACC, SACC+15, AF0+4*sp, AF0+4*sp+3, QB+4*sp, QB+4*sp+3, c)
        L.read(*br[sp])
    for r in range(40):
        a.e('v_mov_b32 v%d, 0', OA+r)
    a.e('v_max3_f32 v%d, v%d, v%d, v%d', t0, SACC, SACC+1, SACC+2)
    for r in range(3, 15, 2):
        a.e('v_max3_f32 v%d, v%d, v%d, v%d', t0, t0, SACC+r, SACC+r+1)
    a.e('v_max_f32 v%d, v%d, v%d', t0, t0, SACC+15)
    a.e('v_mov_b32 v%d, v%d', t1, t0)
    a.e('s_nop 1')
    a.e('v_permlane32_swap_b32 v%d, v%d', t0, t1)
    a.e('v_max_f32 v%d, v%d, v%d', t0, t0, t1)
    cval = (192 ** -0.5) * math.log2(math.e)
    cb = struct.unpack('<I', struct.pack('<f', cval))[0]
    a.e('s_mov_b32 s50, 0x%x', cb)
    a.e('v_mul_f32 v%d, s50, v%d', t2, t0)
    for r in range(16):
        a.e('v_fma_f32 v%d, v%d, s50, -v%d', SACC+r, SACC+r, t2)
    for r in range(16):
        a.e('v_exp_f32 v%d, v%d', SACC+r, SACC+r)
    a.e('s_nop 0')
    a.e('v_add_f32 v%d, v%d, v%d', t0, SACC, SACC+1)
    a.e('v_add_f32 v%d, v%d, v%d', t1, SACC+2, SACC+3)
    for r in range(4, 16, 2):
        a.e('v_add_f32 v%d, v%d, v%d', t0, t0, SACC+r)
        a.e('v_add_f32 v%d, v%d, v%d', t1, t1, SACC+r+1)
    a.e('v_add_f32 v%d, v%d, v%d', t0, t0, t1)
    a.e('v_mov_b32 v%d, v%d', t1, t0)
    a.e('s_nop 1')
    a.e('v_permlane32_swap_b32 v%d, v%d', t0, t1)
    a.e('v_add_f32 v%d, v%d, v%d', t0, t0, t1)
    a.e('v_rcp_f32 v%d, v%d', t0, t0)
    a.e('s_nop 0')
    for r in range(16):
        a.e('v_mul_f32 v%d, v%d, v%d', SACC+r, SACC+r, t0)
    PB = QB
    for j in range(8):
        a.e('v_cvt_pk_bf16_f32 v%d, v%d, v%d', PB+j, SACC+2*j, SACC+2*j+1)
    a.e('v_bfe_u32 v%d, v0, 4, 1', t0)
    a.e('v_lshlrev_b32 v%d, 10, v%d', t0, t0)
    a.e('v_and_b32 v%d, 15, v0', t1)
    a.e('v_lshl_add_u32 v%d, v%d, 4, v%d', t0, t1, t0)
    a.e('v_lshrrev_b32 v%d, 5, v0', t1)
    a.e('v_lshl_add_u32 v%d, v%d, 9, v%d', t0, t1, t0)
    a.e('s_lshl_b32 s51, s%d, 4', S_BETA)
    a.e('s_lshl_b32 s47, s%d, 2', S_MB)
    a.e('s_add_u32 s51, s51, s47')
    a.e('s_add_u32 s51, s51, s%d', S_WAVE)
    a.e('s_lshl_b32 s51, s51, 5')
    a.e('s_add_u32 s47, s51, s%d', S_H)
    a.e('s_lshl_b32 s47, s47, 11')
    a.e('s_add_u32 s47, s47, 0x%x', WS_P)
    a.e('buffer_store_dwordx4 v[%d:%d], v%d, s[%d:%d], s47 offen sc1', PB, PB+3, t0, SRD_WS, SRD_WS+3)
    a.e('buffer_store_dwordx4 v[%d:%d], v%d, s[%d:%d], s47 offen offset:256 sc1', PB+4, PB+7, t0, SRD_WS, SRD_WS+3)
    a.e('s_lshl_b32 s52, s%d, 3', S_HG)
    a.e('s_add_u32 s52, s52, s51')
    a.e('s_lshl_b32 s52, s52, 11')
    a.e('s_add_u32 s52, s52, 0x%x', WS_P)
    if cfg.DIAG:
        a.e('v_mov_b32 v9, 0')
        stamp(a, 0, 9)
    def b_step(vf, wf, nreads, per, first=False, mid=None, midpos=None):
        idx = 0
        for j in range(10):
            nt, rt = j // 2, j % 2
            L.need((vf+4*rt, 4), (wf+4*nt, 4))
            d = VW + 4*(rt*5 + nt)
            c = '0' if first else 'v[%d:%d]' % (d, d+3)
            a.e('v_mfma_f32_16x16x32_bf16 v[%d:%d], v[%d:%d], v[%d:%d], %s', d, d+3, vf+4*rt, vf+4*rt+3, wf+4*nt, wf+4*nt+3, c)
            if mid is not None and j == midpos:
                nreads = mid()
            for _ in range(per[j]):
                if idx < len(nreads):
                    L.read(*nreads[idx]); idx += 1
        assert idx == len(nreads), (idx, len(nreads))
    def cvt_vw(dst):
        for nt in range(5):
            d0 = VW + 4*nt; d1 = VW + 4*(5+nt)
            o = d0 if dst is None else dst+4*nt
            a.e('v_cvt_pk_bf16_f32 v%d, v%d, v%d', o+0, d0, d0+1)
            a.e('v_cvt_pk_bf16_f32 v%d, v%d, v%d', o+1, d0+2, d0+3)
            a.e('v_cvt_pk_bf16_f32 v%d, v%d, v%d', o+2, d1, d1+1)
            a.e('v_cvt_pk_bf16_f32 v%d, v%d, v%d', o+3, d1+2, d1+3)
    def g2(src, p):
        for nt in range(5):
            s = VW+4*nt if src is None else src+4*nt
            for qt in range(2):
                d = OA + 4*(2*nt+qt)
                a.e('v_mfma_f32_16x16x32_bf16 v[%d:%d], v[%d:%d], v[%d:%d], v[%d:%d]', d, d+3, s, s+3, p+4*qt, p+4*qt+3, d, d+3)
    def p_loads(h0):
        for i in range(4):
            a.e('s_add_u32 s47, s52, %d', (h0+i)*2048)
            for qt in range(2):
                a.e('buffer_load_dwordx4 v[%d:%d], v%d, s[%d:%d], s47 offen offset:%d sc1', PF[i]+4*qt, PF[i]+4*qt+3, PV, SRD_WS, SRD_WS+3, qt*1024)
    def poll_p():
        lab = a.newlabel('pollp')
        a.e('s_and_b32 s47, s%d, 0xf8', S_FLAG)
        a.e('v_mov_b32 v%d, 0', t0)
        a.e('s_mov_b32 s48, 0')
        a.label(lab)
        a.e('buffer_load_dwordx2 v[%d:%d], v%d, s[%d:%d], s47 offen sc1', t2, t3, t0, SRD_DBG, SRD_DBG+3)
        a.e('s_waitcnt vmcnt(0)')
        a.e('v_and_b32 v%d, v%d, v%d', t2, t2, t3)
        a.e('v_and_b32 v%d, 0x01010101, v%d', t2, t2)
        a.e('s_nop 0')
        a.e('v_readfirstlane_b32 s49, v%d', t2)
        a.e('s_add_u32 s48, s48, 1')
        a.e('s_cmp_gt_u32 s48, 4000')
        a.e('s_cbranch_scc1 %s_done', lab)
        a.e('s_cmp_lg_u32 s49, 0x01010101')
        a.e('s_cbranch_scc0 %s_done', lab)
        a.e('s_sleep 2')
        a.e('s_branch %s', lab)
        a.label(lab + '_done')
    for hq in range(8):
        for third in range(3):
            t = 3*hq + third
            b_step(VF0, WF0, b_reads(1, VF1, WF1), [2,2,1,1,1,1,1,1,1,1], first=(third == 0))
            def mid(t=t):
                L.drain()
                if t == 2:
                    a.e('s_waitcnt vmcnt(0)')
                a.e('s_barrier')
                if t == 2:
                    lab = a.newlabel('pub')
                    a.e('s_cmp_lg_u32 s%d, 0', S_WAVE)
                    a.e('s_cbranch_scc1 %s', lab)
                    a.e('v_mov_b32 v%d, 0', t0)
                    a.e('v_mov_b32 v%d, 1', t1)
                    a.e('s_mov_b64 exec, 1')
                    a.e('buffer_store_byte v%d, v%d, s[%d:%d], s%d offen sc1', t1, t0, SRD_DBG, SRD_DBG+3, S_FLAG)
                    a.e('s_mov_b64 exec, -1')
                    a.label(lab)
                if t < 23:
                    b_addr(t+1)
                    return b_reads(0, VF0, WF0)
                return []
            b_step(VF1, WF1, [], [0,0,0,3,3,2,2,2,0,0], mid=mid, midpos=3)
        a.e('s_nop 7')
        if hq == 0: cvt_vw(VWBa)
        elif hq == 1:
            cvt_vw(VWBb); poll_p(); p_loads(0)
        elif hq == 2: cvt_vw(VWBc)
        elif hq == 3:
            cvt_vw(None); a.e('s_waitcnt vmcnt(0)')
            g2(VWBa, PF[0]); g2(VWBb, PF[1]); g2(VWBc, PF[2]); g2(None, PF[3])
            p_loads(4)
        elif hq == 4: cvt_vw(VWBa)
        elif hq == 5:
            cvt_vw(None); a.e('s_waitcnt vmcnt(0)')
            g2(VWBa, PF[0]); g2(None, PF[1])
        elif hq == 6:
            cvt_vw(None); a.e('s_nop 1'); g2(None, PF[2])
        elif hq == 7:
            cvt_vw(None); a.e('s_nop 1'); g2(None, PF[3])
    assert not L.q
    stamp(a, 1, 9)
    a.e('s_lshl_b32 s53, s%d, 2', S_BETA)
    a.e('s_add_u32 s53, s53, s%d', S_MB)
    a.e('s_lshl_b32 s53, s53, 3')
    a.e('s_add_u32 s53, s53, s%d', S_HL)
    SLAB = 5120 if cfg.PART_BF16 else 10240
    a.e('s_lshl_b32 s53, s53, 2')
    a.e('s_add_u32 s53, s53, s%d', S_WAVE)
    a.e('s_lshl_b32 s53, s53, 2')
    a.e('s_nop 7')
    lab_own = a.newlabel('own'); lab_sent = a.newlabel('sent')
    a.e('s_cmp_eq_u32 s%d, s%d', S_WAVE, S_HG)
    a.e('s_cbranch_scc1 %s', lab_sent)
    a.e('s_add_u32 s54, s53, s%d', S_HG)
    a.e('s_mul_i32 s54, s54, %d', SLAB)
    a.e('s_add_u32 s54, s54, 0x%x', WS_PART)
    T = 112
    if cfg.PART_BF16:
        for j in range(10):
            a.e('v_cvt_pk_bf16_f32 v%d, v%d, v%d', T+2*j, OA+4*j, OA+4*j+1)
            a.e('v_cvt_pk_bf16_f32 v%d, v%d, v%d', T+2*j+1, OA+4*j+2, OA+4*j+3)
        for k in range(5):
            a.e('buffer_store_dwordx4 v[%d:%d], v%d, s[%d:%d], s54 offen offset:%d sc1', T+4*k, T+4*k+3, PV, SRD_WS, SRD_WS+3, 1024*k if k < 4 else 0) if k < 4 else None
        a.e('s_add_u32 s54, s54, 4096')
        a.e('buffer_store_dwordx4 v[%d:%d], v%d, s[%d:%d], s54 offen sc1', T+16, T+19, PV, SRD_WS, SRD_WS+3)
    else:
        for j in range(10):
            a.e('buffer_store_dwordx4 v[%d:%d], v%d, s[%d:%d], s54 offen sc1', OA+4*j, OA+4*j+3, PV, SRD_WS, SRD_WS+3)
            a.e('s_add_u32 s54, s54, 1024')
    a.e('s_waitcnt vmcnt(0)')
    a.label(lab_sent)
    a.e('s_barrier')
    stamp(a, 2, 9)
    lab_end = a.newlabel('cend')
    a.e('s_cmp_lg_u32 s%d, s%d', S_WAVE, S_HG)
    a.e('s_cbranch_scc1 %s', lab_end)
    a.e('v_mov_b32 v%d, 0', t0)
    a.e('v_mov_b32 v%d, 3', t1)
    a.e('s_mov_b64 exec, 1')
    a.e('buffer_store_byte v%d, v%d, s[%d:%d], s%d offen sc1', t1, t0, SRD_DBG, SRD_DBG+3, S_FLAG)
    a.e('s_mov_b64 exec, -1')
    a.e('v_and_b32 v%d, 3, v0', t0)
    a.e('v_lshlrev_b32 v%d, 5, v%d', t0, t0)
    a.e('s_lshl_b32 s47, s%d, 7', S_BETA)
    a.e('s_lshl_b32 s48, s%d, 3', S_MB)
    a.e('s_add_u32 s47, s47, s48')
    a.e('s_add_u32 s47, s47, s%d', S_HL)
    lab = a.newlabel('pollr')
    a.e('s_mov_b32 s48, 0')
    a.label(lab)
    a.e('buffer_load_ubyte v%d, v%d, s[%d:%d], s47 offen sc1', t2, t0, SRD_DBG, SRD_DBG+3)
    a.e('s_waitcnt vmcnt(0)')
    a.e('v_cmp_gt_u32 vcc, 2, v%d', t2)
    a.e('s_add_u32 s48, s48, 1')
    a.e('s_cmp_gt_u32 s48, 4000')
    a.e('s_cbranch_scc1 %s_done', lab)
    a.e('s_nop 2')
    a.e('s_cbranch_vccz %s_done', lab)
    a.e('s_sleep 1')
    a.e('s_branch %s', lab)
    a.label(lab + '_done')
    stamp(a, 3, 9)
    nq = 5 if cfg.PART_BF16 else 10
    for i in range(3):
        a.e('s_add_u32 s47, s%d, %d', S_HG, i+1)
        a.e('s_and_b32 s47, s47, 3')
        a.e('s_add_u32 s47, s47, s53')
        a.e('s_mul_i32 s47, s47, %d', SLAB)
        a.e('s_add_u32 s47, s47, 0x%x', WS_PART)
        for k in range(nq):
            d = T + (i*nq + k)*4
            if k == 4 or k == 8:
                a.e('s_add_u32 s47, s47, 4096')
            a.e('buffer_load_dwordx4 v[%d:%d], v%d, s[%d:%d], s47 offen offset:%d sc1', d, d+3, PV, SRD_WS, SRD_WS+3, 1024*(k % 4))
    a.e('s_lshl_b32 s47, s%d, 2', S_MB)
    a.e('s_add_u32 s47, s47, s%d', S_WAVE)
    a.e('s_mul_i32 s47, s47, %d', 32*2560)
    a.e('s_mul_i32 s48, s%d, 1280', S_BETA)
    a.e('s_add_u32 s47, s47, s48')
    a.e('s_mul_i32 s48, s%d, 160', S_HL)
    a.e('s_add_u32 s47, s47, s48')
    a.e('v_and_b32 v%d, 15, v0', t0)
    a.e('v_mul_u32_u24 v%d, 2560, v%d', t0, t0)
    a.e('v_lshrrev_b32 v%d, 4, v0', t1)
    a.e('v_lshl_add_u32 v%d, v%d, 3, v%d', t0, t1, t0)
    a.e('v_add_u32 v%d, %d, v%d', t1, 16*2560, t0)
    for i in range(3):
        a.e('s_waitcnt vmcnt(%d)', (2-i)*nq)
        for j in range(10):
            if cfg.PART_BF16:
                s = T + i*20 + 2*j
                a.e('v_lshlrev_b32 v%d, 16, v%d', t2, s)
                a.e('v_and_b32 v%d, 0xffff0000, v%d', t3, s)
                a.e('v_add_f32 v%d, v%d, v%d', OA+4*j, OA+4*j, t2)
                a.e('v_add_f32 v%d, v%d, v%d', OA+4*j+1, OA+4*j+1, t3)
                a.e('v_lshlrev_b32 v%d, 16, v%d', t2, s+1)
                a.e('v_and_b32 v%d, 0xffff0000, v%d', t3, s+1)
                a.e('v_add_f32 v%d, v%d, v%d', OA+4*j+2, OA+4*j+2, t2)
                a.e('v_add_f32 v%d, v%d, v%d', OA+4*j+3, OA+4*j+3, t3)
            else:
                s = T + i*40 + 4*j
                for r in range(4):
                    a.e('v_add_f32 v%d, v%d, v%d', OA+4*j+r, OA+4*j+r, s+r)
    for j in range(10):
        nt, qt = j // 2, j % 2
        a.e('v_cvt_pk_bf16_f32 v%d, v%d, v%d', VW+2*j, OA+4*j, OA+4*j+1)
        a.e('v_cvt_pk_bf16_f32 v%d, v%d, v%d', VW+2*j+1, OA+4*j+2, OA+4*j+3)
    for j in range(10):
        nt, qt = j // 2, j % 2
        a.e('buffer_store_dwordx2 v[%d:%d], v%d, s[%d:%d], s47 offen offset:%d', VW+2*j, VW+2*j+1, t1 if qt else t0, SRD_OUT, SRD_OUT+3, 32*nt)
    if cfg.DIAG:
        a.e('s_waitcnt vmcnt(0)')
        stamp(a, 4, 9)
        stamp_store(a, 9, 10, region=1)
    a.label(lab_end)
    a.e('s_endpgm')

def gen_loaders(a):
    XE, XO, W0, VE, VO, WO0 = 2, 3, 4, 8, 9, 10
    t0, t1, t2, t3 = 16, 17, 18, 19
    a.e('v_lshrrev_b32 v%d, 3, v0', t0)
    a.e('v_and_b32 v%d, 7, v0', t1)
    a.e('v_lshrrev_b32 v%d, 4, v0', t2)
    a.e('v_xor_b32 v%d, v%d, v%d', t1, t1, t2)
    a.e('v_mul_u32_u24 v%d, 1280, v%d', t3, t0)
    a.e('v_lshl_add_u32 v%d, v%d, 4, v%d', XE, t1, t3)
    a.e('v_xor_b32 v%d, 64, v%d', XO, XE)
    for b in range(3):
        a.e('v_add_u32 v%d, %d, v0', 20, 64*b)
        div_const(a, 21, 20, 24, 191)
        a.e('v_mul_u32_u24 v22, 24, v21')
        a.e('v_sub_u32 v22, v20, v22')
        a.e('v_bfe_u32 v23, v21, 1, 1')
        a.e('v_lshlrev_b32 v23, 2, v23')
        a.e('v_xor_b32 v23, v23, v22')
        a.e('v_lshlrev_b32 v23, 4, v23')
        a.e('v_mul_u32_u24 v%d, 0x3000, v21', W0+b)
        a.e('v_add_u32 v%d, v%d, v23', W0+b, W0+b)
    S_GX, S_GW, S_GV, S_GO, S_TMP = 52, 53, 54, 55, 56
    a.e('s_mul_i32 s%d, s%d, %d', S_GX, S_MB, 128*1280)
    a.e('s_mul_i32 s%d, s%d, 384', S_GW, S_H)
    xd = [Dma(XE if q % 2 == 0 else XO, SRD_X, S_GX, 8*q*1280, q*1024) for q in range(16)]
    wd = [Dma(W0 + q % 3, SRD_WQ, S_GW, (q//3)*8*12288, 16384 + q*1024) for q in range(24)]
    partsA = [wd[0:9] + xd[0:4], wd[9:18] + xd[4:8], wd[18:24] + xd[8:16]]
    vd = [Dma(VE if q % 2 == 0 else VO, SRD_V, S_GV, (q//4)*32*12288 + 8*(q % 4)*384, q*1024) for q in range(16)]
    od = [Dma(WO0 + q % 5, SRD_WO, S_GO, (q//5)*32*1280, 16384 + q*1024) for q in range(10)]
    partsB = [od[0:5] + vd[0:4], od[5:10] + vd[4:8], vd[8:16]]
    def setup_B():
        a.e('v_mul_u32_u24 v%d, 384, v%d', t3, t0)
        a.e('v_lshl_add_u32 v%d, v%d, 4, v%d', VE, t1, t3)
        a.e('v_xor_b32 v%d, 64, v%d', VO, VE)
        for q in range(5):
            a.e('v_add_u32 v20, %d, v0', 64*q)
            div_const(a, 21, 20, 10, 319)
            a.e('v_mul_u32_u24 v22, 10, v21')
            a.e('v_sub_u32 v22, v20, v22')
            a.e('v_and_b32 v23, 0x13, v21')
            a.e('v_and_b32 v20, 4, v21')
            a.e('v_lshl_or_b32 v23, v20, 1, v23')
            a.e('v_and_b32 v20, 8, v21')
            a.e('v_lshrrev_b32 v20, 1, v20')
            a.e('v_or_b32 v23, v23, v20')
            a.e('v_mul_u32_u24 v23, 1280, v23')
            a.e('v_lshl_add_u32 v%d, v22, 4, v23', WO0+q)
        a.e('s_lshl_b32 s%d, s%d, 7', S_GV, S_MB)
        a.e('s_lshl_b32 s%d, s%d, 3', S_TMP, S_HG)
        a.e('s_add_u32 s%d, s%d, s%d', S_GV, S_GV, S_TMP)
        a.e('s_mul_i32 s%d, s%d, 12288', S_GV, S_GV)
        a.e('s_mul_i32 s%d, s%d, %d', S_GO, S_TMP, 192*1280)
        a.e('s_mul_i32 s%d, s%d, 160', S_TMP, S_HL)
        a.e('s_add_u32 s%d, s%d, s%d', S_GO, S_GO, S_TMP)
    for li in range(3):
        if li < 2:
            a.e('s_cmp_eq_u32 s%d, %d', S_WAVE, 4+li)
            a.e('s_cbranch_scc0 ld%d', li+1)
        PA, PB = partsA[li], partsB[li]
        q = []
        def issueA(c):
            for d in PA:
                emit_dma(a, d, (c % 3)*A_SLOT, S_TMP, gadd=(128*c if d.srd == SRD_X else 64*12288*c))
            q.append((('A', c), len(PA)))
        def issueB(t):
            hq, th = t // 3, t % 3
            for d in PB:
                emit_dma(a, d, B_SEQ[t % 6]*B_SLOT, S_TMP, gadd=(hq*12288 + th*128 if d.srd == SRD_V else t*64*1280))
            q.append((('B', t), len(PB)))
        def wait_for(tag):
            idx = [i for i, (tg, n) in enumerate(q) if tg == tag]
            if not idx: return
            n = sum(c for (_, c) in q[idx[0]+1:])
            assert n <= 63
            a.e('s_waitcnt vmcnt(%d)', n)
            del q[:idx[0]+1]
        if li == 0 and cfg.DIAG:
            a.e('v_mov_b32 v30, 0')
            stamp(a, 0)
        issueA(0); issueA(1)
        setup_B()
        if li == 0: stamp(a, 1)
        bi = 2
        for t in range(11):
            if t <= 9: wait_for(('A', t))
            a.e('s_barrier')
            if li == 0: stamp(a, bi); bi += 1
            if t + 2 <= 9: issueA(t+2)
            if t == 8: issueB(0)
            if t == 9: issueB(1)
            if t == 10: issueB(2); issueB(3)
        for t in range(25):
            if t <= 23: wait_for(('B', t))
            a.e('s_barrier')
            if li == 0: stamp(a, bi); bi += 1
            if t == 0: issueB(4); issueB(5)
            elif t + 5 <= 23: issueB(t+5)
        if li == 0 and cfg.DIAG:
            a.e('s_getreg_b32 s60, hwreg(HW_REG_XCC_ID)')
            a.e('s_add_u32 s60, s60, 100')
            a.e('v_writelane_b32 v30, s60, 63')
            stamp_store(a)
        a.e('s_endpgm')
        if li < 2:
            a.label('ld%d' % (li+1))

def gen_pf(a):
    LN, XE, K0 = 2, 3, 4
    DUM = 60
    KST = 64
    t0, t1, t2, t3 = 16, 17, 18, 19
    a.e('v_lshlrev_b32 v%d, 4, v0', LN)
    a.e('v_lshrrev_b32 v%d, 3, v0', t0)
    a.e('v_mul_u32_u24 v%d, 1280, v%d', t0, t0)
    a.e('v_and_b32 v%d, 7, v0', t1)
    a.e('v_lshl_add_u32 v%d, v%d, 4, v%d', XE, t1, t0)
    for b in range(3):
        a.e('v_add_u32 v%d, %d, v0', t0, 64*b)
        div_const(a, t1, t0, 24, 191)
        a.e('v_mul_u32_u24 v%d, 24, v%d', t2, t1)
        a.e('v_sub_u32 v%d, v%d, v%d', t2, t0, t2)
        a.e('v_lshrrev_b32 v%d, 1, v%d', t3, t1)
        a.e('v_xor_b32 v%d, v%d, v%d', t3, t3, t2)
        a.e('v_lshrrev_b32 v%d, 2, v%d', t0, t1)
        a.e('v_lshlrev_b32 v%d, 3, v%d', t0, t0)
        a.e('v_and_b32 v%d, 3, v%d', t1, t1)
        a.e('v_add_u32 v%d, v%d, v%d', t0, t0, t1)
        a.e('v_mul_u32_u24 v%d, 384, v%d', t0, t0)
        a.e('v_lshl_add_u32 v%d, v%d, 4, v%d', K0+2*b, t3, t0)
        a.e('v_xor_b32 v%d, 4, v%d', t3, t3)
        a.e('v_lshl_add_u32 v%d, v%d, 4, v%d', K0+2*b+1, t3, t0)
    S_PX, S_PW, S_PK, S_PV, S_PO, S_TMP = 52, 53, 54, 55, 57, 56
    a.e('s_lshl_b32 s%d, s%d, 7', S_PX, S_MB)
    a.e('s_lshl_b32 s%d, s%d, 4', S_TMP, S_HL)
    a.e('s_add_u32 s%d, s%d, s%d', S_PX, S_PX, S_TMP)
    a.e('s_mul_i32 s%d, s%d, 1280', S_PX, S_PX)
    a.e('s_mul_i32 s%d, s%d, %d', S_PW, S_J, 2*12288)
    a.e('s_mul_i32 s%d, s%d, 3072', S_TMP, S_HG)
    a.e('s_add_u32 s%d, s%d, s%d', S_PW, S_PW, S_TMP)
    a.e('s_lshl_b32 s%d, s%d, 7', S_PK, S_MB)
    a.e('s_add_u32 s%d, s%d, s%d', S_PK, S_PK, S_H)
    a.e('s_mul_i32 s%d, s%d, 12288', S_PK, S_PK)
    a.e('s_lshl_b32 s%d, s%d, 2', S_PV, S_MB)
    a.e('s_lshr_b32 s%d, s%d, 1', S_TMP, S_HL)
    a.e('s_add_u32 s%d, s%d, s%d', S_PV, S_PV, S_TMP)
    a.e('s_lshl_b32 s%d, s%d, 5', S_PV, S_PV)
    a.e('s_lshl_b32 s%d, s%d, 3', S_TMP, S_HG)
    a.e('s_add_u32 s%d, s%d, s%d', S_PV, S_PV, S_TMP)
    a.e('s_mul_i32 s%d, s%d, 12288', S_PV, S_PV)
    a.e('s_and_b32 s%d, s%d, 1', S_TMP, S_HL)
    a.e('s_mul_i32 s%d, s%d, %d', S_TMP, S_TMP, 16*384)
    a.e('s_add_u32 s%d, s%d, s%d', S_PV, S_PV, S_TMP)
    a.e('s_mul_i32 s%d, s%d, %d', S_PO, S_HG, 8*192*1280)
    a.e('s_lshl_b32 s%d, s%d, 10', S_TMP, S_J)
    a.e('s_add_u32 s%d, s%d, s%d', S_PO, S_PO, S_TMP)
    def shareA(c):
        r = []
        for q in range(6):
            r.append((LN, SRD_WQ, S_PW, (64*c + q//3)*12288 + (q % 3)*1024, DUM, ('A', c)))
        for q in range(2):
            r.append((XE, SRD_X, S_PX, 8*q*1280 + 128*c, DUM, ('A', c)))
        return r
    kops = []
    for bb in range(4):
        for aa in range(4):
            for b in range(3):
                i = len(kops)
                kops.append((K0 + 2*b + (aa & 1), SRD_K, S_PK, bb*32*12288 + (16*(aa & 1) + 4*(aa >> 1))*384, KST+4*i, ('K', i)))
    def shareB(hq):
        r = []
        for q in range(6):
            r.append((LN, SRD_V, S_PV, hq*12288 + q*1024, DUM, ('B', hq)))
        lo = -(-15*hq // 2); hi = -(-15*(hq+1) // 2)
        for n in range(lo, hi):
            r.append((LN, SRD_WO, S_PO, n*32768, DUM, ('B', hq)))
        return r
    stream = []
    kpos = 0
    PFA0 = cfg.PF_A0
    for c in range(PFA0, 10):
        stream += shareA(c)
        nk = cfg.PF_KPER
        stream += kops[kpos:kpos+nk]; kpos = min(48, kpos+nk)
    stream += kops[kpos:]
    for hq in range(8):
        stream += shareB(hq)
    if not cfg.PF_ON:
        stream = [op for op in stream if op[5][0] == 'K']
    def pos_after(tag):
        idx = [i for i, op in enumerate(stream) if op[5] == tag]
        return (idx[-1]+1) if idx else 0
    kend = max(i for i, op in enumerate(stream) if op[5][0] == 'K') + 1
    nb = 36
    req = [0]*nb
    for t in range(11):
        r = pos_after(('A', min(t+2, 9))) if t + 2 >= PFA0 else 0
        req[t] = r
    req[9] = max(req[9], kend)
    req[10] = req[9]
    for t in range(25):
        hq = min(7, (t + 5) // 3)
        req[11+t] = max(req[10], pos_after(('B', hq))) if cfg.PF_ON else req[10]
    for i in range(1, nb): req[i] = max(req[i], req[i-1])
    issued = 0
    W = cfg.PF_W
    for i in range(nb):
        target = min(len(stream), req[i] + cfg.PF_LOOK)
        while issued < target:
            voff, srd, sb, gc, dst, tag = stream[issued]
            a.e('s_add_u32 s%d, s%d, 0x%x', S_TMP, sb, gc)
            if issued >= W:
                a.e('s_waitcnt vmcnt(%d)', W-1)
            if not cfg.NOLOAD or tag[0] == 'K':
                a.e('buffer_load_dwordx4 v[%d:%d], v%d, s[%d:%d], s%d offen%s', dst, dst+3, voff, srd, srd+3, S_TMP, ' nt' if cfg.NT_PF else '')
            issued += 1
        n = issued - req[i]
        a.e('s_waitcnt vmcnt(%d)', min(n, 63))
        a.e('s_barrier')
        if i == 9:
            a.e('v_add_u32 v%d, 0x%x, v%d', t0, K_BASE, LN)
            for q in range(48):
                a.e('ds_write_b128 v%d, v[%d:%d] offset:%d', t0, KST+4*q, KST+4*q+3, q*1024)
            a.e('s_waitcnt lgkmcnt(0)')
    a.e('s_endpgm')

def main(outpath):
    a = Asm()
    hdr = HEADER + '; @launch grid=(256,1,1) block=(512,1,1) lds=%d\n' % LDS_TOTAL
    a.raw(hdr + '.amdgcn_target "amdgcn-amd-amdhsa--gfx950"\n.text')
    kernel_begin(a, KNAME)
    prologue(a, 'kend')
    a.e('s_cmp_ge_u32 s%d, 4', S_WAVE)
    a.e('s_cbranch_scc1 noncompute')
    gen_compute(a)
    a.label('noncompute')
    a.e('s_cmp_eq_u32 s%d, 7', S_WAVE)
    a.e('s_cbranch_scc1 pfwave')
    gen_loaders(a)
    a.label('pfwave')
    gen_pf(a)
    a.label('kend')
    a.e('s_endpgm')
    a.raw('.section .rodata,"a"\n.p2align 6')
    a.raw(kernel_desc(KNAME, 256))
    open(outpath, 'w').write(a.text())

cfg.PF_A0 = 2
cfg.PF_KPER = 6
cfg.PF_LOOK = 16
if __name__ == '__main__':
    for k, v in os.environ.items():
        if k.startswith('CFG_'):
            name = k[4:]
            cur = getattr(cfg, name)
            setattr(cfg, name, (v not in ('0', 'False', '')) if isinstance(cur, bool) else int(v))
    main(sys.argv[1])
```

```python
import sys, os, math, struct
from asmlib import *

NAME = 'concat_heads__gqa_block_cached__mha_block_cached__near_ridge'
KNAME = NAME + '_kernel'
WS_P = 0
WS_PART = 4 << 20
WS_DIAG = 24 << 20
WS_SIZE = 32 << 20

class Cfg:
    DIAG = False
    NT = False
    NT_PF = True
    NT_K = True
    PF_W = 20
    PF_ON = True
    PF_GATE = True
    NOLOAD = False
    NB_PRE = 2
    PF_LAG = 0
cfg = Cfg()

S_BETA, S_HG, S_MB, S_HL = 4, 5, 6, 7
SRD_X, SRD_WQ, SRD_K, SRD_V, SRD_WO, SRD_WS, SRD_OUT, SRD_DBG = 8, 12, 16, 20, 24, 28, 32, 36
S_WAVE = 3
S_H = 46
S_J = 41
S_XCD = 40

LDS_TOTAL = 163840
FLAG_BASE = LDS_TOTAL - 128
K_BASE = FLAG_BASE - 49152
A_SLOT = 40960
B_SLOT = 26624
F_FULL = FLAG_BASE
F_FREE = FLAG_BASE + 16
F_KF = FLAG_BASE + 32

def build_tables():
    seq = [('A', c) for c in range(10)]
    nb = 3*cfg.NB_PRE
    seq += [('B', t) for t in range(nb)]
    seq += [('K', 0)]
    seq += [('B', t) for t in range(nb, 24)]
    ci = {x: i for i, x in enumerate(seq)}
    addr = {}
    for c in range(10):
        addr[('A', c)] = ((c + 1) % 3) * A_SLOT
    addr[('K', 0)] = K_BASE
    bslots = [81920, 0, 26624, 53248, 108544, 135168]
    def overlaps(a0, a1, b0, b1): return a0 < b1 and b0 < a1
    size = {'A': A_SLOT, 'B': B_SLOT, 'K': 49152}
    freereq = {}
    placed = []
    for it in seq:
        if it[0] == 'B':
            t = it[1]
            best = None
            for s in bslots:
                r = 0
                ok = True
                for (p, pa) in placed:
                    if overlaps(s, s+B_SLOT, pa, pa+size[p[0]]):
                        r = max(r, ci[p] + 1)
                if ci[('K', 0)] > ci[it] and overlaps(s, s+B_SLOT, K_BASE, K_BASE+49152): ok = False
                if ok and (best is None or r < best[0]): best = (r, s)
            addr[it] = best[1]; freereq[it] = best[0]
        else:
            r = 0
            for (p, pa) in placed:
                if overlaps(addr[it], addr[it]+size[it[0]], pa, pa+size[p[0]]):
                    r = max(r, ci[p] + 1)
            freereq[it] = r
        placed.append((it, addr[it]))
    return seq, ci, addr, freereq

def load_order():
    return [('A', c) for c in range(10)] + [('B', t) for t in range(3)] + [('K', 0)] + [('B', t) for t in range(3, 24)]

def stamp(a, idx, vreg=30):
    if not cfg.DIAG: return
    a.e('s_memrealtime s[60:61]')
    a.e('s_waitcnt lgkmcnt(0)')
    a.e('v_writelane_b32 v%d, s60, %d', vreg, idx)

def stamp_store(a, vreg=30, vtmp=31, region=0):
    if not cfg.DIAG: return
    a.e('v_lshlrev_b32 v%d, 2, v0', vtmp)
    a.e('s_lshl_b32 s60, s2, 8')
    a.e('s_add_u32 s60, s60, 0x%x', WS_DIAG + region*65536)
    a.e('buffer_store_dword v%d, v%d, s[%d:%d], s60 offen', vreg, vtmp, SRD_WS, SRD_WS+3)

def prologue(a, endlabel):
    a.e('s_cmp_ge_u32 s2, 256')
    a.e('s_cbranch_scc1 %s', endlabel)
    a.e('s_and_b32 s%d, s2, 7', S_XCD)
    a.e('s_lshr_b32 s%d, s2, 3', S_J)
    a.e('s_lshr_b32 s%d, s%d, 2', S_BETA, S_XCD)
    a.e('s_and_b32 s%d, s%d, 3', S_HG, S_XCD)
    a.e('s_and_b32 s%d, s%d, 3', S_MB, S_J)
    a.e('s_lshr_b32 s%d, s%d, 2', S_HL, S_J)
    a.e('s_mul_i32 s42, s%d, 40', S_BETA)
    a.e('s_add_u32 s44, s0, s42')
    a.e('s_addc_u32 s45, s1, 0')
    a.e('s_load_dwordx2 s[%d:%d], s[44:45], 0', SRD_X, SRD_X+1)
    a.e('s_load_dwordx2 s[%d:%d], s[44:45], 24', SRD_WQ, SRD_WQ+1)
    a.e('s_load_dwordx2 s[%d:%d], s[44:45], 8', SRD_K, SRD_K+1)
    a.e('s_load_dwordx2 s[%d:%d], s[44:45], 16', SRD_V, SRD_V+1)
    a.e('s_load_dwordx2 s[%d:%d], s[44:45], 32', SRD_WO, SRD_WO+1)
    a.e('s_load_dwordx2 s[%d:%d], s[0:1], 80', SRD_OUT, SRD_OUT+1)
    a.e('s_load_dwordx2 s[%d:%d], s[0:1], 88', SRD_DBG, SRD_DBG+1)
    a.e('s_load_dwordx2 s[%d:%d], s[0:1], 96', SRD_WS, SRD_WS+1)
    a.e('v_lshrrev_b32 v1, 6, v0')
    a.e('v_and_b32 v0, 63, v0')
    for srd, sz in ((SRD_X, 655360), (SRD_WQ, 7864320), (SRD_K, 6291456), (SRD_V, 6291456), (SRD_WO, 7864320),
                    (SRD_WS, WS_SIZE), (SRD_OUT, 1310720), (SRD_DBG, 256)):
        a.e('s_mov_b32 s%d, 0x%x', srd+2, sz)
        a.e('s_mov_b32 s%d, 0x20000', srd+3)
    a.e('v_readfirstlane_b32 s%d, v1', S_WAVE)
    a.e('s_lshl_b32 s%d, s%d, 3', S_H, S_HG)
    a.e('s_add_u32 s%d, s%d, s%d', S_H, S_H, S_HL)
    a.e('s_waitcnt lgkmcnt(0)')

def div_const(a, vd, vs, d, maxv):
    M = -(-65536 // d)
    for x in range(maxv+1):
        assert (x*M) >> 16 == x // d, (x, d)
    a.e('v_mul_u32_u24 v%d, 0x%x, v%d', vd, M, vs)
    a.e('v_lshrrev_b32 v%d, 16, v%d', vd, vd)

class LdsTrack:
    def __init__(self, a):
        self.a = a; self.q = []
    def read(self, text, lo, n):
        self.a.e(text); self.q.append((lo, lo+n-1))
    def other(self, text):
        self.a.e(text); self.q.append((-1, -1))
    def need(self, *ranges):
        last = -1
        for i, (lo, hi) in enumerate(self.q):
            for (l, n) in ranges:
                if not (hi < l or lo > l+n-1): last = i
        if last >= 0:
            k = len(self.q) - 1 - last
            if k > 15: k = 15;
            self.a.e('s_waitcnt lgkmcnt(%d)', k)
            self.q = self.q[len(self.q)-k:] if k else []
    def drain(self):
        if self.q:
            self.a.e('s_waitcnt lgkmcnt(0)'); self.q = []

class Dma:
    def __init__(self, voff, srd, gbase_s, gconst, lconst):
        self.voff, self.srd, self.gbase_s, self.gconst, self.lconst = voff, srd, gbase_s, gconst, lconst

def emit_dma(a, d, lds_base, s_tmp, gadd=0):
    if cfg.NOLOAD: return
    a.e('s_mov_b32 m0, 0x%x', lds_base + d.lconst)
    a.e('s_add_u32 s%d, s%d, 0x%x', s_tmp, d.gbase_s, d.gconst + gadd)
    a.e('buffer_load_dwordx4 v%d, s[%d:%d], s%d offen%s lds', d.voff, d.srd, d.srd+3, s_tmp, ' nt' if cfg.NT else '')

def spin_flags(a, addr, nwords, need, vz, vt, stmp, sleep=1, label='sp'):
    lab = a.newlabel(label)
    a.label(lab)
    off = addr - FLAG_BASE
    if nwords == 1:
        a.e('ds_read_b32 v%d, v%d offset:%d', vt, vz, off)
        a.e('s_waitcnt lgkmcnt(0)')
    else:
        a.e('ds_read_b128 v[%d:%d], v%d offset:%d', vt, vt+3, vz, off)
        a.e('s_waitcnt lgkmcnt(0)')
        a.e('v_min3_u32 v%d, v%d, v%d, v%d', vt, vt, vt+1, vt+2)
        if nwords == 4: a.e('v_min_u32 v%d, v%d, v%d', vt, vt, vt+3)
    a.e('s_nop 0')
    a.e('v_readfirstlane_b32 s%d, v%d', stmp, vt)
    a.e('s_add_u32 s63, s63, 1')
    a.e('s_cmp_gt_u32 s63, 0x%x', 200000)
    a.e('s_cbranch_scc1 %s_ok', lab)
    a.e('s_cmp_ge_u32 s%d, %d', stmp, need)
    a.e('s_cbranch_scc1 %s_ok', lab)
    if sleep: a.e('s_sleep %d', sleep)
    a.e('s_branch %s', lab)
    a.label(lab + '_ok')

def gen_compute(a, T):
    seq, ci, addr, freereq = T
    XREL, XCUR, WRE, WRO, WCE, WCO = 2, 6, 10, 11, 12, 13
    VZ, VCNT, VFL = 14, 15, 252
    ACC, AF0, AF1, BF0, BF1, QB, SACC, TMP = 16, 112, 136, 160, 164, 168, 216, 208
    t0, t1, t2, t3 = TMP, TMP+1, TMP+2, TMP+3
    VW, OA, VF0, VF1 = 16, 56, 96, 104
    WF1, VWBa, VWBb, VWBc, WF0 = 112, 132, 168, 188, 232
    PF = [216, 224, 160, 152]
    VREL, VCUR, WREL, WCUR, PV = 2, 4, 6, 7, 8
    KADR = [9, 10, 11, 12]
    KF = [OA + 4*i for i in range(10)] + [152, 156]
    S_NONCE = 62
    L = LdsTrack(a)
    a.e('s_mov_b32 s63, 0')
    a.e('v_mov_b32 v%d, 0x%x', VZ, FLAG_BASE)
    a.e('v_mov_b32 v%d, 0', VCNT)
    a.e('s_lshl_b32 s58, s%d, 2', S_WAVE)
    a.e('s_add_u32 s58, s58, 0x%x', F_FREE)
    a.e('v_mov_b32 v1, s58')
    a.e('v_and_b32 v%d, 31, v0', t0)
    a.e('v_lshrrev_b32 v%d, 5, v0', t1)
    a.e('v_bfe_u32 v%d, v0, 1, 3', t2)
    a.e('v_xor_b32 v%d, v%d, v%d', t2, t2, t1)
    a.e('s_lshl_b32 s47, s%d, 12', S_WAVE)
    a.e('v_lshlrev_b32 v%d, 7, v%d', t3, t0)
    a.e('v_add_u32 v%d, s47, v%d', t3, t3)
    for s in range(4):
        a.e('v_xor_b32 v%d, %d, v%d', XREL+s, 2*s, t2)
        a.e('v_lshl_add_u32 v%d, v%d, 4, v%d', XREL+s, XREL+s, t3)
    a.e('v_bfe_u32 v%d, v0, 2, 2', t0)
    a.e('v_lshrrev_b32 v%d, 5, v0', t1)
    a.e('v_lshl_add_u32 v%d, v%d, 3, v%d', t0, t1, t0)
    a.e('v_mul_u32_u24 v%d, 384, v%d', t0, t0)
    a.e('v_bfe_u32 v%d, v0, 4, 1', t1)
    a.e('v_lshl_add_u32 v%d, v%d, 5, v%d', t0, t1, t0)
    a.e('v_and_b32 v%d, 1, v0', t1)
    a.e('v_lshl_add_u32 v%d, v%d, 4, v%d', t0, t1, t0)
    a.e('v_bfe_u32 v%d, v0, 1, 1', t1)
    a.e('v_lshl_add_u32 v%d, v%d, 3, v%d', t0, t1, t0)
    a.e('v_add_u32 v%d, 16384, v%d', t0, t0)
    a.e('v_bfe_u32 v%d, v0, 3, 1', t1)
    a.e('v_lshlrev_b32 v%d, 6, v%d', t1, t1)
    a.e('v_add_u32 v%d, v%d, v%d', WRE, t0, t1)
    a.e('v_sub_u32 v%d, v%d, v%d', WRO, t0, t1)
    a.e('s_barrier')
    if cfg.DIAG:
        a.e('v_mov_b32 v13, 0')

    ring = load_order()
    ridx = {it: i for i, it in enumerate(ring)}
    slow = []
    def flag_prefetch(item=('A', 0)):
        L.read('ds_read_b128 v[%d:%d], v%d' % (VFL, VFL+3, VZ), VFL, 4)
    def flag_check(item):
        L.need((VFL, 4))
        lab = a.newlabel('fl')
        a.e('v_min3_u32 v%d, v%d, v%d, v%d', VFL, VFL, VFL+1, VFL+2)
        a.e('v_min_u32 v%d, v%d, v%d', VFL, VFL, VFL+3)
        a.e('s_nop 0')
        a.e('v_readfirstlane_b32 s59, v%d', VFL)
        need = ridx[item] + 1
        a.e('s_nop 0')
        a.e('s_cmp_ge_u32 s59, %d', need)
        a.e('s_cbranch_scc0 %s_slow', lab)
        a.label(lab)
        slow.append((lab, item, need))
    def signal_free(item):
        a.e('v_mov_b32 v%d, %d', VCNT, ci[item] + 1)
        a.e('s_mov_b64 exec, 1')
        L.other('ds_write_b32 v1, v%d' % VCNT)
        a.e('s_mov_b64 exec, -1')

    def a_addr(c):
        sb = addr[('A', c)]
        for s in range(4):
            a.e('v_add_u32 v%d, 0x%x, v%d', XCUR+s, sb, XREL+s)
        a.e('v_add_u32 v%d, 0x%x, v%d', WCE, sb, WRE)
        a.e('v_add_u32 v%d, 0x%x, v%d', WCO, sb, WRO)
    def a_reads(s, af, bf):
        r = [('ds_read_b128 v[%d:%d], v%d' % (bf, bf+3, XCUR+s), bf, 4)]
        for t in range(6):
            for u in range(2):
                off = (16*s + 4*u)*384 + 64*t
                d = af+4*t+2*u
                r.append(('ds_read_b64_tr_b16 v[%d:%d], v%d offset:%d' % (d, d+1, WCE if t % 2 == 0 else WCO, off), d, 2))
        return r
    def a_step(af, bf, nreads, per, first=False, hooks=None):
        idx = 0
        for t in range(6):
            L.need((af+4*t, 4), (bf, 4))
            c = '0' if first else 'v[%d:%d]' % (ACC+16*t, ACC+16*t+15)
            a.e('v_mfma_f32_32x32x16_bf16 v[%d:%d], v[%d:%d], v[%d:%d], %s', ACC+16*t, ACC+16*t+15, af+4*t, af+4*t+3, bf, bf+3, c)
            if hooks and t in hooks:
                r = hooks[t]()
                if r is not None: nreads = r
            for _ in range(per[t]):
                if idx < len(nreads):
                    L.read(*nreads[idx]); idx += 1
        assert idx == len(nreads), (idx, len(nreads))

    flag_prefetch(); flag_check(('A', 0))
    a_addr(0)
    for r in a_reads(0, AF0, BF0):
        L.read(*r)
    for c in range(10):
        a_step(AF0, BF0, a_reads(1, AF1, BF1), [3,2,2,2,2,2], first=(c == 0))
        hk = None
        if c == 4:
            def nl():
                a.e('v_mov_b32 v%d, 0', t0)
                a.e('buffer_load_dword v%d, v%d, s[%d:%d], 0 offen sc1', t1, t0, SRD_DBG, SRD_DBG+3)
            hk = {0: nl}
        a_step(AF1, BF1, a_reads(2, AF0, BF0), [3,2,2,2,2,2], hooks=hk)
        a_step(AF0, BF0, a_reads(3, AF1, BF1), [4,3,3,3,0,0], hooks={4: (flag_prefetch if c < 9 else (lambda: None))})
        def mid(c=c):
            if c < 9:
                flag_check(('A', c+1))
                signal_free(('A', c))
                a_addr(c+1)
                return a_reads(0, AF0, BF0)
            L.drain()
            signal_free(('A', c))
            return []
        a_step(AF1, BF1, [], [0,4,3,3,3,0] if c < 9 else [0]*6, hooks={1: mid})
    lab = a.newlabel('nonce')
    a.e('s_waitcnt vmcnt(0)')
    a.e('s_nop 0')
    a.e('v_readfirstlane_b32 s%d, v%d', S_NONCE, t1)
    a.e('s_nop 0')
    a.e('s_cmp_lg_u32 s%d, 0', S_NONCE)
    a.e('s_cbranch_scc1 %s_ok', lab)
    a.label(lab)
    a.e('buffer_load_dword v%d, v%d, s[%d:%d], 0 offen sc1', t1, t0, SRD_DBG, SRD_DBG+3)
    a.e('s_waitcnt vmcnt(0)')
    a.e('v_readfirstlane_b32 s%d, v%d', S_NONCE, t1)
    a.e('s_add_u32 s63, s63, 64')
    a.e('s_cmp_gt_u32 s63, 200000')
    a.e('s_cbranch_scc1 %s_ok', lab)
    a.e('s_cmp_lg_u32 s%d, 0', S_NONCE)
    a.e('s_cbranch_scc0 %s', lab)
    a.label(lab + '_ok')
    a.e('v_and_b32 v%d, 31, v0', t0)
    a.e('v_lshrrev_b32 v%d, 5, v0', t1)
    a.e('v_bfe_u32 v%d, v0, 1, 3', t2)
    a.e('v_xor_b32 v%d, v%d, v%d', t2, t2, t1)
    a.e('s_mul_i32 s47, s%d, 12288', S_WAVE)
    a.e('s_add_u32 s47, s47, 0x%x', K_BASE)
    a.e('v_mul_u32_u24 v%d, 384, v%d', t3, t0)
    a.e('v_add_u32 v%d, s47, v%d', t3, t3)
    for s in range(4):
        a.e('v_xor_b32 v%d, %d, v%d', KADR[s], 2*s, t2)
        a.e('v_lshl_add_u32 v%d, v%d, 4, v%d', KADR[s], KADR[s], t3)
    a.e('v_and_b32 v%d, 15, v0', t0)
    a.e('v_lshrrev_b32 v%d, 4, v0', t1)
    a.e('v_bfe_u32 v%d, v0, 1, 3', t2)
    a.e('v_xor_b32 v%d, v%d, v%d', t2, t2, t1)
    a.e('s_lshl_b32 s49, s%d, 12', S_WAVE)
    a.e('v_lshlrev_b32 v%d, 7, v%d', t3, t0)
    a.e('v_add_u32 v%d, s49, v%d', t3, t3)
    a.e('v_lshl_add_u32 v%d, v%d, 4, v%d', VREL, t2, t3)
    a.e('v_xor_b32 v%d, 64, v%d', VREL+1, VREL)
    a.e('v_lshrrev_b32 v%d, 5, v0', t0)
    a.e('v_lshlrev_b32 v%d, 4, v%d', t0, t0)
    a.e('v_bfe_u32 v%d, v0, 4, 1', t1)
    a.e('v_lshl_add_u32 v%d, v%d, 2, v%d', t0, t1, t0)
    a.e('v_bfe_u32 v%d, v0, 2, 2', t1)
    a.e('v_add_u32 v%d, v%d, v%d', t0, t0, t1)
    a.e('v_mul_u32_u24 v%d, 160, v%d', t0, t0)
    a.e('v_and_b32 v%d, 3, v0', t1)
    a.e('v_lshl_add_u32 v%d, v%d, 3, v%d', t0, t1, t0)
    a.e('v_add_u32 v%d, 16384, v%d', WREL, t0)
    a.e('v_lshlrev_b32 v%d, 4, v0', PV)
    a.e('v_bfe_u32 v%d, v0, 4, 1', t0)
    a.e('v_lshlrev_b32 v%d, 10, v%d', t0, t0)
    a.e('v_and_b32 v%d, 15, v0', t1)
    a.e('v_lshl_add_u32 v%d, v%d, 4, v%d', t0, t1, t0)
    a.e('v_lshrrev_b32 v%d, 5, v0', t1)
    a.e('v_lshl_add_u32 v13, v%d, 9, v%d', t1, t0)
    a.e('s_lshl_b32 s51, s%d, 4', S_BETA)
    a.e('s_lshl_b32 s47, s%d, 2', S_MB)
    a.e('s_add_u32 s51, s51, s47')
    a.e('s_add_u32 s51, s51, s%d', S_WAVE)
    a.e('s_lshl_b32 s51, s51, 5')
    a.e('s_lshl_b32 s52, s%d, 3', S_HG)
    a.e('s_add_u32 s52, s52, s51')
    a.e('s_lshl_b32 s52, s52, 11')
    a.e('s_add_u32 s52, s52, 0x%x', WS_P)
    def b_addr(t):
        sb = addr[('B', t)]
        a.e('v_add_u32 v%d, 0x%x, v%d', VCUR, sb, VREL)
        a.e('v_add_u32 v%d, 0x%x, v%d', VCUR+1, sb, VREL+1)
        a.e('v_add_u32 v%d, 0x%x, v%d', WCUR, sb, WREL)
    def b_reads(s, vf, wf):
        r = []
        for rt in range(2):
            r.append(('ds_read_b128 v[%d:%d], v%d offset:%d' % (vf+4*rt, vf+4*rt+3, VCUR+s, rt*2048), vf+4*rt, 4))
        for nt in range(5):
            for u in range(2):
                d = wf+4*nt+2*u
                r.append(('ds_read_b64_tr_b16 v[%d:%d], v%d offset:%d' % (d, d+1, WCUR, (32*s+8*u)*160 + 32*nt), d, 2))
        return r
    def k_reads():
        return [('ds_read_b128 v[%d:%d], v%d offset:%d' % (KF[sp], KF[sp]+3, KADR[sp % 4], 128*(sp//4)), KF[sp], 4) for sp in range(12)]
    def cvt_q(tiles):
        for t in tiles:
            for j in range(8):
                a.e('v_cvt_pk_bf16_f32 v%d, v%d, v%d', QB+8*t+j, ACC+16*t+2*j, ACC+16*t+2*j+1)
    def stampc(i):
        if cfg.DIAG:
            a.e('s_memrealtime s[%d:%d]', 64+2*i, 65+2*i)
            a.e('s_mov_b32 s%d, s63', 80+i)
    stampc(0)
    def s_phase(next_b):
        L.drain()
        signal_free(('K', 0))
        flag_prefetch(); flag_check(('B', next_b))
        b_addr(next_b)
        br = b_reads(0, VF0, WF0)
        for sp in range(12):
            c = '0' if sp == 0 else 'v[%d:%d]' % (SACC, SACC+15)
            a.e('v_mfma_f32_32x32x16_bf16 v[%d:%d], v[%d:%d], v[%d:%d], %s', SACC, SACC+15, KF[sp], KF[sp]+3, QB+4*sp, QB+4*sp+3, c)
            L.read(*br[sp])
        if cfg.NB_PRE == 2:
            cvt_vw(VWBb)
        for r in range(40):
            a.e('v_mov_b32 v%d, 0', OA+r)
        a.e('v_max3_f32 v%d, v%d, v%d, v%d', t0, SACC, SACC+1, SACC+2)
        for r in range(3, 15, 2):
            a.e('v_max3_f32 v%d, v%d, v%d, v%d', t0, t0, SACC+r, SACC+r+1)
        a.e('v_max_f32 v%d, v%d, v%d', t0, t0, SACC+15)
        a.e('v_mov_b32 v%d, v%d', t1, t0)
        a.e('s_nop 1')
        a.e('v_permlane32_swap_b32 v%d, v%d', t0, t1)
        a.e('v_max_f32 v%d, v%d, v%d', t0, t0, t1)
        cval = (192 ** -0.5) * math.log2(math.e)
        cb = struct.unpack('<I', struct.pack('<f', cval))[0]
        a.e('s_mov_b32 s50, 0x%x', cb)
        a.e('v_mul_f32 v%d, s50, v%d', t2, t0)
        for r in range(16):
            a.e('v_fma_f32 v%d, v%d, s50, -v%d', SACC+r, SACC+r, t2)
        for r in range(16):
            a.e('v_exp_f32 v%d, v%d', SACC+r, SACC+r)
        a.e('s_nop 0')
        a.e('v_add_f32 v%d, v%d, v%d', t0, SACC, SACC+1)
        a.e('v_add_f32 v%d, v%d, v%d', t1, SACC+2, SACC+3)
        for r in range(4, 16, 2):
            a.e('v_add_f32 v%d, v%d, v%d', t0, t0, SACC+r)
            a.e('v_add_f32 v%d, v%d, v%d', t1, t1, SACC+r+1)
        a.e('v_add_f32 v%d, v%d, v%d', t0, t0, t1)
        a.e('v_mov_b32 v%d, v%d', t1, t0)
        a.e('s_nop 1')
        a.e('v_permlane32_swap_b32 v%d, v%d', t0, t1)
        a.e('v_add_f32 v%d, v%d, v%d', t0, t0, t1)
        a.e('v_rcp_f32 v%d, v%d', t0, t0)
        a.e('s_nop 0')
        for r in range(16):
            a.e('v_mul_f32 v%d, v%d, v%d', SACC+r, SACC+r, t0)
        for j in range(8):
            a.e('v_cvt_pk_bf16_f32 v%d, v%d, v%d', SACC+j, SACC+2*j, SACC+2*j+1)
        a.e('s_add_u32 s47, s51, s%d', S_H)
        a.e('s_lshl_b32 s47, s47, 11')
        a.e('s_add_u32 s47, s47, 0x%x', WS_P)
        a.e('buffer_store_dwordx4 v[%d:%d], v13, s[%d:%d], s47 offen sc1', SACC, SACC+3, SRD_WS, SRD_WS+3)
        a.e('buffer_store_dwordx4 v[%d:%d], v13, s[%d:%d], s47 offen offset:256 sc1', SACC+4, SACC+7, SRD_WS, SRD_WS+3)
        stampc(1)
    def cvt_vw(dst):
        for nt in range(5):
            d0 = VW + 4*nt; d1 = VW + 4*(5+nt)
            o = d0 if dst is None else dst+4*nt
            a.e('v_cvt_pk_bf16_f32 v%d, v%d, v%d', o+0, d0, d0+1)
            a.e('v_cvt_pk_bf16_f32 v%d, v%d, v%d', o+1, d0+2, d0+3)
            a.e('v_cvt_pk_bf16_f32 v%d, v%d, v%d', o+2, d1, d1+1)
            a.e('v_cvt_pk_bf16_f32 v%d, v%d, v%d', o+3, d1+2, d1+3)
    def g2(src, p):
        for nt in range(5):
            s = VW+4*nt if src is None else src+4*nt
            for qt in range(2):
                d = OA + 4*(2*nt+qt)
                a.e('v_mfma_f32_16x16x32_bf16 v[%d:%d], v[%d:%d], v[%d:%d], v[%d:%d]', d, d+3, s, s+3, p+4*qt, p+4*qt+3, d, d+3)
    def p_loads(h0):
        for i in range(4):
            a.e('s_add_u32 s47, s52, %d', (h0+i)*2048)
            for qt in range(2):
                a.e('buffer_load_dwordx4 v[%d:%d], v%d, s[%d:%d], s47 offen offset:%d sc1', PF[i]+4*qt, PF[i]+4*qt+3, PV, SRD_WS, SRD_WS+3, qt*1024)
    WS_PFLAG = 3 << 20
    def publish_p():
        a.e('s_waitcnt vmcnt(0)')
        a.e('s_lshl_b32 s47, s2, 2')
        a.e('s_add_u32 s47, s47, s%d', S_WAVE)
        a.e('s_lshl_b32 s47, s47, 6')
        a.e('s_add_u32 s47, s47, 0x%x', WS_PFLAG)
        a.e('v_mov_b32 v%d, 0', t0)
        a.e('v_mov_b32 v%d, s%d', t1, S_NONCE)
        a.e('s_mov_b64 exec, 1')
        a.e('buffer_store_dword v%d, v%d, s[%d:%d], s47 offen sc1', t1, t0, SRD_WS, SRD_WS+3)
        a.e('s_mov_b64 exec, -1')
    def poll_p():
        lab = a.newlabel('pollp')
        a.e('v_and_b32 v%d, 7, v0', t0)
        a.e('v_lshlrev_b32 v%d, 5, v%d', t0, t0)
        a.e('s_lshl_b32 s47, s%d, 3', S_MB)
        a.e('s_add_u32 s47, s47, s%d', S_XCD)
        a.e('v_add_u32 v%d, s47, v%d', t0, t0)
        a.e('v_lshlrev_b32 v%d, 8, v%d', t0, t0)
        a.e('s_lshl_b32 s47, s%d, 6', S_WAVE)
        a.e('s_add_u32 s47, s47, 0x%x', WS_PFLAG)
        a.label(lab)
        a.e('buffer_load_dword v%d, v%d, s[%d:%d], s47 offen sc1', t2, t0, SRD_WS, SRD_WS+3)
        a.e('s_waitcnt vmcnt(0)')
        a.e('v_cmp_ne_u32 vcc, s%d, v%d', S_NONCE, t2)
        a.e('s_add_u32 s63, s63, 64')
        a.e('s_cmp_gt_u32 s63, 200000')
        a.e('s_cbranch_scc1 %s_done', lab)
        a.e('s_nop 2')
        a.e('s_cbranch_vccz %s_done', lab)
        a.e('s_sleep 2')
        a.e('s_branch %s', lab)
        a.label(lab + '_done')
    def b_step(vf, wf, nreads, per, first=False, hooks=None):
        idx = 0
        for j in range(10):
            nt, rt = j // 2, j % 2
            L.need((vf+4*rt, 4), (wf+4*nt, 4))
            d = VW + 4*(rt*5 + nt)
            c = '0' if first else 'v[%d:%d]' % (d, d+3)
            a.e('v_mfma_f32_16x16x32_bf16 v[%d:%d], v[%d:%d], v[%d:%d], %s', d, d+3, vf+4*rt, vf+4*rt+3, wf+4*nt, wf+4*nt+3, c)
            if hooks and j in hooks:
                r = hooks[j]()
                if r is not None: nreads = r
            for _ in range(per[j]):
                if idx < len(nreads):
                    L.read(*nreads[idx]); idx += 1
        assert idx == len(nreads), (idx, len(nreads))

    if cfg.NB_PRE == 0:
        cvt_q(range(6))
        flag_prefetch(('K', 0)); flag_check(('K', 0))
        for r in k_reads(): L.read(*r)
        s_phase(0)
    else:
        flag_prefetch(); flag_check(('B', 0))
        b_addr(0)
        cvt_q([5])
        for r in b_reads(0, VF0, WF0): L.read(*r)
        cvt_q(range(5))
    NP = cfg.NB_PRE
    for hq in range(8):
        for third in range(3):
            t = 3*hq + third
            nxt = seq[ci[('B', t)] + 1] if ci[('B', t)] + 1 < len(seq) else None
            b_step(VF0, WF0, b_reads(1, VF1, WF1), [2,2,2,2,2,2,0,0,0,0], first=(third == 0), hooks={8: (lambda nxt=nxt: flag_prefetch(nxt or ('A', 0)))})
            def mid(t=t, nxt=nxt):
                if nxt is None:
                    L.drain(); signal_free(('B', t)); return []
                flag_check(nxt)
                signal_free(('B', t))
                if nxt[0] == 'K':
                    return k_reads()
                b_addr(nxt[1])
                return b_reads(0, VF0, WF0)
            b_step(VF1, WF1, [], [0,0,3,2,2,2,2,1,0,0] if nxt is not None else [0]*10, hooks={2: mid})
            if t == 3*NP + 1:
                publish_p()
        a.e('s_nop 7')
        if NP == 2:
            if hq == 0: cvt_vw(VWBa)
            elif hq == 1: s_phase(6)
            elif hq == 2:
                cvt_vw(VWBc); poll_p(); p_loads(0)
        else:
            if hq == 0: cvt_vw(VWBa)
            elif hq == 1: cvt_vw(VWBb); poll_p(); p_loads(0)
            elif hq == 2: cvt_vw(VWBc)
        if hq == 3:
            cvt_vw(None); a.e('s_waitcnt vmcnt(0)')
            g2(VWBa, PF[0]); g2(VWBb, PF[1]); g2(VWBc, PF[2]); g2(None, PF[3])
            p_loads(4)
        elif hq == 4: cvt_vw(VWBa)
        elif hq == 5:
            cvt_vw(None); a.e('s_waitcnt vmcnt(0)')
            g2(VWBa, PF[0]); g2(None, PF[1])
        elif hq == 6:
            cvt_vw(None); a.e('s_nop 1'); g2(None, PF[2])
        elif hq == 7:
            cvt_vw(None); a.e('s_nop 1'); g2(None, PF[3])
    L.drain()
    stampc(2)
    RED = 0
    a.e('s_lshl_b32 s53, s%d, 2', S_BETA)
    a.e('s_add_u32 s53, s53, s%d', S_MB)
    a.e('s_lshl_b32 s53, s53, 3')
    a.e('s_add_u32 s53, s53, s%d', S_HL)
    a.e('s_lshl_b32 s53, s53, 2')
    SLAB = 10240
    a.e('s_nop 7')
    lab_own = a.newlabel('own'); lab_sent = a.newlabel('sent')
    Tq = 112
    a.e('s_cmp_eq_u32 s%d, s%d', S_WAVE, S_HG)
    a.e('s_cbranch_scc1 %s', lab_own)
    a.e('s_add_u32 s54, s53, s%d', S_WAVE)
    a.e('s_lshl_b32 s54, s54, 2')
    a.e('s_add_u32 s54, s54, s%d', S_HG)
    a.e('s_mul_i32 s54, s54, %d', SLAB)
    a.e('s_add_u32 s54, s54, 0x%x', WS_PART)
    for j in range(10):
        a.e('v_cvt_pk_bf16_f32 v%d, v%d, v%d', Tq+4*j, OA+4*j, OA+4*j+1)
        a.e('v_mov_b32 v%d, s%d', Tq+4*j+1, S_NONCE)
        a.e('v_cvt_pk_bf16_f32 v%d, v%d, v%d', Tq+4*j+2, OA+4*j+2, OA+4*j+3)
        a.e('v_mov_b32 v%d, s%d', Tq+4*j+3, S_NONCE)
        if j in (4, 8): a.e('s_add_u32 s54, s54, 4096')
        a.e('buffer_store_dwordx4 v[%d:%d], v%d, s[%d:%d], s54 offen offset:%d sc1', Tq+4*j, Tq+4*j+3, PV, SRD_WS, SRD_WS+3, 1024*(j % 4))
    a.e('s_branch %s', lab_sent)
    a.label(lab_own)
    spin_flags(a, F_FREE, 4, len(seq), VZ, VFL, 59)
    for j in range(10):
        a.e('ds_write_b128 v%d, v[%d:%d] offset:%d', PV, OA+4*j, OA+4*j+3, RED + 1024*j)
    a.e('s_waitcnt lgkmcnt(0)')
    a.label(lab_sent)
    a.e('s_barrier')
    stampc(3)
    a.e('s_add_u32 s54, s53, s%d', S_HG)
    a.e('s_lshl_b32 s54, s54, 2')
    for i in range(3):
        a.e('s_add_u32 s47, s%d, %d', S_HG, i+1)
        a.e('s_and_b32 s47, s47, 3')
        a.e('s_add_u32 s47, s47, s54')
        a.e('s_mul_i32 s47, s47, %d', SLAB)
        a.e('s_add_u32 s47, s47, 0x%x', WS_PART)
        a.e('s_lshl_b32 s48, s%d, 10', S_WAVE)
        a.e('s_add_u32 s%d, s47, s48', 55+i)
    Rq = 16
    Oq = 56
    a.e('v_lshlrev_b32 v%d, 10, v0', t3)
    a.e('s_lshl_b32 s48, s%d, 10', S_WAVE)
    a.e('v_add_u32 v%d, s48, v%d', t3, PV)
    def red_pass(nk):
        for k in range(nk):
            a.e('ds_read_b128 v[%d:%d], v%d offset:%d', Oq+4*k, Oq+4*k+3, t3, RED + 4096*k)
        lab = a.newlabel('pollr')
        a.label(lab)
        for k in range(nk):
            for i in range(3):
                d = Rq + (k*3+i)*4
                if k < 1:
                    a.e('buffer_load_dwordx4 v[%d:%d], v%d, s[%d:%d], s%d offen sc1', d, d+3, PV, SRD_WS, SRD_WS+3, 55+i)
                else:
                    a.e('s_add_u32 s47, s%d, %d', 55+i, 4096*k)
                    a.e('buffer_load_dwordx4 v[%d:%d], v%d, s[%d:%d], s47 offen sc1', d, d+3, PV, SRD_WS, SRD_WS+3)
        a.e('s_waitcnt vmcnt(0)')
        a.e('v_mov_b32 v%d, 0', t0)
        for k in range(nk):
            for i in range(3):
                d = Rq + (k*3+i)*4
                a.e('v_xor_b32 v%d, s%d, v%d', t1, S_NONCE, d+1)
                a.e('v_xor_b32 v%d, s%d, v%d', t2, S_NONCE, d+3)
                a.e('v_or3_b32 v%d, v%d, v%d, v%d', t0, t0, t1, t2)
        a.e('v_cmp_ne_u32 vcc, 0, v%d', t0)
        a.e('s_add_u32 s63, s63, 64')
        a.e('s_cmp_gt_u32 s63, 400000')
        a.e('s_cbranch_scc1 %s_done', lab)
        a.e('s_nop 2')
        a.e('s_cbranch_vccz %s_done', lab)
        a.e('s_sleep 1')
        a.e('s_branch %s', lab)
        a.label(lab + '_done')
        a.e('s_waitcnt lgkmcnt(0)')
        stampc(4)
        for k in range(nk):
            o = Oq + 4*k
            for i in range(3):
                d = Rq + (k*3+i)*4
                a.e('v_lshlrev_b32 v%d, 16, v%d', t1, d)
                a.e('v_and_b32 v%d, 0xffff0000, v%d', t2, d)
                a.e('v_add_f32 v%d, v%d, v%d', o, o, t1)
                a.e('v_add_f32 v%d, v%d, v%d', o+1, o+1, t2)
                a.e('v_lshlrev_b32 v%d, 16, v%d', t1, d+2)
                a.e('v_and_b32 v%d, 0xffff0000, v%d', t2, d+2)
                a.e('v_add_f32 v%d, v%d, v%d', o+2, o+2, t1)
                a.e('v_add_f32 v%d, v%d, v%d', o+3, o+3, t2)
            a.e('v_cvt_pk_bf16_f32 v%d, v%d, v%d', 72+2*k, o, o+1)
            a.e('v_cvt_pk_bf16_f32 v%d, v%d, v%d', 72+2*k+1, o+2, o+3)
        a.e('s_lshl_b32 s47, s%d, 2', S_MB)
        a.e('s_add_u32 s47, s47, s%d', S_HG)
        a.e('s_mul_i32 s47, s47, %d', 32*2560)
        a.e('s_mul_i32 s48, s%d, 1280', S_BETA)
        a.e('s_add_u32 s47, s47, s48')
        a.e('s_mul_i32 s48, s%d, 160', S_HL)
        a.e('s_add_u32 s47, s47, s48')
        a.e('s_and_b32 s48, s%d, 1', S_WAVE)
        a.e('s_mul_i32 s48, s48, %d', 16*2560)
        a.e('s_add_u32 s47, s47, s48')
        a.e('s_lshr_b32 s48, s%d, 1', S_WAVE)
        a.e('s_lshl_b32 s48, s48, 5')
        a.e('s_add_u32 s47, s47, s48')
        a.e('v_and_b32 v%d, 15, v0', t0)
        a.e('v_mul_u32_u24 v%d, 2560, v%d', t0, t0)
        a.e('v_lshrrev_b32 v%d, 4, v0', t1)
        a.e('v_lshl_add_u32 v%d, v%d, 3, v%d', t0, t1, t0)
        for k in range(nk):
            a.e('buffer_store_dwordx2 v[%d:%d], v%d, s[%d:%d], s47 offen offset:%d', 72+2*k, 72+2*k+1, t0, SRD_OUT, SRD_OUT+3, 64*k)
    lab2 = a.newlabel('two'); labe = a.newlabel('rend')
    a.e('s_cmp_ge_u32 s%d, 2', S_WAVE)
    a.e('s_cbranch_scc1 %s', lab2)
    red_pass(3)
    a.e('s_branch %s', labe)
    a.label(lab2)
    red_pass(2)
    a.label(labe)
    if cfg.DIAG:
        a.e('s_waitcnt vmcnt(0)')
        stampc(5)
        a.e('s_waitcnt lgkmcnt(0)')
        a.e('v_mov_b32 v9, 0')
        for i in range(6):
            a.e('v_writelane_b32 v9, s%d, %d', 64+2*i, i)
            a.e('v_writelane_b32 v9, s%d, %d', 80+i, 10+i)
        lab = a.newlabel('nost')
        a.e('s_cmp_lg_u32 s%d, 0', S_WAVE)
        a.e('s_cbranch_scc1 %s', lab)
        stamp_store(a, 9, 10, region=1)
        a.label(lab)
    a.e('s_endpgm')
    for (lab, item, need) in slow:
        a.label(lab + '_slow')
        spin_flags(a, F_FULL, 4, need, VZ, VFL, 59, sleep=cfg.CSLEEP)
        a.e('s_branch %s', lab)

def gen_loaders(a, T):
    seq, ci, addr, freereq = T
    order = load_order()
    XE_, XO, W0, VE, VO, WO0 = 2, 3, 4, 8, 9, 10
    LN, K0 = 14, 16
    VZ, VTA, VTF = 22, 24, 25
    VQ, VT = 36, 44
    DUM = 48
    t0, t1, t2, t3 = 32, 33, 34, 35
    S_TMP, S_FULL, S_LI, S_G = 56, 57, 58, 62
    S_GX, S_GW, S_GV, S_GO, S_GK = 52, 53, 54, 55, 64
    S_LW, S_LX, S_LO = 65, 66, 67
    S_PW, S_PK, S_PH, S_PHS, S_PX = 68, 69, 70, 71, 76
    SRD_PH = 72
    S_SLOT, S_NEED, S_CNT, S_TH = 77, 78, 79, 80
    SRD_T = 84
    nt_pf = ' nt' if cfg.NT_PF else ''
    nt_r = ' nt' if cfg.NT else ''
    a.e('s_mov_b32 s63, 0')
    a.e('s_sub_u32 s%d, s%d, 4', S_LI, S_WAVE)
    a.e('v_lshlrev_b32 v%d, 4, v0', LN)
    a.e('s_lshl_b32 s%d, s%d, 7', S_PX, S_MB)
    a.e('s_lshl_b32 s%d, s%d, 4', S_TMP, S_HL)
    a.e('s_add_u32 s%d, s%d, s%d', S_PX, S_PX, S_TMP)
    a.e('s_mul_i32 s%d, s%d, 1280', S_PX, S_PX)
    a.e('s_mul_i32 s%d, s%d, 5120', S_TMP, S_LI)
    a.e('s_add_u32 s%d, s%d, s%d', S_PX, S_PX, S_TMP)
    a.e('s_lshl_b32 s%d, s%d, 1', S_PW, S_J)
    a.e('s_lshr_b32 s%d, s%d, 1', S_TMP, S_LI)
    a.e('s_lshl_b32 s%d, s%d, 6', S_TMP, S_TMP)
    a.e('s_add_u32 s%d, s%d, s%d', S_PW, S_PW, S_TMP)
    a.e('s_and_b32 s%d, s%d, 1', S_TMP, S_LI)
    a.e('s_add_u32 s%d, s%d, s%d', S_PW, S_PW, S_TMP)
    a.e('s_mul_i32 s%d, s%d, 12288', S_PW, S_PW)
    a.e('s_mul_i32 s%d, s%d, 3072', S_TMP, S_HG)
    a.e('s_add_u32 s%d, s%d, s%d', S_PW, S_PW, S_TMP)
    def pf(srd, soff, n, off0=0):
        for i in range(n):
            if cfg.NOLOAD or not cfg.PF_ON: continue
            a.e('buffer_load_dwordx4 v[%d:%d], v%d, s[%d:%d], s%d offen offset:%d%s', DUM, DUM+3, LN, srd, srd+3, soff, off0 + 1024*i, nt_pf)
    npf = (lambda n: n) if (cfg.PF_ON and not cfg.NOLOAD) else (lambda n: 0)
    nr = (lambda n: n) if not cfg.NOLOAD else (lambda n: 0)
    pf(SRD_WQ, S_PW, 3)
    pf(SRD_X, S_PX, 4)
    a.e('s_add_u32 s%d, s%d, 4096', S_TMP, S_PX)
    pf(SRD_X, S_TMP, 1)
    a.e('s_add_u32 s%d, s%d, %d', S_PW, S_PW, 2*786432)
    pf(SRD_WQ, S_PW, 3)
    a.e('s_add_u32 s%d, s%d, %d', S_PW, S_PW, 2*786432)
    a.e('v_mov_b32 v%d, 0x%x', VZ, FLAG_BASE)
    lab = a.newlabel('init')
    a.e('s_cmp_lg_u32 s%d, 3', S_LI)
    a.e('s_cbranch_scc1 %s', lab)
    a.e('v_lshlrev_b32 v%d, 2, v0', t0)
    a.e('v_and_b32 v%d, 127, v%d', t0, t0)
    a.e('v_add_u32 v%d, v%d, v%d', t0, t0, VZ)
    a.e('v_mov_b32 v%d, 0', t1)
    a.e('ds_write_b32 v%d, v%d', t0, t1)
    a.e('s_cmp_lg_u32 s2, 0')
    a.e('s_cbranch_scc1 %s', lab)
    a.e('s_memrealtime s[60:61]')
    a.e('s_waitcnt lgkmcnt(0)')
    a.e('s_or_b32 s60, s60, 1')
    a.e('v_mov_b32 v%d, s60', t1)
    a.e('v_mov_b32 v%d, 0', t0)
    a.e('s_mov_b64 exec, 1')
    a.e('buffer_store_dword v%d, v%d, s[%d:%d], 0 offen sc1', t1, t0, SRD_DBG, SRD_DBG+3)
    a.e('s_mov_b64 exec, -1')
    a.label(lab)
    a.e('s_waitcnt lgkmcnt(0)')
    a.e('s_barrier')
    a.e('v_lshrrev_b32 v%d, 3, v0', t0)
    a.e('v_and_b32 v%d, 7, v0', t1)
    a.e('v_lshrrev_b32 v%d, 4, v0', t2)
    a.e('v_xor_b32 v%d, v%d, v%d', t1, t1, t2)
    a.e('v_mul_u32_u24 v%d, 1280, v%d', t3, t0)
    a.e('v_lshl_add_u32 v%d, v%d, 4, v%d', XE_, t1, t3)
    a.e('v_xor_b32 v%d, 64, v%d', XO, XE_)
    for b in range(3):
        a.e('v_add_u32 v%d, %d, v0', t0, 64*b)
        div_const(a, t1, t0, 24, 191)
        a.e('v_mul_u32_u24 v%d, 24, v%d', t2, t1)
        a.e('v_sub_u32 v%d, v%d, v%d', t2, t0, t2)
        a.e('v_bfe_u32 v%d, v%d, 1, 1', t3, t1)
        a.e('v_lshlrev_b32 v%d, 2, v%d', t3, t3)
        a.e('v_xor_b32 v%d, v%d, v%d', t3, t3, t2)
        a.e('v_lshlrev_b32 v%d, 4, v%d', t3, t3)
        a.e('v_mul_u32_u24 v%d, 0x3000, v%d', W0+b, t1)
        a.e('v_add_u32 v%d, v%d, v%d', W0+b, W0+b, t3)
    a.e('s_lshl_b32 s%d, s%d, 7', S_GX, S_MB)
    a.e('s_lshl_b32 s%d, s%d, 5', S_TMP, S_LI)
    a.e('s_add_u32 s%d, s%d, s%d', S_GX, S_GX, S_TMP)
    a.e('s_mul_i32 s%d, s%d, 1280', S_GX, S_GX)
    a.e('s_mul_i32 s%d, s%d, 384', S_GW, S_H)
    a.e('s_mul_i32 s%d, s%d, %d', S_TMP, S_LI, 16*12288)
    a.e('s_add_u32 s%d, s%d, s%d', S_GW, S_GW, S_TMP)
    a.e('s_mul_i32 s%d, s%d, 6144', S_LW, S_LI)
    a.e('s_add_u32 s%d, s%d, 16384', S_LW, S_LW)
    a.e('s_lshl_b32 s%d, s%d, 12', S_LX, S_LI)
    a.e('v_mov_b32 v%d, 0', VTA)
    a.e('v_mov_b32 v%d, 0', VTF)
    for g, it in enumerate(order):
        a.e('s_mov_b32 s%d, 0x%x', S_TMP, addr[it])
        a.e('v_writelane_b32 v%d, s%d, %d', VTA, S_TMP, g)
        if freereq[it]:
            a.e('s_mov_b32 s%d, %d', S_TMP, freereq[it])
            a.e('v_writelane_b32 v%d, s%d, %d', VTF, S_TMP, g)
    a.e('s_lshl_b32 s%d, s%d, 2', S_TMP, S_LI)
    a.e('s_add_u32 s%d, s%d, 0x%x', S_TMP, S_TMP, F_FULL)
    a.e('s_mov_b32 s%d, s%d', S_FULL, S_TMP)
    a.e('v_mov_b32 v%d, 0', VT+1)
    a.e('s_getpc_b64 s[%d:%d]', SRD_T, SRD_T+1)
    a.label('pc_here')
    a.e('s_add_u32 s%d, s%d, seqtab-pc_here', SRD_T, SRD_T)
    a.e('s_addc_u32 s%d, s%d, 0', SRD_T+1, SRD_T+1)
    a.e('s_mov_b32 s%d, 256', SRD_T+2)
    a.e('s_mov_b32 s%d, 0x20000', SRD_T+3)
    a.e('s_mov_b32 s%d, 0', S_G)
    a.e('s_lshl_b32 s%d, s%d, 2', S_GK, S_MB)
    a.e('s_add_u32 s%d, s%d, s%d', S_GK, S_GK, S_LI)
    a.e('s_lshl_b32 s%d, s%d, 5', S_GK, S_GK)
    a.e('s_add_u32 s%d, s%d, s%d', S_GK, S_GK, S_H)
    a.e('s_mul_i32 s%d, s%d, 12288', S_GK, S_GK)
    a.e('s_mov_b32 s%d, s%d', S_PK, S_GK)
    if cfg.DIAG:
        a.e('v_mov_b32 v30, 0')
        lab = a.newlabel('dg')
        stamp(a, 0)
        a.e('s_memtime s[60:61]')
        a.e('s_waitcnt lgkmcnt(0)')
        a.e('v_writelane_b32 v30, s60, 50')
    def stampg():
        if cfg.DIAG:
            a.e('s_memrealtime s[60:61]')
            a.e('s_add_u32 m0, s%d, 1', S_G)
            a.e('s_waitcnt lgkmcnt(0)')
            a.e('v_writelane_b32 v30, s60, m0')
    def write_full():
        a.e('v_mov_b32 v%d, s%d', VT+1, S_FULL)
        a.e('s_mov_b64 exec, 1')
        a.e('ds_write_b32 v%d, v%d', VT, VT+1)
        a.e('s_mov_b64 exec, -1')
    def gate(closed_vm):
        lab = a.newlabel('gate')
        a.e('v_readlane_b32 s%d, v%d, s%d', S_SLOT, VTA, S_G)
        a.e('v_readlane_b32 s%d, v%d, s%d', S_NEED, VTF, S_G)
        a.label(lab)
        a.e('ds_read_b128 v[%d:%d], v%d offset:16', VQ, VQ+3, VZ)
        a.e('s_waitcnt lgkmcnt(0)')
        a.e('v_min3_u32 v%d, v%d, v%d, v%d', VQ, VQ, VQ+1, VQ+2)
        a.e('v_min_u32 v%d, v%d, v%d', VQ, VQ, VQ+3)
        a.e('s_nop 0')
        a.e('v_readfirstlane_b32 s59, v%d', VQ)
        a.e('s_add_u32 s63, s63, 1')
        a.e('s_cmp_ge_u32 s59, s%d', S_NEED)
        a.e('s_cbranch_scc1 %s_ok', lab)
        a.e('s_cmp_gt_u32 s63, 200000')
        a.e('s_cbranch_scc0 %s', lab)
        a.label(lab + '_ok')
        a.e('s_waitcnt vmcnt(%d)', cfg.VMCAP)
    def after(keep, nvm):
        a.e('s_lshl_b32 s%d, s%d, 2', S_TMP, S_G)
        a.e('s_mov_b32 m0, s%d', S_FULL)
        a.e('s_mov_b64 exec, 1')
        a.e('buffer_load_dword v%d, s[%d:%d], s%d offen lds', VT+1, SRD_T, SRD_T+3, S_TMP)
        a.e('s_mov_b64 exec, -1')
        stampg()
        a.e('s_add_u32 s%d, s%d, 1', S_G, S_G)
    def dma(voff, srd, soff_s, gconst, lbase_s, lconst, half=False):
        if cfg.NOLOAD: return
        a.e('s_add_u32 m0, s%d, 0x%x', lbase_s, lconst)
        a.e('s_add_u32 s%d, s%d, 0x%x', S_TMP, soff_s, gconst)
        if half: a.e('s_mov_b32 exec_hi, 0')
        a.e('buffer_load_dwordx4 v%d, s[%d:%d], s%d offen%s lds', voff, srd, srd+3, S_TMP, nt_r)
        if half: a.e('s_mov_b32 exec_hi, -1')
    S_B1, S_B2 = 81, 82
    def ringA():
        a.e('s_add_u32 s%d, s%d, s%d', S_B1, S_SLOT, S_LW)
        a.e('s_add_u32 s%d, s%d, s%d', S_B2, S_SLOT, S_LX)
        for i in range(6):
            dma(W0 + i % 3, SRD_WQ, S_GW, (i//3)*8*12288, S_B1, i*1024)
        for i in range(4):
            dma(XE_ if i % 2 == 0 else XO, SRD_X, S_GX, i*8*1280, S_B2, i*1024)
        if not cfg.SAMEADDR:
            a.e('s_add_u32 s%d, s%d, %d', S_GW, S_GW, 786432)
            a.e('s_add_u32 s%d, s%d, 128', S_GX, S_GX)
    def a_pair(pfn, npfc):
        pfn()
        gate(npf(npfc)); ringA(); after(1, npf(npfc) + nr(10))
        gate(0); ringA(); after(1, nr(10))
    a.e('s_mov_b32 s%d, 0', S_CNT)
    a.label('ldA1')
    def pfa1():
        pf(SRD_WQ, S_PW, 3)
        a.e('s_add_u32 s%d, s%d, %d', S_PW, S_PW, 2*786432)
        pf(SRD_K, S_PK, 3)
        a.e('s_add_u32 s%d, s%d, 3072', S_PK, S_PK)
    a_pair(pfa1, 6)
    a.e('s_add_u32 s%d, s%d, 1', S_CNT, S_CNT)
    a.e('s_cmp_lt_u32 s%d, 3', S_CNT)
    a.e('s_cbranch_scc1 ldA1')
    a.e('v_lshrrev_b32 v%d, 3, v0', t0)
    a.e('v_and_b32 v%d, 7, v0', t1)
    a.e('v_lshrrev_b32 v%d, 4, v0', t2)
    a.e('v_xor_b32 v%d, v%d, v%d', t1, t1, t2)
    a.e('v_mul_u32_u24 v%d, 384, v%d', t3, t0)
    a.e('v_lshl_add_u32 v%d, v%d, 4, v%d', VE, t1, t3)
    a.e('v_xor_b32 v%d, 64, v%d', VO, VE)
    a.e('s_mul_i32 s%d, s%d, 160', S_TMP, S_LI)
    for k in range(3):
        a.e('v_add_u32 v%d, %d, v0', t0, 64*k)
        a.e('v_add_u32 v%d, s%d, v%d', t0, S_TMP, t0)
        div_const(a, t1, t0, 10, 700)
        a.e('v_mul_u32_u24 v%d, 10, v%d', t2, t1)
        a.e('v_sub_u32 v%d, v%d, v%d', t2, t0, t2)
        a.e('v_and_b32 v%d, 0x73, v%d', t3, t1)
        a.e('v_and_b32 v%d, 4, v%d', t0, t1)
        a.e('v_lshl_or_b32 v%d, v%d, 1, v%d', t3, t0, t3)
        a.e('v_and_b32 v%d, 8, v%d', t0, t1)
        a.e('v_lshrrev_b32 v%d, 1, v%d', t0, t0)
        a.e('v_or_b32 v%d, v%d, v%d', t3, t3, t0)
        a.e('v_mul_u32_u24 v%d, 1280, v%d', t3, t3)
        a.e('v_lshl_add_u32 v%d, v%d, 4, v%d', WO0+k, t2, t3)
    for b in range(3):
        a.e('v_add_u32 v%d, %d, v0', t0, 64*b)
        div_const(a, t1, t0, 24, 191)
        a.e('v_mul_u32_u24 v%d, 24, v%d', t2, t1)
        a.e('v_sub_u32 v%d, v%d, v%d', t2, t0, t2)
        a.e('v_lshrrev_b32 v%d, 1, v%d', t3, t1)
        a.e('v_xor_b32 v%d, v%d, v%d', t3, t3, t2)
        a.e('v_lshrrev_b32 v%d, 2, v%d', t0, t1)
        a.e('v_lshlrev_b32 v%d, 3, v%d', t0, t0)
        a.e('v_and_b32 v%d, 3, v%d', t1, t1)
        a.e('v_add_u32 v%d, v%d, v%d', t0, t0, t1)
        a.e('v_mul_u32_u24 v%d, 384, v%d', t0, t0)
        a.e('v_lshl_add_u32 v%d, v%d, 4, v%d', K0+2*b, t3, t0)
        a.e('v_xor_b32 v%d, 4, v%d', t3, t3)
        a.e('v_lshl_add_u32 v%d, v%d, 4, v%d', K0+2*b+1, t3, t0)
    a.e('s_lshl_b32 s%d, s%d, 2', S_GV, S_MB)
    a.e('s_add_u32 s%d, s%d, s%d', S_GV, S_GV, S_LI)
    a.e('s_lshl_b32 s%d, s%d, 5', S_GV, S_GV)
    a.e('s_lshl_b32 s%d, s%d, 3', S_TMP, S_HG)
    a.e('s_add_u32 s%d, s%d, s%d', S_GV, S_GV, S_TMP)
    a.e('s_mul_i32 s%d, s%d, 12288', S_GV, S_GV)
    a.e('s_mul_i32 s%d, s%d, %d', S_GO, S_TMP, 192*1280)
    a.e('s_mul_i32 s%d, s%d, 160', S_TMP, S_HL)
    a.e('s_add_u32 s%d, s%d, s%d', S_GO, S_GO, S_TMP)
    a.e('s_mul_i32 s%d, s%d, 2560', S_LO, S_LI)
    a.e('s_add_u32 s%d, s%d, 16384', S_LO, S_LO)
    labv = a.newlabel('phv'); labe = a.newlabel('phe')
    a.e('s_cmp_ge_u32 s%d, 2', S_LI)
    a.e('s_cbranch_scc0 %s', labv)
    for i in range(4): a.e('s_mov_b32 s%d, s%d', SRD_PH+i, SRD_WO+i)
    a.e('s_mul_i32 s%d, s%d, %d', S_PH, S_HG, 8*245760)
    a.e('s_mul_i32 s%d, s%d, 7680', S_TMP, S_J)
    a.e('s_add_u32 s%d, s%d, s%d', S_PH, S_PH, S_TMP)
    a.e('s_sub_u32 s%d, s%d, 2', S_TMP, S_LI)
    a.e('s_mul_i32 s%d, s%d, 3584', S_TMP, S_TMP)
    a.e('s_add_u32 s%d, s%d, s%d', S_PH, S_PH, S_TMP)
    a.e('s_mov_b32 s%d, 245760', S_PHS)
    a.e('s_branch %s', labe)
    a.label(labv)
    for i in range(4): a.e('s_mov_b32 s%d, s%d', SRD_PH+i, SRD_V+i)
    a.e('s_lshl_b32 s%d, s%d, 2', S_PH, S_MB)
    a.e('s_lshr_b32 s%d, s%d, 1', S_TMP, S_HL)
    a.e('s_add_u32 s%d, s%d, s%d', S_PH, S_PH, S_TMP)
    a.e('s_lshl_b32 s%d, s%d, 5', S_PH, S_PH)
    a.e('s_lshl_b32 s%d, s%d, 3', S_TMP, S_HG)
    a.e('s_add_u32 s%d, s%d, s%d', S_PH, S_PH, S_TMP)
    a.e('s_mul_i32 s%d, s%d, 12288', S_PH, S_PH)
    a.e('s_and_b32 s%d, s%d, 1', S_TMP, S_HL)
    a.e('s_mul_i32 s%d, s%d, %d', S_TMP, S_TMP, 16*384)
    a.e('s_add_u32 s%d, s%d, s%d', S_PH, S_PH, S_TMP)
    a.e('s_lshl_b32 s%d, s%d, 11', S_TMP, S_LI)
    a.e('s_add_u32 s%d, s%d, s%d', S_PH, S_PH, S_TMP)
    a.e('s_mov_b32 s%d, 12288', S_PHS)
    a.label(labe)
    def pfh():
        pf(SRD_PH, S_PH, 4)
        a.e('s_add_u32 s%d, s%d, s%d', S_PH, S_PH, S_PHS)
    a.e('s_mov_b32 s%d, 0', S_CNT)
    a.label('ldA2')
    def pfa2():
        pfh()
    a_pair(pfa2, 4)
    a.e('s_add_u32 s%d, s%d, 1', S_CNT, S_CNT)
    a.e('s_cmp_lt_u32 s%d, 2', S_CNT)
    a.e('s_cbranch_scc1 ldA2')
    def ringB():
        a.e('s_add_u32 s%d, s%d, s%d', S_B1, S_SLOT, S_LO)
        a.e('s_add_u32 s%d, s%d, s%d', S_B2, S_SLOT, S_LX)
        for k in range(3):
            dma(WO0 + k, SRD_WO, S_GO, 0, S_B1, k*1024, half=(k == 2))
        for i in range(4):
            dma(VE if i % 2 == 0 else VO, SRD_V, S_GV, i*8*384, S_B2, i*1024)
    def advB(th):
        if cfg.SAMEADDR: return
        a.e('s_add_u32 s%d, s%d, %d', S_GO, S_GO, 64*1280)
        a.e('s_add_u32 s%d, s%d, %d', S_GV, S_GV, 128 if th < 2 else 12288-256)
    def b_head(pfn, npfc, first=False):
        pfn()
        for th in range(3):
            gate(npf(npfc) if th == 0 else 0)
            ringB(); advB(th)
            if first and th == 0:
                after(1, nr(7) + npf(npfc))
            else:
                n = nr(14) + (npf(npfc) if th < 2 else 0)
                after(2, n)
    def pf0():
        pf(SRD_K, S_PK, 3)
        pfh()
    b_head(pf0, 7, first=True)
    gate(0)
    a.e('s_mul_i32 s%d, s%d, 12288', S_B1, S_LI)
    a.e('s_add_u32 s%d, s%d, s%d', S_B1, S_B1, S_SLOT)
    for aa in range(4):
        for b in range(3):
            dma(K0 + 2*b + (aa & 1), SRD_K, S_GK, (16*(aa & 1) + 4*(aa >> 1))*384, S_B1, (3*aa+b)*1024)
    after(1, nr(12))
    a.e('s_mov_b32 s%d, 1', S_CNT)
    a.label('ldB1')
    b_head(pfh, 4)
    a.e('s_add_u32 s%d, s%d, 1', S_CNT, S_CNT)
    a.e('s_cmp_lt_u32 s%d, 6', S_CNT)
    a.e('s_cbranch_scc1 ldB1')
    a.label('ldB2')
    b_head(lambda: None, 0)
    a.e('s_add_u32 s%d, s%d, 1', S_CNT, S_CNT)
    a.e('s_cmp_lt_u32 s%d, 8', S_CNT)
    a.e('s_cbranch_scc1 ldB2')
    a.e('s_waitcnt vmcnt(0)')
    if cfg.DIAG:
        lab = a.newlabel('dge')
        a.e('s_cmp_lg_u32 s%d, 0', S_LI)
        a.e('s_cbranch_scc1 %s', lab)
        stamp(a, 40)
        a.e('s_memtime s[60:61]')
        a.e('s_waitcnt lgkmcnt(0)')
        a.e('v_writelane_b32 v30, s60, 51')
        a.e('s_getreg_b32 s60, hwreg(HW_REG_XCC_ID)')
        a.e('s_add_u32 s60, s60, 100')
        a.e('v_writelane_b32 v30, s60, 63')
        stamp_store(a)
        a.label(lab)
    a.e('s_waitcnt lgkmcnt(0)')
    a.e('s_endpgm')

def main(outpath):
    a = Asm()
    T = build_tables()
    hdr = HEADER + '; @launch grid=(256,1,1) block=(512,1,1) lds=%d\n' % LDS_TOTAL
    a.raw(hdr + '.amdgcn_target "amdgcn-amd-amdhsa--gfx950"\n.text')
    kernel_begin(a, KNAME)
    prologue(a, 'kend')
    a.e('s_cmp_ge_u32 s%d, 4', S_WAVE)
    a.e('s_cbranch_scc0 computew')
    gen_loaders(a, T)
    a.label('computew')
    gen_compute(a, T)
    a.label('kend')
    a.e('s_endpgm')
    a.raw('.p2align 8')
    a.label('seqtab')
    for i in range(64): a.raw('    .long %d' % (i+1))
    a.raw('.section .rodata,"a"\n.p2align 6')
    a.raw(kernel_desc(KNAME, 256))
    open(outpath, 'w').write(a.text())

cfg.SAMEADDR = False
cfg.CSLEEP = 0
cfg.VMCAP = 40
if __name__ == '__main__':
    for k, v in os.environ.items():
        if k.startswith('CFG_'):
            name = k[4:]
            cur = getattr(cfg, name)
            setattr(cfg, name, (v not in ('0', 'False', '')) if isinstance(cur, bool) else int(v))
    main(sys.argv[1])
```

```python
import sys, os, math, struct
from asmlib import *

NAME = 'concat_heads__gqa_block_cached__mha_block_cached__near_ridge'
KNAME = NAME + '_kernel'
WS_P = 0
WS_PFLAG = 3 << 20
WS_RFLAG = (3 << 20) + (1 << 17)
WS_PART = 4 << 20
WS_DIAG = 24 << 20
WS_SIZE = 32 << 20

class Cfg: pass
cfg = Cfg()
cfg.DIAG = False; cfg.NT = False; cfg.NT_PF = False; cfg.PF_ON = True; cfg.NOLOAD = False; cfg.SAMEADDR = False
cfg.VMCAP = 40; cfg.NX = 4; cfg.NW = 7

S_BETA, S_HG, S_MB, S_HL = 4, 5, 6, 7
SRD_X, SRD_WQ, SRD_K, SRD_V, SRD_WO, SRD_WS, SRD_OUT, SRD_DBG = 8, 12, 16, 20, 24, 28, 32, 36
S_WAVE, S_XCD, S_J, S_H, S_NS, S_HH = 3, 40, 41, 46, 42, 43
LDS_TOTAL = 163840
XB, XSZ = 0, 16384
WSZ = 12288

def layout():
    global WB, FLAG_BASE, F_FULL, F_FREE
    WB = XB + cfg.NX * XSZ
    FLAG_BASE = WB + cfg.NW * WSZ
    assert FLAG_BASE + 64 <= LDS_TOTAL
    F_FULL = FLAG_BASE; F_FREE = FLAG_BASE + 16

def tables():
    xs = [('x', i) for i in range(10)] + [('K', t) for t in range(3)] + [('V', h, t) for h in range(4) for t in range(3)]
    wsq = [('wq', i) for i in range(20)] + [('wo', h, t, f) for h in range(4) for t in range(3) for f in range(2)]
    load = []
    for i in range(10): load += [('x', i), ('wq', 2*i), ('wq', 2*i+1)]
    load += [('K', t) for t in range(3)]
    for h in range(4):
        for t in range(3): load += [('V', h, t), ('wo', h, t, 0), ('wo', h, t, 1)]
    lidx = {u: i for i, u in enumerate(load)}
    tick = {}
    tk = 0
    for i in range(10):
        tk += 1; tick[('wq', 2*i)] = tk
        tk += 1; tick[('wq', 2*i+1)] = tk; tick[('x', i)] = tk
    for t in range(3):
        tk += 1; tick[('K', t)] = tk
    for h in range(4):
        for t in range(3):
            tk += 1; tick[('wo', h, t, 0)] = tk
            tk += 1; tick[('wo', h, t, 1)] = tk; tick[('V', h, t)] = tk
    xsl = {u: (i % cfg.NX) for i, u in enumerate(xs)}
    wsl = {u: (i % cfg.NW) for i, u in enumerate(wsq)}
    xneed = [tick[xs[i-cfg.NX]] if i >= cfg.NX else 0 for i in range(len(xs))]
    wneed = [tick[wsq[i-cfg.NW]] if i >= cfg.NW else 0 for i in range(len(wsq))]
    return dict(xs=xs, ws=wsq, load=load, lidx=lidx, tick=tick, xsl=xsl, wsl=wsl, xneed=xneed, wneed=wneed, ntick=tk)

def stamp(a, idx, vreg=30):
    if not cfg.DIAG: return
    a.e('s_memrealtime s[60:61]')
    a.e('s_waitcnt lgkmcnt(0)')
    a.e('v_writelane_b32 v%d, s60, %d', vreg, idx)
def stamp_store(a, vreg=30, vtmp=31, region=0):
    if not cfg.DIAG: return
    a.e('v_lshlrev_b32 v%d, 2, v0', vtmp)
    a.e('s_lshl_b32 s60, s2, 8')
    a.e('s_add_u32 s60, s60, 0x%x', WS_DIAG + region*65536)
    a.e('buffer_store_dword v%d, v%d, s[%d:%d], s60 offen', vreg, vtmp, SRD_WS, SRD_WS+3)

def prologue(a, endlabel):
    a.e('s_cmp_ge_u32 s2, 256')
    a.e('s_cbranch_scc1 %s', endlabel)
    a.e('s_and_b32 s%d, s2, 7', S_XCD)
    a.e('s_lshr_b32 s%d, s2, 3', S_J)
    a.e('s_lshr_b32 s%d, s%d, 2', S_BETA, S_XCD)
    a.e('s_and_b32 s%d, s%d, 3', S_HG, S_XCD)
    a.e('s_and_b32 s%d, s%d, 3', S_MB, S_J)
    a.e('s_lshr_b32 s%d, s%d, 2', S_HL, S_J)
    a.e('s_mul_i32 s47, s%d, 40', S_BETA)
    a.e('s_add_u32 s44, s0, s47')
    a.e('s_addc_u32 s45, s1, 0')
    a.e('s_load_dwordx2 s[%d:%d], s[44:45], 0', SRD_X, SRD_X+1)
    a.e('s_load_dwordx2 s[%d:%d], s[44:45], 24', SRD_WQ, SRD_WQ+1)
    a.e('s_load_dwordx2 s[%d:%d], s[44:45], 8', SRD_K, SRD_K+1)
    a.e('s_load_dwordx2 s[%d:%d], s[44:45], 16', SRD_V, SRD_V+1)
    a.e('s_load_dwordx2 s[%d:%d], s[44:45], 32', SRD_WO, SRD_WO+1)
    a.e('s_load_dwordx2 s[%d:%d], s[0:1], 80', SRD_OUT, SRD_OUT+1)
    a.e('s_load_dwordx2 s[%d:%d], s[0:1], 88', SRD_DBG, SRD_DBG+1)
    a.e('s_load_dwordx2 s[%d:%d], s[0:1], 96', SRD_WS, SRD_WS+1)
    a.e('v_lshrrev_b32 v1, 6, v0')
    a.e('v_and_b32 v0, 63, v0')
    for srd, sz in ((SRD_X, 655360), (SRD_WQ, 7864320), (SRD_K, 6291456), (SRD_V, 6291456), (SRD_WO, 7864320),
                    (SRD_WS, WS_SIZE), (SRD_OUT, 1310720), (SRD_DBG, 256)):
        a.e('s_mov_b32 s%d, 0x%x', srd+2, sz)
        a.e('s_mov_b32 s%d, 0x20000', srd+3)
    a.e('v_readfirstlane_b32 s%d, v1', S_WAVE)
    a.e('s_lshl_b32 s%d, s%d, 3', S_H, S_HG)
    a.e('s_add_u32 s%d, s%d, s%d', S_H, S_H, S_HL)
    a.e('s_and_b32 s%d, s%d, 3', S_NS, S_HL)
    a.e('s_lshr_b32 s%d, s%d, 2', S_HH, S_HL)
    a.e('s_waitcnt lgkmcnt(0)')

def div_const(a, vd, vs, d, maxv):
    M = -(-65536 // d)
    for x in range(maxv+1):
        assert (x*M) >> 16 == x // d, (x, d)
    a.e('v_mul_u32_u24 v%d, 0x%x, v%d', vd, M, vs)
    a.e('v_lshrrev_b32 v%d, 16, v%d', vd, vd)

class LdsTrack:
    def __init__(self, a):
        self.a = a; self.q = []
    def read(self, text, lo, n):
        self.a.e(text); self.q.append((lo, lo+n-1))
    def other(self, text):
        self.a.e(text); self.q.append((-1, -1))
    def need(self, *ranges):
        last = -1
        for i, (lo, hi) in enumerate(self.q):
            for (l, n) in ranges:
                if not (hi < l or lo > l+n-1): last = i
        if last >= 0:
            k = min(15, len(self.q) - 1 - last)
            self.a.e('s_waitcnt lgkmcnt(%d)', k)
            self.q = self.q[len(self.q)-k:] if k else []
    def drain(self):
        if self.q:
            self.a.e('s_waitcnt lgkmcnt(0)'); self.q = []

def spin_flags(a, off, need, vz, vt, stmp, sleep=0):
    lab = a.newlabel('sp')
    a.label(lab)
    a.e('ds_read_b128 v[%d:%d], v%d offset:%d', vt, vt+3, vz, off)
    a.e('s_waitcnt lgkmcnt(0)')
    a.e('v_min3_u32 v%d, v%d, v%d, v%d', vt, vt, vt+1, vt+2)
    a.e('v_min_u32 v%d, v%d, v%d', vt, vt, vt+3)
    a.e('s_nop 0')
    a.e('v_readfirstlane_b32 s%d, v%d', stmp, vt)
    a.e('s_add_u32 s63, s63, 1')
    a.e('s_cmp_gt_u32 s63, 0x%x', 300000)
    a.e('s_cbranch_scc1 %s_ok', lab)
    a.e('s_cmp_ge_u32 s%d, %d', stmp, need)
    if sleep:
        a.e('s_cbranch_scc1 %s_ok', lab)
        a.e('s_sleep %d', sleep)
        a.e('s_branch %s', lab)
    else:
        a.e('s_cbranch_scc0 %s', lab)
    a.label(lab + '_ok')

def gen_compute(a, T):
    lidx, tick, xsl, wsl = T['lidx'], T['tick'], T['xsl'], T['wsl']
    XREL = 2
    WEl, WOl, WEh, WOh = 6, 7, 8, 9
    WBl, WBh = 6, 8
    VFA, VFR, VCNT, PV = 10, 1, 15, 11
    VZ, VFL, TMP = 14, 252, 248
    VF1 = 12
    t0, t1, t2, t3 = TMP, TMP+1, TMP+2, TMP+3
    ACC = 16
    AF = [112, 136]; XF = [160, 164]
    VW, OA, SACC = 16, 168, 96
    QBm = [OA+0, OA+4, OA+8, OA+12] + [OA+16*k+q for k in range(1, 5) for q in (0, 4)]
    QBm += []
    VWB0 = [OA+16*(nt+1)+8 for nt in range(4)] + [104]
    PA = [96, 100]; PBq = [132, 156]
    PK = OA
    S_NONCE = 62
    L = LdsTrack(a)
    a.e('s_mov_b32 s63, 0')
    a.e('v_mov_b32 v%d, 0x%x', VZ, FLAG_BASE)
    a.e('v_and_b32 v%d, 3, v0', t0)
    a.e('v_lshl_add_u32 v%d, v%d, 2, v%d', VFA, t0, VZ)
    a.e('v_lshlrev_b32 v%d, 2, v0', t0)
    a.e('v_add_u32 v%d, 0x%x, v%d', VFR, FLAG_BASE + 64, t0)
    a.e('s_lshl_b32 s58, s%d, 2', S_WAVE)
    a.e('s_add_u32 s58, s58, 0x%x', F_FREE)
    a.e('v_writelane_b32 v%d, s58, 0', VFR)
    a.e('v_mov_b32 v%d, 0', VCNT)
    a.e('v_and_b32 v%d, 31, v0', t0)
    a.e('v_lshrrev_b32 v%d, 5, v0', t1)
    a.e('v_bfe_u32 v%d, v0, 1, 3', t2)
    a.e('v_xor_b32 v%d, v%d, v%d', t2, t2, t1)
    a.e('s_lshl_b32 s47, s%d, 12', S_WAVE)
    a.e('v_lshlrev_b32 v%d, 7, v%d', t3, t0)
    a.e('v_add_u32 v%d, s47, v%d', t3, t3)
    if XB: a.e('v_add_u32 v%d, %d, v%d', t3, XB, t3)
    for s_ in range(4):
        a.e('v_xor_b32 v%d, %d, v%d', XREL+s_, 2*s_, t2)
        a.e('v_lshl_add_u32 v%d, v%d, 4, v%d', XREL+s_, XREL+s_, t3)
    a.e('v_bfe_u32 v%d, v0, 2, 2', t0)
    a.e('v_lshrrev_b32 v%d, 5, v0', t1)
    a.e('v_lshl_add_u32 v%d, v%d, 3, v%d', t0, t1, t0)
    a.e('v_mul_u32_u24 v%d, 384, v%d', t0, t0)
    a.e('v_bfe_u32 v%d, v0, 4, 1', t1)
    a.e('v_lshl_add_u32 v%d, v%d, 5, v%d', t0, t1, t0)
    a.e('v_and_b32 v%d, 1, v0', t1)
    a.e('v_lshl_add_u32 v%d, v%d, 4, v%d', t0, t1, t0)
    a.e('v_bfe_u32 v%d, v0, 1, 1', t1)
    a.e('v_lshl_add_u32 v%d, v%d, 3, v%d', t0, t1, t0)
    a.e('v_add_u32 v%d, 0x%x, v%d', t0, WB, t0)
    a.e('v_bfe_u32 v%d, v0, 3, 1', t1)
    a.e('v_lshlrev_b32 v%d, 6, v%d', t1, t1)
    a.e('v_add_u32 v%d, v%d, v%d', WEl, t0, t1)
    a.e('v_sub_u32 v%d, v%d, v%d', WOl, t0, t1)
    a.e('v_add_u32 v%d, %d, v%d', WEh, 4*WSZ, WEl)
    a.e('v_add_u32 v%d, %d, v%d', WOh, 4*WSZ, WOl)
    a.e('v_lshlrev_b32 v%d, 4, v0', PV)
    a.e('s_barrier')

    slow = []
    bg = []
    def emit_bg(n):
        for _ in range(n):
            if bg: a.e(bg.pop(0))
    def flag_prefetch():
        L.read('ds_read_b32 v%d, v%d' % (VF1, VFA), VF1, 1)
    pend = {}
    def flag_cmp(unit):
        L.need((VF1, 1))
        need = lidx[unit] + 1
        a.e('v_cmp_gt_u32 vcc, %d, v%d', need, VF1)
        pend['need'] = need
    def flag_branch():
        lab = a.newlabel('fl')
        a.e('s_cbranch_vccnz %s_slow', lab)
        a.label(lab)
        slow.append((lab, pend['need']))
    def flag_check(unit):
        flag_cmp(unit); a.e('s_nop 4'); flag_branch()
    def signal_free():
        a.e('v_add_u32 v%d, 1, v%d', VCNT, VCNT)
        L.other('ds_write_b32 v%d, v%d' % (VFR, VCNT))
    def xread(dst, xu, xs_):
        return ('ds_read_b128 v[%d:%d], v%d offset:%d' % (dst, dst+3, XREL+xs_, xsl[xu]*XSZ), dst, 4)
    def reads(kind, xu, xs_, wu, ws_, k):
        r = [xread(XF[k], xu, xs_)]
        sl = wsl[wu]; hi = sl >= 4; so = (sl - 4 if hi else sl)*WSZ
        for t in range(6 if kind == 'A' else 5):
            for u in range(2):
                d = AF[k]+4*t+2*u
                if kind == 'A':
                    base = (WEh if hi else WEl) if t % 2 == 0 else (WOh if hi else WOl)
                    off = so + (16*ws_+4*u)*384 + 64*t
                else:
                    base = WBh if hi else WBl
                    off = so + (16*ws_+4*u)*320 + 64*t
                r.append(('ds_read_b64_tr_b16 v[%d:%d], v%d offset:%d' % (d, d+1, base, off), d, 2))
        return r
    def step(kind, k, nreads, per, first=False, hooks=None, nbg=0):
        nt_ = 6 if kind == 'A' else 5
        idx = 0
        for t in range(nt_):
            L.need((AF[k]+4*t, 4), (XF[k], 4))
            D = (ACC if kind == 'A' else VW) + 16*t
            c = '0' if first else 'v[%d:%d]' % (D, D+15)
            if kind == 'A':
                a.e('v_mfma_f32_32x32x16_bf16 v[%d:%d], v[%d:%d], v[%d:%d], %s', D, D+15, AF[k]+4*t, AF[k]+4*t+3, XF[k], XF[k]+3, c)
            else:
                a.e('v_mfma_f32_32x32x16_bf16 v[%d:%d], v[%d:%d], v[%d:%d], %s', D, D+15, XF[k], XF[k]+3, AF[k]+4*t, AF[k]+4*t+3, c)
            if hooks and t in hooks:
                for h in (hooks[t] if isinstance(hooks[t], list) else [hooks[t]]):
                    r = h()
                    if r is not None: nreads = r
            n = 0
            for _ in range(per[t]):
                if idx < len(nreads):
                    L.read(*nreads[idx]); idx += 1; n += 1
            emit_bg(max(0, min(nbg, 5 - n)))
        assert idx == len(nreads), (idx, len(nreads), kind)
    def stampc(i):
        if cfg.DIAG:
            a.e('s_memrealtime s[%d:%d]', 64+2*i, 65+2*i)
            a.e('s_mov_b32 s%d, s63', 80+i)
    def unit(kind, wu, xu, xs0, first, nxt_unit, nxt_reads, extra0=None, nbg=0):
        nt_ = 6 if kind == 'A' else 5
        per0 = [4,3,3,3,0,0] if kind == 'A' else [4,4,3,0,0]
        hk0 = {(4 if kind == 'A' else 3): flag_prefetch} if nxt_unit else {}
        if extra0: hk0.update(extra0)
        step(kind, 0, reads(kind, xu, xs0+1, wu, 1, 1), per0, first=first, hooks=hk0, nbg=nbg)
        if nxt_unit:
            def h0(): flag_cmp(nxt_unit); signal_free()
            def h1(): flag_branch(); return nxt_reads()
            nr = len(nxt_reads())
            if kind == 'A': per1 = [0,4,3,3,3,0] if nr == 13 else [0,2,2,0,0,0]
            else: per1 = [0,4,4,3,0] if nr == 11 else [0,2,2,0,0]
            step(kind, 1, [], per1, hooks={0: h0, 1: h1}, nbg=nbg)
        else:
            def h0(): L.drain(); signal_free()
            step(kind, 1, [], [0]*nt_, hooks={1: h0}, nbg=nbg)

    KF = [AF[0]+4*i for i in range(6)] + [AF[1]+4*i for i in range(6)]
    flag_prefetch(); flag_check(('wq', 0))
    for r in reads('A', ('x', 0), 0, ('wq', 0), 0, 0): L.read(*r)
    for wi in range(20):
        i, hf = wi // 2, wi % 2
        ex0 = None
        if wi == 8:
            def nl():
                a.e('v_mov_b32 v%d, 0', t0)
                a.e('buffer_load_dword v%d, v%d, s[%d:%d], 0 offen sc1', t1, t0, SRD_DBG, SRD_DBG+3)
            ex0 = {0: nl}
        if wi < 19:
            nu = ('wq', wi+1)
            nr = (lambda i=i, hf=hf, nu=nu: reads('A', ('x', i+1 if hf else i), 0 if hf else 2, nu, 0, 0))
        else:
            nu = ('K', 0)
            nr = (lambda: [xread(KF[s_], ('K', 0), s_) for s_ in range(4)])
        unit('A', ('wq', wi), ('x', i), 2*hf, wi == 0, nu, nr, extra0=ex0)
    lab = a.newlabel('nonce')
    a.e('s_waitcnt vmcnt(0)')
    a.e('s_nop 0')
    a.e('v_readfirstlane_b32 s%d, v%d', S_NONCE, t1)
    a.e('s_nop 0')
    a.e('s_cmp_lg_u32 s%d, 0', S_NONCE)
    a.e('s_cbranch_scc0 %s', lab)
    a.label(lab + '_ok')
    slow_nonce = lab
    a.e('v_bfe_u32 v%d, v0, 2, 2', t0)
    a.e('v_lshrrev_b32 v%d, 5, v0', t1)
    a.e('v_lshl_add_u32 v%d, v%d, 3, v%d', t0, t1, t0)
    a.e('v_mul_u32_u24 v%d, 320, v%d', t0, t0)
    a.e('v_bfe_u32 v%d, v0, 4, 1', t1)
    a.e('v_lshl_add_u32 v%d, v%d, 5, v%d', t0, t1, t0)
    a.e('v_and_b32 v%d, 3, v0', t1)
    a.e('v_lshl_add_u32 v%d, v%d, 3, v%d', t0, t1, t0)
    a.e('v_add_u32 v%d, 0x%x, v%d', WBl, WB, t0)
    a.e('v_add_u32 v%d, %d, v%d', WBh, 4*WSZ, WBl)
    a.e('s_lshl_b32 s51, s%d, 4', S_BETA)
    a.e('s_lshl_b32 s47, s%d, 2', S_MB)
    a.e('s_add_u32 s51, s51, s47')
    a.e('s_add_u32 s51, s51, s%d', S_WAVE)
    a.e('s_lshl_b32 s51, s51, 5')
    a.e('s_lshl_b32 s52, s%d, 3', S_HG)
    a.e('s_lshl_b32 s47, s%d, 2', S_HH)
    a.e('s_add_u32 s52, s52, s47')
    a.e('s_add_u32 s52, s52, s51')
    a.e('s_lshl_b32 s52, s52, 11')
    a.e('s_add_u32 s52, s52, 0x%x', WS_P)
    stampc(0)
    def cvtq(sp):
        t, hf = sp // 2, sp % 2
        return ['v_cvt_pk_bf16_f32 v%d, v%d, v%d' % (QBm[sp]+j, ACC+16*t+8*hf+2*j, ACC+16*t+8*hf+2*j+1) for j in range(4)]
    for sp in range(4):
        for x in cvtq(sp): a.e(x)
    L.drain(); signal_free()
    flag_prefetch(); flag_check(('K', 1))
    for s_ in range(4): L.read(*xread(KF[4+s_], ('K', 1), s_))
    for sp in range(4, 8):
        for x in cvtq(sp): a.e(x)
    L.drain(); signal_free()
    flag_prefetch(); flag_check(('K', 2))
    for s_ in range(4): L.read(*xread(KF[8+s_], ('K', 2), s_))
    for sp in range(8, 12): bg.extend(cvtq(sp))
    emit_bg(16)
    for sp in range(12):
        L.need((KF[sp], 4))
        c = '0' if sp == 0 else 'v[%d:%d]' % (SACC, SACC+15)
        a.e('v_mfma_f32_32x32x16_bf16 v[%d:%d], v[%d:%d], v[%d:%d], %s', SACC, SACC+15, KF[sp], KF[sp]+3, QBm[sp], QBm[sp]+3, c)
        if sp == 7:
            L.drain(); signal_free(); flag_prefetch()
        if sp == 9: flag_cmp(('wo', 0, 0, 0))
        if sp == 10:
            flag_branch()
            for r in reads('B', ('V', 0, 0), 0, ('wo', 0, 0, 0), 0, 0): L.read(*r)
    cval = (192 ** -0.5) * math.log2(math.e)
    cb = struct.unpack('<I', struct.pack('<f', cval))[0]
    a.e('s_mov_b32 s50, 0x%x', cb)
    a.e('s_add_u32 s53, s51, s%d', S_H)
    a.e('s_lshl_b32 s53, s53, 11')
    a.e('s_add_u32 s53, s53, 0x%x', WS_P)
    q = []
    q.append('s_nop 7')
    q.append('v_max3_f32 v%d, v%d, v%d, v%d' % (t0, SACC, SACC+1, SACC+2))
    for r in range(3, 15, 2):
        q.append('v_max3_f32 v%d, v%d, v%d, v%d' % (t0, t0, SACC+r, SACC+r+1))
    q.append('v_max_f32 v%d, v%d, v%d' % (t0, t0, SACC+15))
    q.append('v_mov_b32 v%d, v%d' % (t1, t0))
    q.append('s_nop 1')
    q.append('v_permlane32_swap_b32 v%d, v%d' % (t0, t1))
    q.append('v_max_f32 v%d, v%d, v%d' % (t0, t0, t1))
    q.append('v_mul_f32 v%d, s50, v%d' % (t2, t0))
    for r in range(16): q.append('v_fma_f32 v%d, v%d, s50, -v%d' % (SACC+r, SACC+r, t2))
    for r in range(16): q.append('v_exp_f32 v%d, v%d' % (SACC+r, SACC+r))
    q.append('s_nop 0')
    q.append('v_add_f32 v%d, v%d, v%d' % (t0, SACC, SACC+1))
    q.append('v_add_f32 v%d, v%d, v%d' % (t1, SACC+2, SACC+3))
    for r in range(4, 16, 2):
        q.append('v_add_f32 v%d, v%d, v%d' % (t0, t0, SACC+r))
        q.append('v_add_f32 v%d, v%d, v%d' % (t1, t1, SACC+r+1))
    q.append('v_add_f32 v%d, v%d, v%d' % (t0, t0, t1))
    q.append('v_mov_b32 v%d, v%d' % (t1, t0))
    q.append('s_nop 1')
    q.append('v_permlane32_swap_b32 v%d, v%d' % (t0, t1))
    q.append('v_add_f32 v%d, v%d, v%d' % (t0, t0, t1))
    q.append('v_rcp_f32 v%d, v%d' % (t0, t0))
    q.append('s_nop 0')
    for r in range(16): q.append('v_mul_f32 v%d, v%d, v%d' % (SACC+r, SACC+r, t0))
    for j in range(8): q.append('v_cvt_pk_bf16_f32 v%d, v%d, v%d' % (PK+j, SACC+2*j, SACC+2*j+1))
    q.append('buffer_store_dwordx4 v[%d:%d], v%d, s[%d:%d], s53 offen sc1' % (PK, PK+3, PV, SRD_WS, SRD_WS+3))
    q.append('buffer_store_dwordx4 v[%d:%d], v%d, s[%d:%d], s53 offen offset:1024 sc1' % (PK+4, PK+7, PV, SRD_WS, SRD_WS+3))
    bg.extend(q)

    def g2cvt(dst_first, p, first=False, src=None):
        pass
    def cvt_tile(nt, dst):
        d = VW + 16*nt
        o = d if dst is None else dst[nt]
        return ['v_cvt_pk_bf16_f32 v%d, v%d, v%d' % (o+j, d+2*j, d+2*j+1) for j in range(8)]
    def g2(src, p, first=False, fill=None):
        j = 0
        for nt in range(5):
            s_ = VW+16*nt if src is None else src[nt]
            D = OA + 16*nt
            for z in range(2):
                c = '0' if (first and z == 0) else 'v[%d:%d]' % (D, D+15)
                a.e('v_mfma_f32_32x32x16_bf16 v[%d:%d], v[%d:%d], v[%d:%d], %s', D, D+15, s_+4*z, s_+4*z+3, p[z], p[z]+3, c)
                if fill and j < len(fill):
                    for x in fill[j]: a.e(x)
                j += 1
    def g2_inplace(p):
        for x in cvt_tile(0, None): a.e(x)
        a.e('s_nop 1')
        fill = []
        for nt in range(1, 5):
            c = cvt_tile(nt, None)
            fill += [c[:4], c[4:] + ['s_nop 1']]
        g2(None, p, fill=fill)
    def p_load(hq, p):
        a.e('s_add_u32 s47, s52, %d', hq*2048)
        for z in range(2):
            a.e('buffer_load_dwordx4 v[%d:%d], v%d, s[%d:%d], s47 offen offset:%d sc1', p[z], p[z]+3, PV, SRD_WS, SRD_WS+3, z*1024)
    def publish_p():
        assert not bg
        a.e('s_waitcnt vmcnt(0)')
        a.e('s_lshl_b32 s47, s2, 2')
        a.e('s_add_u32 s47, s47, s%d', S_WAVE)
        a.e('s_lshl_b32 s47, s47, 6')
        a.e('s_add_u32 s47, s47, 0x%x', WS_PFLAG)
        a.e('v_mov_b32 v%d, 0', t0)
        a.e('v_mov_b32 v%d, s%d', t1, S_NONCE)
        a.e('s_mov_b64 exec, 1')
        a.e('buffer_store_dword v%d, v%d, s[%d:%d], s47 offen sc1', t1, t0, SRD_WS, SRD_WS+3)
        a.e('s_mov_b64 exec, -1')
    def poll_p():
        lab = a.newlabel('pollp')
        a.e('v_and_b32 v%d, 3, v0', t0)
        a.e('v_lshlrev_b32 v%d, 5, v%d', t0, t0)
        a.e('s_lshl_b32 s47, s%d, 7', S_HH)
        a.e('s_lshl_b32 s48, s%d, 3', S_MB)
        a.e('s_add_u32 s47, s47, s48')
        a.e('s_add_u32 s47, s47, s%d', S_XCD)
        a.e('v_add_u32 v%d, s47, v%d', t0, t0)
        a.e('v_lshlrev_b32 v%d, 8, v%d', t0, t0)
        a.e('s_lshl_b32 s47, s%d, 6', S_WAVE)
        a.e('s_add_u32 s47, s47, 0x%x', WS_PFLAG)
        a.label(lab)
        a.e('buffer_load_dword v%d, v%d, s[%d:%d], s47 offen sc1', t2, t0, SRD_WS, SRD_WS+3)
        a.e('s_waitcnt vmcnt(0)')
        a.e('v_cmp_ne_u32 vcc, s%d, v%d', S_NONCE, t2)
        a.e('s_add_u32 s63, s63, 64')
        a.e('s_cmp_gt_u32 s63, 300000')
        a.e('s_cbranch_scc1 %s_done', lab)
        a.e('s_nop 2')
        a.e('s_cbranch_vccnz %s', lab)
        a.label(lab + '_done')
    def head(hq):
        for th in range(3):
            for hf in range(2):
                wu = ('wo', hq, th, hf)
                last = (th == 2 and hf == 1)
                if not last:
                    nu = ('wo', hq, th + hf, 1 - hf)
                    nr = (lambda nu=nu, hf=hf: reads('B', ('V', hq, nu[2]), 0 if hf else 2, nu, 0, 0))
                elif hq < 3:
                    nu = ('wo', hq+1, 0, 0)
                    nr = (lambda nu=nu: reads('B', ('V', hq+1, 0), 0, nu, 0, 0))
                else:
                    nu = None; nr = None
                ex0 = None
                if hq == 0 and th == 2 and hf == 0: ex0 = {0: publish_p}
                if hq == 1 and th == 1 and hf == 0: ex0 = {0: (lambda: (poll_p(), p_load(0, PA), p_load(1, PBq), None)[-1])}
                if hq == 2 and th == 1 and hf == 0: ex0 = {0: (lambda: p_load(2, PA))}
                if hq == 3 and th == 1 and hf == 0: ex0 = {0: (lambda: p_load(3, PBq))}
                unit('B', wu, ('V', hq, th), 2*hf, th == 0 and hf == 0, nu, nr, extra0=ex0, nbg=(5 if bg else 0))
    head(0)
    stampc(1)
    a.e('s_nop 7'); a.e('s_nop 3')
    for nt in range(5):
        for x in cvt_tile(nt, VWB0): a.e(x)
    head(1)
    a.e('s_nop 7'); a.e('s_nop 3')
    a.e('s_waitcnt vmcnt(0)')
    fill = []
    for nt in range(5):
        c = cvt_tile(nt, None)
        fill += [c[:4], c[4:]]
    g2(VWB0, PA, first=True, fill=fill)
    a.e('s_nop 1')
    g2(None, PBq)
    head(2)
    a.e('s_nop 7'); a.e('s_nop 3')
    a.e('s_waitcnt vmcnt(0)')
    g2_inplace(PA)
    head(3)
    a.e('s_nop 7'); a.e('s_nop 3')
    a.e('s_waitcnt vmcnt(0)')
    g2_inplace(PBq)
    stampc(2)
    a.e('s_lshl_b32 s53, s%d, 2', S_BETA)
    a.e('s_add_u32 s53, s53, s%d', S_MB)
    a.e('s_lshl_b32 s53, s53, 2')
    a.e('s_add_u32 s53, s53, s%d', S_NS)
    a.e('s_lshl_b32 s53, s53, 3')
    a.e('s_lshl_b32 s54, s%d, 1', S_HG)
    a.e('s_add_u32 s54, s54, s%d', S_HH)
    a.e('s_nop 7'); a.e('s_nop 3')
    Tq = 16
    for ih in range(2):
        for nt in range(5):
            for j in range(4):
                a.e('v_cvt_pk_bf16_f32 v%d, v%d, v%d', Tq+20*ih+4*nt+j, OA+16*nt+8*ih+2*j, OA+16*nt+8*ih+2*j+1)
    for ih in range(2):
        a.e('s_lshl_b32 s47, s%d, 1', S_WAVE)
        a.e('s_add_u32 s47, s47, %d', ih)
        a.e('s_add_u32 s47, s47, s53')
        a.e('s_lshl_b32 s47, s47, 3')
        a.e('s_add_u32 s47, s47, s54')
        a.e('s_mul_i32 s47, s47, 5120')
        a.e('s_add_u32 s47, s47, 0x%x', WS_PART)
        for nt in range(5):
            if nt == 4: a.e('s_add_u32 s47, s47, 4096')
            a.e('buffer_store_dwordx4 v[%d:%d], v%d, s[%d:%d], s47 offen offset:%d sc1', Tq+20*ih+4*nt, Tq+20*ih+4*nt+3, PV, SRD_WS, SRD_WS+3, 1024*(nt % 4))
    a.e('s_waitcnt vmcnt(0)')
    a.e('s_barrier')
    stampc(3)
    lab = a.newlabel('rf')
    a.e('s_cmp_lg_u32 s%d, 0', S_WAVE)
    a.e('s_cbranch_scc1 %s', lab)
    a.e('s_lshl_b32 s47, s2, 7')
    a.e('s_add_u32 s47, s47, 0x%x', WS_RFLAG)
    a.e('v_mov_b32 v%d, 0', t0)
    a.e('v_mov_b32 v%d, s%d', t1, S_NONCE)
    a.e('s_mov_b64 exec, 1')
    a.e('buffer_store_dword v%d, v%d, s[%d:%d], s47 offen sc1', t1, t0, SRD_WS, SRD_WS+3)
    a.e('s_mov_b64 exec, -1')
    a.label(lab)
    a.e('v_bfe_u32 v%d, v0, 1, 2', t0)
    a.e('v_and_b32 v%d, 1, v0', t1)
    a.e('v_lshl_add_u32 v%d, v%d, 7, v%d', t0, t1, t0)
    a.e('s_lshl_b32 s47, s%d, 2', S_BETA)
    a.e('s_lshl_b32 s48, s%d, 3', S_MB)
    a.e('s_add_u32 s47, s47, s48')
    a.e('s_lshl_b32 s48, s%d, 5', S_NS)
    a.e('s_add_u32 s47, s47, s48')
    a.e('v_add_u32 v%d, s47, v%d', t0, t0)
    a.e('v_lshlrev_b32 v%d, 7, v%d', t0, t0)
    a.e('s_mov_b32 s47, 0x%x', WS_RFLAG)
    lab = a.newlabel('pollr')
    a.label(lab)
    a.e('buffer_load_dword v%d, v%d, s[%d:%d], s47 offen sc1', t2, t0, SRD_WS, SRD_WS+3)
    a.e('s_waitcnt vmcnt(0)')
    a.e('v_cmp_ne_u32 vcc, s%d, v%d', S_NONCE, t2)
    a.e('s_add_u32 s63, s63, 64')
    a.e('s_cmp_gt_u32 s63, 600000')
    a.e('s_cbranch_scc1 %s_done', lab)
    a.e('s_nop 2')
    a.e('s_cbranch_vccnz %s', lab)
    a.label(lab + '_done')
    stampc(4)
    a.e('s_add_u32 s47, s53, s54')
    a.e('s_mul_i32 s47, s47, 40960')
    a.e('s_add_u32 s47, s47, 0x%x', WS_PART)
    a.e('s_lshl_b32 s48, s%d, 10', S_WAVE)
    a.e('s_add_u32 s48, s48, s47')
    a.e('s_add_u32 s49, s47, 4096')
    Rq = 16; Rq2 = 48
    for src in range(8):
        a.e('buffer_load_dwordx4 v[%d:%d], v%d, s[%d:%d], s48 offen sc1', Rq+4*src, Rq+4*src+3, PV, SRD_WS, SRD_WS+3)
        a.e('s_add_u32 s48, s48, 5120')
    a.e('s_lshl_b32 s55, s%d, 4', S_WAVE)
    a.e('s_mov_b64 s[56:57], 0xffff')
    a.e('s_lshl_b64 s[56:57], s[56:57], s55')
    a.e('s_mov_b64 exec, s[56:57]')
    for src in range(8):
        a.e('buffer_load_dwordx4 v[%d:%d], v%d, s[%d:%d], s49 offen sc1', Rq2+4*src, Rq2+4*src+3, PV, SRD_WS, SRD_WS+3)
        a.e('s_add_u32 s49, s49, 5120')
    a.e('s_mov_b64 exec, -1')
    a.e('s_lshl_b32 s47, s%d, 2', S_MB)
    a.e('s_lshr_b32 s48, s54, 1')
    a.e('s_add_u32 s47, s47, s48')
    a.e('s_mul_i32 s47, s47, %d', 32*2560)
    a.e('s_mul_i32 s48, s%d, 1280', S_BETA)
    a.e('s_add_u32 s47, s47, s48')
    a.e('s_mul_i32 s48, s%d, 320', S_NS)
    a.e('s_add_u32 s47, s47, s48')
    a.e('s_and_b32 s48, s54, 1')
    a.e('s_lshl_b32 s48, s48, 5')
    a.e('s_add_u32 s47, s47, s48')
    a.e('v_and_b32 v%d, 31, v0', t0)
    a.e('v_mul_u32_u24 v%d, 2560, v%d', t0, t0)
    a.e('v_lshrrev_b32 v%d, 5, v0', t1)
    a.e('v_lshl_add_u32 v%d, v%d, 3, v%d', t0, t1, t0)
    def reduce_store(R, A8, soff):
        for src in range(8):
            a.e('s_waitcnt vmcnt(%d)', remaining[0]); remaining[0] -= 1
            for j in range(4):
                s = R+4*src+j
                if src == 0:
                    a.e('v_lshlrev_b32 v%d, 16, v%d', A8+2*j, s)
                    a.e('v_and_b32 v%d, 0xffff0000, v%d', A8+2*j+1, s)
                else:
                    a.e('v_lshlrev_b32 v%d, 16, v%d', t2, s)
                    a.e('v_and_b32 v%d, 0xffff0000, v%d', t3, s)
                    a.e('v_add_f32 v%d, v%d, v%d', A8+2*j, A8+2*j, t2)
                    a.e('v_add_f32 v%d, v%d, v%d', A8+2*j+1, A8+2*j+1, t3)
        for j in range(4):
            a.e('v_cvt_pk_bf16_f32 v%d, v%d, v%d', A8+j, A8+2*j, A8+2*j+1)
        a.e('buffer_store_dwordx2 v[%d:%d], v%d, s[%d:%d], s%d offen', A8, A8+1, t0, SRD_OUT, SRD_OUT+3, soff)
        a.e('buffer_store_dwordx2 v[%d:%d], v%d, s[%d:%d], s%d offen offset:16', A8+2, A8+3, t0, SRD_OUT, SRD_OUT+3, soff)
    remaining = [15]
    a.e('s_lshl_b32 s48, s%d, 6', S_WAVE)
    a.e('s_add_u32 s48, s48, s47')
    a.e('s_add_u32 s49, s47, 256')
    reduce_store(Rq, 80, 48)
    remaining[0] = 7 + 2
    a.e('s_mov_b64 exec, s[56:57]')
    reduce_store(Rq2, 88, 49)
    a.e('s_mov_b64 exec, -1')
    if cfg.DIAG:
        a.e('s_waitcnt vmcnt(0)')
        stampc(5)
        a.e('s_waitcnt lgkmcnt(0)')
        a.e('v_mov_b32 v9, 0')
        for i in range(6):
            a.e('v_writelane_b32 v9, s%d, %d', 64+2*i, i)
            a.e('v_writelane_b32 v9, s%d, %d', 80+i, 10+i)
        lab = a.newlabel('nost')
        a.e('s_cmp_lg_u32 s%d, 0', S_WAVE)
        a.e('s_cbranch_scc1 %s', lab)
        stamp_store(a, 9, 10, region=1)
        a.label(lab)
    a.e('s_endpgm')
    for (lab, need) in slow:
        a.label(lab + '_slow')
        spin_flags(a, 0, need, VZ, VFL, 59)
        a.e('s_branch %s', lab)
    lab = slow_nonce
    a.label(lab)
    a.e('buffer_load_dword v%d, v%d, s[%d:%d], 0 offen sc1', t1, t0, SRD_DBG, SRD_DBG+3)
    a.e('s_waitcnt vmcnt(0)')
    a.e('v_readfirstlane_b32 s%d, v%d', S_NONCE, t1)
    a.e('s_add_u32 s63, s63, 64')
    a.e('s_cmp_gt_u32 s63, 300000')
    a.e('s_cbranch_scc1 %s_ok', lab)
    a.e('s_cmp_lg_u32 s%d, 0', S_NONCE)
    a.e('s_cbranch_scc0 %s', lab)
    a.e('s_branch %s_ok', lab)

def gen_loaders(a, T):
    XE_, XO, W0, VE, VO, WO0 = 2, 3, 4, 8, 9, 10
    LN = 14
    VZ, VTX, VTW = 22, 24, 25
    VQ, VT = 36, 44
    DUM = 48
    t0, t1, t2, t3 = 32, 33, 34, 35
    S_TMP, S_FULLA, S_LI, S_G = 56, 57, 58, 62
    S_GX, S_GW, S_GV, S_GO, S_GK = 52, 53, 54, 55, 64
    S_PW, S_PK, S_PH, S_PHS, S_PX = 68, 69, 70, 71, 76
    SRD_PH, SRD_T = 72, 84
    S_XI, S_WI, S_XS, S_WS, S_CNT, S_NEED = 77, 78, 79, 80, 81, 82
    S_WSA = 83
    S_LXO, S_LWA, S_LWB = 65, 66, 67
    nt_pf = ' nt' if cfg.NT_PF else ''
    nt_r = ' nt' if cfg.NT else ''
    a.e('s_mov_b32 s63, 0')
    a.e('s_sub_u32 s%d, s%d, 4', S_LI, S_WAVE)
    a.e('v_lshlrev_b32 v%d, 4, v0', LN)
    a.e('s_lshl_b32 s%d, s%d, 7', S_PX, S_MB)
    a.e('s_lshl_b32 s%d, s%d, 4', S_TMP, S_HL)
    a.e('s_add_u32 s%d, s%d, s%d', S_PX, S_PX, S_TMP)
    a.e('s_mul_i32 s%d, s%d, 1280', S_PX, S_PX)
    a.e('s_mul_i32 s%d, s%d, 5120', S_TMP, S_LI)
    a.e('s_add_u32 s%d, s%d, s%d', S_PX, S_PX, S_TMP)
    a.e('s_lshl_b32 s%d, s%d, 1', S_PW, S_J)
    a.e('s_lshr_b32 s%d, s%d, 1', S_TMP, S_LI)
    a.e('s_lshl_b32 s%d, s%d, 6', S_TMP, S_TMP)
    a.e('s_add_u32 s%d, s%d, s%d', S_PW, S_PW, S_TMP)
    a.e('s_and_b32 s%d, s%d, 1', S_TMP, S_LI)
    a.e('s_add_u32 s%d, s%d, s%d', S_PW, S_PW, S_TMP)
    a.e('s_mul_i32 s%d, s%d, 12288', S_PW, S_PW)
    a.e('s_mul_i32 s%d, s%d, 3072', S_TMP, S_HG)
    a.e('s_add_u32 s%d, s%d, s%d', S_PW, S_PW, S_TMP)
    def pf(srd, soff, n, off0=0):
        for i in range(n):
            if cfg.NOLOAD or not cfg.PF_ON: continue
            a.e('buffer_load_dwordx4 v[%d:%d], v%d, s[%d:%d], s%d offen offset:%d%s', DUM, DUM+3, LN, srd, srd+3, soff, off0 + 1024*i, nt_pf)
    pf(SRD_WQ, S_PW, 3)
    pf(SRD_X, S_PX, 4)
    a.e('s_add_u32 s%d, s%d, 4096', S_TMP, S_PX)
    pf(SRD_X, S_TMP, 1)
    a.e('s_add_u32 s%d, s%d, %d', S_PW, S_PW, 2*786432)
    pf(SRD_WQ, S_PW, 3)
    a.e('s_add_u32 s%d, s%d, %d', S_PW, S_PW, 2*786432)
    a.e('v_mov_b32 v%d, 0x%x', VZ, FLAG_BASE)
    lab = a.newlabel('init')
    a.e('s_cmp_lg_u32 s%d, 3', S_LI)
    a.e('s_cbranch_scc1 %s', lab)
    a.e('v_lshlrev_b32 v%d, 2, v0', t0)
    a.e('v_and_b32 v%d, 63, v%d', t0, t0)
    a.e('v_add_u32 v%d, v%d, v%d', t0, t0, VZ)
    a.e('v_mov_b32 v%d, 0', t1)
    a.e('ds_write_b32 v%d, v%d', t0, t1)
    a.e('s_cmp_lg_u32 s2, 0')
    a.e('s_cbranch_scc1 %s', lab)
    a.e('s_memrealtime s[60:61]')
    a.e('s_waitcnt lgkmcnt(0)')
    a.e('s_or_b32 s60, s60, 1')
    a.e('v_mov_b32 v%d, s60', t1)
    a.e('v_mov_b32 v%d, 0', t0)
    a.e('s_mov_b64 exec, 1')
    a.e('buffer_store_dword v%d, v%d, s[%d:%d], 0 offen sc1', t1, t0, SRD_DBG, SRD_DBG+3)
    a.e('s_mov_b64 exec, -1')
    a.label(lab)
    a.e('s_waitcnt lgkmcnt(0)')
    a.e('s_barrier')
    a.e('v_lshrrev_b32 v%d, 3, v0', t0)
    a.e('v_and_b32 v%d, 7, v0', t1)
    a.e('v_lshrrev_b32 v%d, 4, v0', t2)
    a.e('v_xor_b32 v%d, v%d, v%d', t1, t1, t2)
    a.e('v_mul_u32_u24 v%d, 1280, v%d', t3, t0)
    a.e('v_lshl_add_u32 v%d, v%d, 4, v%d', XE_, t1, t3)
    a.e('v_xor_b32 v%d, 64, v%d', XO, XE_)
    a.e('v_mul_u32_u24 v%d, 384, v%d', t3, t0)
    a.e('v_lshl_add_u32 v%d, v%d, 4, v%d', VE, t1, t3)
    a.e('v_xor_b32 v%d, 64, v%d', VO, VE)
    for b in range(3):
        a.e('v_add_u32 v%d, %d, v0', t0, 64*b)
        div_const(a, t1, t0, 24, 191)
        a.e('v_mul_u32_u24 v%d, 24, v%d', t2, t1)
        a.e('v_sub_u32 v%d, v%d, v%d', t2, t0, t2)
        a.e('v_bfe_u32 v%d, v%d, 1, 1', t3, t1)
        a.e('v_lshlrev_b32 v%d, 2, v%d', t3, t3)
        a.e('v_xor_b32 v%d, v%d, v%d', t3, t3, t2)
        a.e('v_lshlrev_b32 v%d, 4, v%d', t3, t3)
        a.e('v_mul_u32_u24 v%d, 0x3000, v%d', W0+b, t1)
        a.e('v_add_u32 v%d, v%d, v%d', W0+b, W0+b, t3)
        a.e('v_add_u32 v%d, %d, v0', t0, 64*b)
        div_const(a, t1, t0, 20, 191)
        a.e('v_mul_u32_u24 v%d, 20, v%d', t2, t1)
        a.e('v_sub_u32 v%d, v%d, v%d', t2, t0, t2)
        a.e('v_mul_u32_u24 v%d, 1280, v%d', t3, t1)
        a.e('v_lshl_add_u32 v%d, v%d, 4, v%d', WO0+b, t2, t3)
    a.e('s_lshl_b32 s%d, s%d, 7', S_GX, S_MB)
    a.e('s_lshl_b32 s%d, s%d, 5', S_TMP, S_LI)
    a.e('s_add_u32 s%d, s%d, s%d', S_GX, S_GX, S_TMP)
    a.e('s_mul_i32 s%d, s%d, 1280', S_GX, S_GX)
    a.e('s_mul_i32 s%d, s%d, 384', S_GW, S_H)
    a.e('s_mul_i32 s%d, s%d, %d', S_TMP, S_LI, 8*12288)
    a.e('s_add_u32 s%d, s%d, s%d', S_GW, S_GW, S_TMP)
    a.e('s_lshl_b32 s%d, s%d, 2', S_GK, S_MB)
    a.e('s_add_u32 s%d, s%d, s%d', S_GK, S_GK, S_LI)
    a.e('s_lshl_b32 s%d, s%d, 5', S_GK, S_GK)
    a.e('s_lshl_b32 s%d, s%d, 3', S_TMP, S_HG)
    a.e('s_add_u32 s%d, s%d, s%d', S_GV, S_GK, S_TMP)
    a.e('s_lshl_b32 s%d, s%d, 2', S_TMP, S_HH)
    a.e('s_add_u32 s%d, s%d, s%d', S_GV, S_GV, S_TMP)
    a.e('s_mul_i32 s%d, s%d, 12288', S_GV, S_GV)
    a.e('s_add_u32 s%d, s%d, s%d', S_GK, S_GK, S_H)
    a.e('s_mul_i32 s%d, s%d, 12288', S_GK, S_GK)
    a.e('s_mov_b32 s%d, s%d', S_PK, S_GK)
    a.e('s_lshl_b32 s%d, s%d, 3', S_GO, S_HG)
    a.e('s_lshl_b32 s%d, s%d, 2', S_TMP, S_HH)
    a.e('s_add_u32 s%d, s%d, s%d', S_GO, S_GO, S_TMP)
    a.e('s_mul_i32 s%d, s%d, 192', S_GO, S_GO)
    a.e('s_lshl_b32 s%d, s%d, 3', S_TMP, S_LI)
    a.e('s_add_u32 s%d, s%d, s%d', S_GO, S_GO, S_TMP)
    a.e('s_mul_i32 s%d, s%d, 1280', S_GO, S_GO)
    a.e('s_mul_i32 s%d, s%d, 320', S_TMP, S_NS)
    a.e('s_add_u32 s%d, s%d, s%d', S_GO, S_GO, S_TMP)
    a.e('s_lshl_b32 s%d, s%d, 12', S_LXO, S_LI)
    a.e('s_add_u32 s%d, s%d, %d', S_LXO, S_LXO, XB)
    a.e('s_mul_i32 s%d, s%d, 3072', S_LWA, S_LI)
    a.e('s_add_u32 s%d, s%d, %d', S_LWA, S_LWA, WB)
    a.e('s_mul_i32 s%d, s%d, 2560', S_LWB, S_LI)
    a.e('s_add_u32 s%d, s%d, %d', S_LWB, S_LWB, WB)
    a.e('v_mov_b32 v%d, 0', VTX)
    a.e('v_mov_b32 v%d, 0', VTW)
    for i, n in enumerate(T['xneed']):
        if n:
            a.e('s_mov_b32 s%d, %d', S_TMP, n); a.e('v_writelane_b32 v%d, s%d, %d', VTX, S_TMP, i)
    for i, n in enumerate(T['wneed']):
        if n:
            a.e('s_mov_b32 s%d, %d', S_TMP, n); a.e('v_writelane_b32 v%d, s%d, %d', VTW, S_TMP, i)
    a.e('s_lshl_b32 s%d, s%d, 2', S_TMP, S_LI)
    a.e('s_add_u32 s%d, s%d, 0x%x', S_FULLA, S_TMP, F_FULL)
    a.e('v_mov_b32 v%d, 0', VT+1)
    a.e('s_getpc_b64 s[%d:%d]', SRD_T, SRD_T+1)
    a.label('pc_here')
    a.e('s_add_u32 s%d, s%d, seqtab-pc_here', SRD_T, SRD_T)
    a.e('s_addc_u32 s%d, s%d, 0', SRD_T+1, SRD_T+1)
    a.e('s_mov_b32 s%d, 512', SRD_T+2)
    a.e('s_mov_b32 s%d, 0x20000', SRD_T+3)
    for r in (S_G, S_XI, S_WI, S_WSA): a.e('s_mov_b32 s%d, 0', r)
    labv = a.newlabel('phv'); labe = a.newlabel('phe')
    a.e('s_cmp_ge_u32 s%d, 2', S_LI)
    a.e('s_cbranch_scc0 %s', labv)
    for i in range(4): a.e('s_mov_b32 s%d, s%d', SRD_PH+i, SRD_WO+i)
    a.e('s_mul_i32 s%d, s%d, %d', S_PH, S_HG, 8*245760)
    a.e('s_mul_i32 s%d, s%d, 7680', S_TMP, S_J)
    a.e('s_add_u32 s%d, s%d, s%d', S_PH, S_PH, S_TMP)
    a.e('s_sub_u32 s%d, s%d, 2', S_TMP, S_LI)
    a.e('s_mul_i32 s%d, s%d, 3584', S_TMP, S_TMP)
    a.e('s_add_u32 s%d, s%d, s%d', S_PH, S_PH, S_TMP)
    a.e('s_mov_b32 s%d, 245760', S_PHS)
    a.e('s_branch %s', labe)
    a.label(labv)
    for i in range(4): a.e('s_mov_b32 s%d, s%d', SRD_PH+i, SRD_V+i)
    a.e('s_lshl_b32 s%d, s%d, 2', S_PH, S_MB)
    a.e('s_lshr_b32 s%d, s%d, 1', S_TMP, S_HL)
    a.e('s_add_u32 s%d, s%d, s%d', S_PH, S_PH, S_TMP)
    a.e('s_lshl_b32 s%d, s%d, 5', S_PH, S_PH)
    a.e('s_lshl_b32 s%d, s%d, 3', S_TMP, S_HG)
    a.e('s_add_u32 s%d, s%d, s%d', S_PH, S_PH, S_TMP)
    a.e('s_mul_i32 s%d, s%d, 12288', S_PH, S_PH)
    a.e('s_and_b32 s%d, s%d, 1', S_TMP, S_HL)
    a.e('s_mul_i32 s%d, s%d, %d', S_TMP, S_TMP, 16*384)
    a.e('s_add_u32 s%d, s%d, s%d', S_PH, S_PH, S_TMP)
    a.e('s_lshl_b32 s%d, s%d, 11', S_TMP, S_LI)
    a.e('s_add_u32 s%d, s%d, s%d', S_PH, S_PH, S_TMP)
    a.e('s_mov_b32 s%d, 12288', S_PHS)
    a.label(labe)
    def pfh(hq):
        a.e('s_mul_i32 s%d, s%d, %d', S_TMP, S_PHS, hq)
        a.e('s_add_u32 s%d, s%d, s%d', S_TMP, S_TMP, S_PH)
        pf(SRD_PH, S_TMP, 4)
        a.e('s_lshl_b32 s%d, s%d, 2', S_NEED, S_PHS)
        a.e('s_add_u32 s%d, s%d, s%d', S_TMP, S_TMP, S_NEED)
        pf(SRD_PH, S_TMP, 4)
    if cfg.DIAG:
        a.e('v_mov_b32 v30, 0')
        stamp(a, 0)
        a.e('s_memtime s[60:61]')
        a.e('s_waitcnt lgkmcnt(0)')
        a.e('v_writelane_b32 v30, s60, 50')
    S_FREEC = 88
    a.e('s_mov_b32 s%d, 0', S_FREEC)
    def gate(vt, sidx):
        lab = a.newlabel('gate')
        a.e('v_readlane_b32 s%d, v%d, s%d', S_NEED, vt, sidx)
        a.e('s_nop 0')
        a.e('s_cmp_ge_u32 s%d, s%d', S_FREEC, S_NEED)
        a.e('s_cbranch_scc1 %s_ok', lab)
        a.label(lab)
        a.e('ds_read_b128 v[%d:%d], v%d offset:16', VQ, VQ+3, VZ)
        a.e('s_waitcnt lgkmcnt(0)')
        a.e('v_min3_u32 v%d, v%d, v%d, v%d', VQ, VQ, VQ+1, VQ+2)
        a.e('v_min_u32 v%d, v%d, v%d', VQ, VQ, VQ+3)
        a.e('s_nop 0')
        a.e('v_readfirstlane_b32 s%d, v%d', S_FREEC, VQ)
        a.e('s_add_u32 s63, s63, 1')
        a.e('s_cmp_ge_u32 s%d, s%d', S_FREEC, S_NEED)
        a.e('s_cbranch_scc1 %s_ok', lab)
        a.e('s_cmp_gt_u32 s63, 300000')
        a.e('s_cbranch_scc0 %s', lab)
        a.label(lab + '_ok')
    def flagdma(stamp_it=False):
        a.e('s_lshl_b32 s%d, s%d, 2', S_TMP, S_G)
        a.e('s_mov_b32 m0, s%d', S_FULLA)
        a.e('s_mov_b64 exec, 1')
        a.e('buffer_load_dword v%d, s[%d:%d], s%d offen lds', VT+1, SRD_T, SRD_T+3, S_TMP)
        a.e('s_mov_b64 exec, -1')
        a.e('s_add_u32 s%d, s%d, 1', S_G, S_G)
    def dma(voff, srd, soff_s, gconst, lbase_s, lconst, half=False):
        if cfg.NOLOAD: return
        a.e('s_add_u32 m0, s%d, 0x%x', lbase_s, lconst)
        a.e('s_add_u32 s%d, s%d, 0x%x', S_TMP, soff_s, gconst)
        if half: a.e('s_mov_b32 exec_hi, 0')
        a.e('buffer_load_dwordx4 v%d, s[%d:%d], s%d offen%s lds', voff, srd, srd+3, S_TMP, nt_r)
        if half: a.e('s_mov_b32 exec_hi, -1')
    def xunit(ve, vo, srd, sg, rowstride, flag=False):
        gate(VTX, S_XI)
        a.e('s_waitcnt vmcnt(%d)', cfg.VMCAP)
        a.e('s_and_b32 s%d, s%d, %d', S_XS, S_XI, cfg.NX-1)
        a.e('s_lshl_b32 s%d, s%d, 14', S_XS, S_XS)
        a.e('s_add_u32 s%d, s%d, s%d', S_XS, S_XS, S_LXO)
        for q in range(4):
            dma(ve if q % 2 == 0 else vo, srd, sg, q*8*rowstride, S_XS, q*1024)
        if flag: flagdma()
        else: a.e('s_add_u32 s%d, s%d, 1', S_G, S_G)
        a.e('s_add_u32 s%d, s%d, 1', S_XI, S_XI)
    def wunit(kind):
        gate(VTW, S_WI)
        a.e('s_mul_i32 s%d, s%d, %d', S_WS, S_WSA, WSZ)
        a.e('s_add_u32 s%d, s%d, s%d', S_WS, S_WS, S_LWA if kind == 'A' else S_LWB)
        if kind == 'A':
            for b in range(3): dma(W0+b, SRD_WQ, S_GW, 0, S_WS, b*1024)
            if not cfg.SAMEADDR: a.e('s_add_u32 s%d, s%d, %d', S_GW, S_GW, 32*12288)
        else:
            for b in range(3): dma(WO0+b, SRD_WO, S_GO, 0, S_WS, b*1024, half=(b == 2))
            if not cfg.SAMEADDR: a.e('s_add_u32 s%d, s%d, %d', S_GO, S_GO, 32*1280)
        flagdma()
        a.e('s_add_u32 s%d, s%d, 1', S_WI, S_WI)
        a.e('s_add_u32 s%d, s%d, 1', S_WSA, S_WSA)
        a.e('s_cmp_eq_u32 s%d, %d', S_WSA, cfg.NW)
        a.e('s_cselect_b32 s%d, 0, s%d', S_WSA, S_WSA)
    def stampx():
        if cfg.DIAG:
            a.e('s_memrealtime s[60:61]')
            a.e('s_mov_b32 m0, s%d', S_XI)
            a.e('s_waitcnt lgkmcnt(0)')
            a.e('v_writelane_b32 v30, s60, m0')
    def chunkA():
        xunit(XE_, XO, SRD_X, S_GX, 1280)
        if not cfg.SAMEADDR: a.e('s_add_u32 s%d, s%d, 128', S_GX, S_GX)
        wunit('A'); wunit('A')
        stampx()
    def thirdB(th):
        xunit(VE, VO, SRD_V, S_GV, 384)
        if not cfg.SAMEADDR: a.e('s_add_u32 s%d, s%d, %d', S_GV, S_GV, 128 if th < 2 else 12288-256)
        wunit('B'); wunit('B')
        stampx()
    a.e('s_mov_b32 s%d, 0', S_CNT)
    a.label('ldA1')
    pf(SRD_WQ, S_PW, 3)
    a.e('s_add_u32 s%d, s%d, %d', S_PW, S_PW, 2*786432)
    pf(SRD_K, S_PK, 4)
    a.e('s_add_u32 s%d, s%d, 4096', S_PK, S_PK)
    chunkA(); chunkA()
    a.e('s_add_u32 s%d, s%d, 1', S_CNT, S_CNT)
    a.e('s_cmp_lt_u32 s%d, 3', S_CNT)
    a.e('s_cbranch_scc1 ldA1')
    pfh(0)
    chunkA(); chunkA()
    chunkA(); chunkA()
    for th in range(3):
        xunit(VE, VO, SRD_K, S_GK, 384, flag=True)
        if not cfg.SAMEADDR: a.e('s_add_u32 s%d, s%d, 128', S_GK, S_GK)
        stampx()
    a.e('s_mov_b32 s%d, 0', S_CNT)
    a.label('ldB1')
    lab = a.newlabel('nopf')
    a.e('s_cmp_ge_u32 s%d, 3', S_CNT)
    a.e('s_cbranch_scc1 %s', lab)
    a.e('s_add_u32 s%d, s%d, s%d', S_PH, S_PH, S_PHS)
    pfh(0)
    a.label(lab)
    for th in range(3): thirdB(th)
    a.e('s_add_u32 s%d, s%d, 1', S_CNT, S_CNT)
    a.e('s_cmp_lt_u32 s%d, 4', S_CNT)
    a.e('s_cbranch_scc1 ldB1')
    a.e('s_waitcnt vmcnt(0)')
    if cfg.DIAG:
        lab = a.newlabel('dge')
        a.e('s_cmp_lg_u32 s%d, 0', S_LI)
        a.e('s_cbranch_scc1 %s', lab)
        stamp(a, 40)
        a.e('s_memtime s[60:61]')
        a.e('s_waitcnt lgkmcnt(0)')
        a.e('v_writelane_b32 v30, s60, 51')
        a.e('s_getreg_b32 s60, hwreg(HW_REG_XCC_ID)')
        a.e('s_add_u32 s60, s60, 100')
        a.e('v_writelane_b32 v30, s60, 63')
        stamp_store(a)
        a.label(lab)
    a.e('s_waitcnt lgkmcnt(0)')
    a.e('s_endpgm')

def main(outpath):
    layout()
    a = Asm()
    T = tables()
    hdr = HEADER + '; @launch grid=(256,1,1) block=(512,1,1) lds=%d\n' % LDS_TOTAL
    a.raw(hdr + '.amdgcn_target "amdgcn-amd-amdhsa--gfx950"\n.text')
    kernel_begin(a, KNAME)
    prologue(a, 'kend')
    a.e('s_cmp_ge_u32 s%d, 4', S_WAVE)
    a.e('s_cbranch_scc0 computew')
    gen_loaders(a, T)
    a.label('computew')
    gen_compute(a, T)
    a.label('kend')
    a.e('s_endpgm')
    a.raw('.p2align 8')
    a.label('seqtab')
    for i in range(128): a.raw('    .long %d' % (i+1))
    a.raw('.section .rodata,"a"\n.p2align 6')
    a.raw(kernel_desc(KNAME, 256))
    open(outpath, 'w').write(a.text())

if __name__ == '__main__':
    for k, v in os.environ.items():
        if k.startswith('CFG_'):
            name = k[4:]
            cur = getattr(cfg, name)
            setattr(cfg, name, (v not in ('0', 'False', '')) if isinstance(cur, bool) else int(v))
    main(sys.argv[1])
```

```python
import sys, os, math, struct
from asmlib import *

NAME = 'concat_heads__gqa_block_cached__mha_block_cached__near_ridge'
KNAME = NAME + '_kernel'
WS_P = 0
WS_PFLAG = 3 << 20
WS_RFLAG = (3 << 20) + (1 << 17)
WS_PART = 4 << 20
WS_DIAG = 24 << 20
WS_SIZE = 32 << 20

class Cfg: pass
cfg = Cfg()
cfg.DIAG = False; cfg.NT = False; cfg.NT_PF = False; cfg.PF_ON = True; cfg.NOLOAD = False; cfg.SAMEADDR = False
cfg.VMCAP = 40; cfg.NPHASE = 1; cfg.START = 1; cfg.DIAG3 = False; cfg.BSET = 3; cfg.SLOWCALL = True; cfg.NOSYNC = False; cfg.NOGATE = False; cfg.GSLEEP = 0; cfg.NOFLAG = False; cfg.DUMMYLDS = False; cfg.LINV = False; cfg.LPRIO = 0; cfg.CPRIO = 0; cfg.PF_K = False; cfg.NX = 4; cfg.NW = 7

S_BETA, S_HG, S_MB, S_HL = 4, 5, 6, 7
SRD_X, SRD_WQ, SRD_K, SRD_V, SRD_WO, SRD_WS, SRD_OUT, SRD_DBG = 8, 12, 16, 20, 24, 28, 32, 36
S_WAVE, S_XCD, S_J, S_H, S_NS, S_HH = 3, 40, 41, 46, 42, 43
LDS_TOTAL = 163840
XB, XSZ = 0, 16384
WSZ = 12288

def layout():
    global WB, FLAG_BASE, F_FULL, F_FREE
    WB = XB + cfg.NX * XSZ
    FLAG_BASE = WB + cfg.NW * WSZ
    assert FLAG_BASE + 64 <= LDS_TOTAL
    F_FULL = FLAG_BASE; F_FREE = FLAG_BASE + 16

def tables():
    xs = [('x', i) for i in range(10)] + [('K', t) for t in range(3)] + [('V', h, t) for h in range(4) for t in range(3)]
    wsq = [('wq', i) for i in range(20)] + [('wo', h, t, f) for h in range(4) for t in range(3) for f in range(2)]
    load = []
    for i in range(10): load += [('x', i), ('wq', 2*i), ('wq', 2*i+1)]
    load += [('K', t) for t in range(3)]
    for h in range(4):
        for t in range(3): load += [('V', h, t), ('wo', h, t, 0), ('wo', h, t, 1)]
    lidx = {u: i for i, u in enumerate(load)}
    tick = {}
    tk = 0
    for i in range(10):
        tk += 1; tick[('wq', 2*i)] = tk
        tk += 1; tick[('wq', 2*i+1)] = tk; tick[('x', i)] = tk
    for t in range(3):
        tk += 1; tick[('K', t)] = tk
    for h in range(4):
        for t in range(3):
            tk += 1; tick[('wo', h, t, 0)] = tk
            tk += 1; tick[('wo', h, t, 1)] = tk; tick[('V', h, t)] = tk
    xsl = {u: (i % cfg.NX) for i, u in enumerate(xs)}
    wsl = {u: (i % cfg.NW) for i, u in enumerate(wsq)}
    xneed = [tick[xs[i-cfg.NX]] if i >= cfg.NX else 0 for i in range(len(xs))]
    wneed = [tick[wsq[i-cfg.NW]] if i >= cfg.NW else 0 for i in range(len(wsq))]
    return dict(xs=xs, ws=wsq, load=load, lidx=lidx, tick=tick, xsl=xsl, wsl=wsl, xneed=xneed, wneed=wneed, ntick=tk)

def stamp(a, idx, vreg=30):
    if not cfg.DIAG: return
    a.e('s_memrealtime s[60:61]')
    a.e('s_waitcnt lgkmcnt(0)')
    a.e('v_writelane_b32 v%d, s60, %d', vreg, idx)
def stamp_store(a, vreg=30, vtmp=31, region=0):
    if not cfg.DIAG: return
    a.e('v_lshlrev_b32 v%d, 2, v0', vtmp)
    a.e('s_lshl_b32 s60, s2, 8')
    a.e('s_add_u32 s60, s60, 0x%x', WS_DIAG + region*65536)
    a.e('buffer_store_dword v%d, v%d, s[%d:%d], s60 offen', vreg, vtmp, SRD_WS, SRD_WS+3)

def prologue(a, endlabel):
    if cfg.DIAG: a.e('s_memrealtime s[90:91]')
    a.e('s_cmp_ge_u32 s2, 256')
    a.e('s_cbranch_scc1 %s', endlabel)
    a.e('s_and_b32 s%d, s2, 7', S_XCD)
    a.e('s_lshr_b32 s%d, s2, 3', S_J)
    a.e('s_lshr_b32 s%d, s%d, 2', S_BETA, S_XCD)
    a.e('s_and_b32 s%d, s%d, 3', S_HG, S_XCD)
    a.e('s_and_b32 s%d, s%d, 3', S_MB, S_J)
    a.e('s_lshr_b32 s%d, s%d, 2', S_HL, S_J)
    a.e('s_mul_i32 s47, s%d, 40', S_BETA)
    a.e('s_add_u32 s44, s0, s47')
    a.e('s_addc_u32 s45, s1, 0')
    a.e('s_load_dwordx2 s[%d:%d], s[44:45], 0', SRD_X, SRD_X+1)
    a.e('s_load_dwordx2 s[%d:%d], s[44:45], 24', SRD_WQ, SRD_WQ+1)
    a.e('s_load_dwordx2 s[%d:%d], s[44:45], 8', SRD_K, SRD_K+1)
    a.e('s_load_dwordx2 s[%d:%d], s[44:45], 16', SRD_V, SRD_V+1)
    a.e('s_load_dwordx2 s[%d:%d], s[44:45], 32', SRD_WO, SRD_WO+1)
    a.e('s_load_dwordx2 s[%d:%d], s[0:1], 80', SRD_OUT, SRD_OUT+1)
    a.e('s_load_dwordx2 s[%d:%d], s[0:1], 88', SRD_DBG, SRD_DBG+1)
    a.e('s_load_dwordx2 s[%d:%d], s[0:1], 96', SRD_WS, SRD_WS+1)
    a.e('v_lshrrev_b32 v1, 6, v0')
    a.e('v_and_b32 v0, 63, v0')
    for srd, sz in ((SRD_X, 655360), (SRD_WQ, 7864320), (SRD_K, 6291456), (SRD_V, 6291456), (SRD_WO, 7864320),
                    (SRD_WS, WS_SIZE), (SRD_OUT, 1310720), (SRD_DBG, 256)):
        a.e('s_mov_b32 s%d, 0x%x', srd+2, sz)
        a.e('s_mov_b32 s%d, 0x20000', srd+3)
    a.e('v_readfirstlane_b32 s%d, v1', S_WAVE)
    a.e('s_lshl_b32 s%d, s%d, 3', S_H, S_HG)
    a.e('s_add_u32 s%d, s%d, s%d', S_H, S_H, S_HL)
    a.e('s_and_b32 s%d, s%d, 3', S_NS, S_HL)
    a.e('s_lshr_b32 s%d, s%d, 2', S_HH, S_HL)

def div_const(a, vd, vs, d, maxv):
    M = -(-65536 // d)
    for x in range(maxv+1):
        assert (x*M) >> 16 == x // d, (x, d)
    a.e('v_mul_u32_u24 v%d, 0x%x, v%d', vd, M, vs)
    a.e('v_lshrrev_b32 v%d, 16, v%d', vd, vd)

class LdsTrack:
    def __init__(self, a):
        self.a = a; self.q = []
    def read(self, text, lo, n):
        self.a.e(text); self.q.append((lo, lo+n-1))
    def other(self, text):
        self.a.e(text); self.q.append((-1, -1))
    def need(self, *ranges):
        last = -1
        for i, (lo, hi) in enumerate(self.q):
            for (l, n) in ranges:
                if not (hi < l or lo > l+n-1): last = i
        if last >= 0:
            k = min(15, len(self.q) - 1 - last)
            self.a.e('s_waitcnt lgkmcnt(%d)', k)
            self.q = self.q[len(self.q)-k:] if k else []
    def drain(self):
        if self.q:
            self.a.e('s_waitcnt lgkmcnt(0)'); self.q = []

def spin_flags(a, off, need, vz, vt, stmp, sleep=0):
    lab = a.newlabel('sp')
    a.label(lab)
    a.e('ds_read_b128 v[%d:%d], v%d offset:%d', vt, vt+3, vz, off)
    a.e('s_waitcnt lgkmcnt(0)')
    a.e('v_min3_u32 v%d, v%d, v%d, v%d', vt, vt, vt+1, vt+2)
    a.e('v_min_u32 v%d, v%d, v%d', vt, vt, vt+3)
    a.e('s_nop 0')
    a.e('v_readfirstlane_b32 s%d, v%d', stmp, vt)
    a.e('s_add_u32 s63, s63, 1')
    a.e('s_cmp_gt_u32 s63, 0x%x', 300000)
    a.e('s_cbranch_scc1 %s_ok', lab)
    a.e('s_cmp_ge_u32 s%d, %d', stmp, need)
    if sleep:
        a.e('s_cbranch_scc1 %s_ok', lab)
        a.e('s_sleep %d', sleep)
        a.e('s_branch %s', lab)
    else:
        a.e('s_cbranch_scc0 %s', lab)
    a.label(lab + '_ok')

def gen_compute(a, T):
    lidx, tick, xsl, wsl = T['lidx'], T['tick'], T['xsl'], T['wsl']
    XREL = 2
    WEl, WOl, WEh, WOh = 6, 7, 8, 9
    WBl, WBh = 6, 8
    VFA, VFR, VCNT, PV = 10, 1, 15, 11
    VZ, VFL, TMP = 14, 252, 248
    VF1 = 12
    t0, t1, t2, t3 = TMP, TMP+1, TMP+2, TMP+3
    ACC = 16
    AF = [112, 136]; XF = [160, 164]
    VW, OA, SACC = 16, 168, 96
    QBm = [OA+0, OA+4, OA+8, OA+12] + [OA+16*k+q for k in range(1, 5) for q in (0, 4)]
    QBm += []
    VWB0 = [OA+16*(nt+1)+8 for nt in range(4)] + [104]
    PA = [96, 100]; PBq = [132, 156]
    PK = OA
    S_NONCE = 62
    L = LdsTrack(a)
    a.e('s_mov_b32 s63, 0')
    if cfg.DIAG: a.e('s_mov_b32 s99, 0'); a.e('s_mov_b32 s98, 0')
    if cfg.CPRIO: a.e('s_setprio %d', cfg.CPRIO)
    a.e('v_mov_b32 v%d, 0x%x', VZ, FLAG_BASE)
    a.e('v_and_b32 v%d, 3, v0', t0)
    a.e('v_lshl_add_u32 v%d, v%d, 2, v%d', VFA, t0, VZ)
    a.e('v_lshlrev_b32 v%d, 2, v0', t0)
    a.e('v_add_u32 v%d, 0x%x, v%d', VFR, FLAG_BASE + 64, t0)
    a.e('s_lshl_b32 s58, s%d, 2', S_WAVE)
    a.e('s_add_u32 s58, s58, 0x%x', F_FREE)
    a.e('v_writelane_b32 v%d, s58, 0', VFR)
    a.e('v_mov_b32 v%d, 0', VCNT)
    a.e('v_and_b32 v%d, 31, v0', t0)
    a.e('v_lshrrev_b32 v%d, 5, v0', t1)
    a.e('v_bfe_u32 v%d, v0, 1, 3', t2)
    a.e('v_xor_b32 v%d, v%d, v%d', t2, t2, t1)
    a.e('s_lshl_b32 s47, s%d, 12', S_WAVE)
    a.e('v_lshlrev_b32 v%d, 7, v%d', t3, t0)
    a.e('v_add_u32 v%d, s47, v%d', t3, t3)
    if XB: a.e('v_add_u32 v%d, %d, v%d', t3, XB, t3)
    for s_ in range(4):
        a.e('v_xor_b32 v%d, %d, v%d', XREL+s_, 2*s_, t2)
        a.e('v_lshl_add_u32 v%d, v%d, 4, v%d', XREL+s_, XREL+s_, t3)
        a.e('v_add_u32 v%d, 0x10000, v%d', 252+s_, XREL+s_)
    a.e('v_bfe_u32 v%d, v0, 2, 2', t0)
    a.e('v_lshrrev_b32 v%d, 5, v0', t1)
    a.e('v_lshl_add_u32 v%d, v%d, 3, v%d', t0, t1, t0)
    a.e('v_mul_u32_u24 v%d, 384, v%d', t0, t0)
    a.e('v_bfe_u32 v%d, v0, 4, 1', t1)
    a.e('v_lshl_add_u32 v%d, v%d, 5, v%d', t0, t1, t0)
    a.e('v_and_b32 v%d, 1, v0', t1)
    a.e('v_lshl_add_u32 v%d, v%d, 4, v%d', t0, t1, t0)
    a.e('v_bfe_u32 v%d, v0, 1, 1', t1)
    a.e('v_lshl_add_u32 v%d, v%d, 3, v%d', t0, t1, t0)
    a.e('v_add_u32 v%d, 0x%x, v%d', t0, WB, t0)
    a.e('v_bfe_u32 v%d, v0, 3, 1', t1)
    a.e('v_lshlrev_b32 v%d, 6, v%d', t1, t1)
    a.e('v_add_u32 v%d, v%d, v%d', WEl, t0, t1)
    a.e('v_sub_u32 v%d, v%d, v%d', WOl, t0, t1)
    a.e('v_add_u32 v%d, %d, v%d', WEh, 4*WSZ, WEl)
    a.e('v_add_u32 v%d, %d, v%d', WOh, 4*WSZ, WOl)
    a.e('v_lshlrev_b32 v%d, 4, v0', PV)
    a.e('s_waitcnt lgkmcnt(0)')
    a.e('s_barrier')

    slow = []
    bg = []
    def emit_bg(n):
        for _ in range(n):
            if bg: a.e(bg.pop(0))
    def flag_prefetch():
        L.read('ds_read_b32 v%d, v%d' % (VF1, VFA), VF1, 1)
    pend = {}
    def flag_cmp(unit):
        L.need((VF1, 1))
        need = lidx[unit] + 1
        a.e('v_cmp_gt_u32 vcc, %d, v%d', need, VF1)
        pend['need'] = need
    def flag_branch():
        if cfg.NOSYNC: return
        if cfg.SLOWCALL:
            a.e('s_mov_b32 s61, %d', pend['need'])
            a.e('s_getpc_b64 s[56:57]')
            a.e('s_cbranch_vccnz common_slow')
        else:
            lab = a.newlabel('fl')
            a.e('s_cbranch_vccnz %s_slow', lab)
            a.label(lab)
            slow.append((lab, pend['need']))
    def flag_check(unit):
        flag_cmp(unit); a.e('s_nop 4'); flag_branch()
    def signal_free():
        a.e('v_add_u32 v%d, 1, v%d', VCNT, VCNT)
        L.other('ds_write_b32 v%d, v%d' % (VFR, VCNT))
    XRELH = 252
    def xread(dst, xu, xs_):
        sl = xsl[xu]
        if sl >= 4: return ('ds_read_b128 v[%d:%d], v%d offset:%d' % (dst, dst+3, XRELH+xs_, (sl-4)*XSZ), dst, 4)
        return ('ds_read_b128 v[%d:%d], v%d offset:%d' % (dst, dst+3, XREL+xs_, sl*XSZ), dst, 4)
    def reads(kind, xu, xs_, wu, ws_, k):
        r = [xread(XF[k], xu, xs_)]
        sl = wsl[wu]; hi = sl >= 4; so = (sl - 4 if hi else sl)*WSZ
        for t in range(6 if kind == 'A' else 5):
            for u in range(2):
                d = AF[k]+4*t+2*u
                if kind == 'A':
                    base = (WEh if hi else WEl) if t % 2 == 0 else (WOh if hi else WOl)
                    off = so + (16*ws_+4*u)*384 + 64*t
                else:
                    base = WBh if hi else WBl
                    off = so + (16*ws_+4*u)*320 + 64*t
                r.append(('ds_read_b64_tr_b16 v[%d:%d], v%d offset:%d' % (d, d+1, base, off), d, 2))
        return r
    def step(kind, k, nreads, per, first=False, hooks=None, nbg=0):
        nt_ = 6 if kind == 'A' else 5
        idx = 0
        for t in range(nt_):
            L.need((AF[k]+4*t, 4), (XF[k], 4))
            D = (ACC if kind == 'A' else VW) + 16*t
            c = '0' if first else 'v[%d:%d]' % (D, D+15)
            if kind == 'A':
                a.e('v_mfma_f32_32x32x16_bf16 v[%d:%d], v[%d:%d], v[%d:%d], %s', D, D+15, AF[k]+4*t, AF[k]+4*t+3, XF[k], XF[k]+3, c)
            else:
                a.e('v_mfma_f32_32x32x16_bf16 v[%d:%d], v[%d:%d], v[%d:%d], %s', D, D+15, XF[k], XF[k]+3, AF[k]+4*t, AF[k]+4*t+3, c)
            if hooks and t in hooks:
                for h in (hooks[t] if isinstance(hooks[t], list) else [hooks[t]]):
                    r = h()
                    if r is not None: nreads = r
            n = 0
            for _ in range(per[t]):
                if idx < len(nreads):
                    L.read(*nreads[idx]); idx += 1; n += 1
            emit_bg(max(0, min(nbg, 5 - n)))
        assert idx == len(nreads), (idx, len(nreads), kind)
    def stampc(i):
        if cfg.DIAG:
            a.e('s_memrealtime s[%d:%d]', 64+2*i, 65+2*i)
            a.e('s_mov_b32 s%d, s63', 80+i)
            if i < 3:
                a.e('s_memtime s[%d:%d]', 88+2*i, 89+2*i)
                a.e('v_writelane_b32 v13, s99, %d', i); a.e('v_writelane_b32 v13, s98, %d', 4+i)
    def needflag(u):
        if u[0] == 'wq': return u[1] % 2 == 0
        if u[0] == 'wo': return u[3] == 0
        return True
    def flagunit(u):
        if u[0] == 'wq': return ('wq', u[1] + 1)
        if u[0] == 'wo': return ('wo', u[1], u[2], 1)
        return u
    def unit(kind, wu, xu, xs0, first, nxt_unit, nxt_reads, extra0=None, nbg=0):
        nt_ = 6 if kind == 'A' else 5
        per0 = [4,3,3,3,0,0] if kind == 'A' else [4,4,3,0,0]
        chk = nxt_unit is not None and needflag(nxt_unit)
        hk0 = {(4 if kind == 'A' else 3): flag_prefetch} if chk else {}
        if extra0: hk0.update(extra0)
        rd1 = reads(kind, xu, xs0+1, wu, 1, 1)
        step(kind, 0, rd1, per0, first=first, hooks=hk0, nbg=nbg)
        if nxt_unit:
            def h0():
                if chk: flag_cmp(flagunit(nxt_unit))
                else: L.need((rd1[-1][1], rd1[-1][2]))
                signal_free()
            def h1():
                if chk: flag_branch()
                return nxt_reads()
            nr = len(nxt_reads())
            if kind == 'A': per1 = [0,4,3,3,3,0] if nr == 13 else [0,2,2,0,0,0]
            else: per1 = [0,4,4,3,0] if nr == 11 else [0,2,2,0,0]
            step(kind, 1, [], per1, hooks={0: h0, 1: h1}, nbg=nbg)
        else:
            def h0(): L.drain(); signal_free()
            step(kind, 1, [], [0]*nt_, hooks={1: h0}, nbg=nbg)

    KF = [AF[0]+4*i for i in range(6)] + [AF[1]+4*i for i in range(6)]
    flag_prefetch(); flag_check(('wq', 1))
    if cfg.DIAG:
        a.e('s_memrealtime s[76:77]'); a.e('s_memtime s[94:95]'); a.e('s_waitcnt lgkmcnt(0)')
    for r in reads('A', ('x', 0), 0, ('wq', 0), 0, 0): L.read(*r)
    for wi in range(20):
        i, hf = wi // 2, wi % 2
        ex0 = None
        if wi == 8:
            def nl():
                a.e('v_mov_b32 v%d, 0', t0)
                a.e('buffer_load_dword v%d, v%d, s[%d:%d], 0 offen sc1', t1, t0, SRD_DBG, SRD_DBG+3)
            ex0 = {0: nl}
        if wi < 19:
            nu = ('wq', wi+1)
            nr = (lambda i=i, hf=hf, nu=nu: reads('A', ('x', i+1 if hf else i), 0 if hf else 2, nu, 0, 0))
        else:
            nu = ('K', 0)
            nr = (lambda: [xread(KF[s_], ('K', 0), s_) for s_ in range(4)])
        unit('A', ('wq', wi), ('x', i), 2*hf, wi == 0, nu, nr, extra0=ex0)
    lab = a.newlabel('nonce')
    a.e('s_waitcnt vmcnt(0)')
    a.e('s_nop 0')
    a.e('v_readfirstlane_b32 s%d, v%d', S_NONCE, t1)
    a.e('s_nop 0')
    a.e('s_cmp_lg_u32 s%d, 0', S_NONCE)
    a.e('s_cbranch_scc0 %s', lab)
    a.label(lab + '_ok')
    slow_nonce = lab
    a.e('v_bfe_u32 v%d, v0, 2, 2', t0)
    a.e('v_lshrrev_b32 v%d, 5, v0', t1)
    a.e('v_lshl_add_u32 v%d, v%d, 3, v%d', t0, t1, t0)
    a.e('v_mul_u32_u24 v%d, 320, v%d', t0, t0)
    a.e('v_bfe_u32 v%d, v0, 4, 1', t1)
    a.e('v_lshl_add_u32 v%d, v%d, 5, v%d', t0, t1, t0)
    a.e('v_and_b32 v%d, 3, v0', t1)
    a.e('v_lshl_add_u32 v%d, v%d, 3, v%d', t0, t1, t0)
    a.e('v_add_u32 v%d, 0x%x, v%d', WBl, WB, t0)
    a.e('v_add_u32 v%d, %d, v%d', WBh, 4*WSZ, WBl)
    a.e('s_lshl_b32 s51, s%d, 4', S_BETA)
    a.e('s_lshl_b32 s47, s%d, 2', S_MB)
    a.e('s_add_u32 s51, s51, s47')
    a.e('s_add_u32 s51, s51, s%d', S_WAVE)
    a.e('s_lshl_b32 s51, s51, 5')
    a.e('s_lshl_b32 s52, s%d, 3', S_HG)
    a.e('s_lshl_b32 s47, s%d, 2', S_HH)
    a.e('s_add_u32 s52, s52, s47')
    a.e('s_add_u32 s52, s52, s51')
    a.e('s_lshl_b32 s52, s52, 11')
    a.e('s_add_u32 s52, s52, 0x%x', WS_P)
    stampc(0)
    def cvtq(sp):
        t, hf = sp // 2, sp % 2
        return ['v_cvt_pk_bf16_f32 v%d, v%d, v%d' % (QBm[sp]+j, ACC+16*t+8*hf+2*j, ACC+16*t+8*hf+2*j+1) for j in range(4)]
    for sp in range(4):
        for x in cvtq(sp): a.e(x)
    L.drain(); signal_free()
    flag_prefetch(); flag_check(('K', 1))
    for s_ in range(4): L.read(*xread(KF[4+s_], ('K', 1), s_))
    for sp in range(4, 8):
        for x in cvtq(sp): a.e(x)
    L.drain(); signal_free()
    flag_prefetch(); flag_check(('K', 2))
    for s_ in range(4): L.read(*xread(KF[8+s_], ('K', 2), s_))
    for sp in range(8, 12): bg.extend(cvtq(sp))
    emit_bg(16)
    for sp in range(12):
        L.need((KF[sp], 4))
        c = '0' if sp == 0 else 'v[%d:%d]' % (SACC, SACC+15)
        a.e('v_mfma_f32_32x32x16_bf16 v[%d:%d], v[%d:%d], v[%d:%d], %s', SACC, SACC+15, KF[sp], KF[sp]+3, QBm[sp], QBm[sp]+3, c)
        if sp == 7:
            L.drain(); signal_free(); flag_prefetch()
        if sp == 9: flag_cmp(('wo', 0, 0, 1))
        if sp == 10:
            flag_branch()
            for r in reads('B', ('V', 0, 0), 0, ('wo', 0, 0, 0), 0, 0): L.read(*r)
    cval = (192 ** -0.5) * math.log2(math.e)
    cb = struct.unpack('<I', struct.pack('<f', cval))[0]
    a.e('s_mov_b32 s50, 0x%x', cb)
    a.e('s_add_u32 s53, s51, s%d', S_H)
    a.e('s_lshl_b32 s53, s53, 11')
    a.e('s_add_u32 s53, s53, 0x%x', WS_P)
    q = []
    q.append('s_nop 7')
    q.append('v_max3_f32 v%d, v%d, v%d, v%d' % (t0, SACC, SACC+1, SACC+2))
    for r in range(3, 15, 2):
        q.append('v_max3_f32 v%d, v%d, v%d, v%d' % (t0, t0, SACC+r, SACC+r+1))
    q.append('v_max_f32 v%d, v%d, v%d' % (t0, t0, SACC+15))
    q.append('v_mov_b32 v%d, v%d' % (t1, t0))
    q.append('s_nop 1')
    q.append('v_permlane32_swap_b32 v%d, v%d' % (t0, t1))
    q.append('v_max_f32 v%d, v%d, v%d' % (t0, t0, t1))
    q.append('v_mul_f32 v%d, s50, v%d' % (t2, t0))
    for r in range(16): q.append('v_fma_f32 v%d, v%d, s50, -v%d' % (SACC+r, SACC+r, t2))
    for r in range(16): q.append('v_exp_f32 v%d, v%d' % (SACC+r, SACC+r))
    q.append('s_nop 0')
    q.append('v_add_f32 v%d, v%d, v%d' % (t0, SACC, SACC+1))
    q.append('v_add_f32 v%d, v%d, v%d' % (t1, SACC+2, SACC+3))
    for r in range(4, 16, 2):
        q.append('v_add_f32 v%d, v%d, v%d' % (t0, t0, SACC+r))
        q.append('v_add_f32 v%d, v%d, v%d' % (t1, t1, SACC+r+1))
    q.append('v_add_f32 v%d, v%d, v%d' % (t0, t0, t1))
    q.append('v_mov_b32 v%d, v%d' % (t1, t0))
    q.append('s_nop 1')
    q.append('v_permlane32_swap_b32 v%d, v%d' % (t0, t1))
    q.append('v_add_f32 v%d, v%d, v%d' % (t0, t0, t1))
    q.append('v_rcp_f32 v%d, v%d' % (t0, t0))
    q.append('s_nop 0')
    for r in range(16): q.append('v_mul_f32 v%d, v%d, v%d' % (SACC+r, SACC+r, t0))
    for j in range(8): q.append('v_cvt_pk_bf16_f32 v%d, v%d, v%d' % (PK+j, SACC+2*j, SACC+2*j+1))
    q.append('buffer_store_dwordx4 v[%d:%d], v%d, s[%d:%d], s53 offen sc1' % (PK, PK+3, PV, SRD_WS, SRD_WS+3))
    q.append('buffer_store_dwordx4 v[%d:%d], v%d, s[%d:%d], s53 offen offset:1024 sc1' % (PK+4, PK+7, PV, SRD_WS, SRD_WS+3))
    bg.extend(q)

    def g2cvt(dst_first, p, first=False, src=None):
        pass
    def cvt_tile(nt, dst):
        d = VW + 16*nt
        o = d if dst is None else dst[nt]
        return ['v_cvt_pk_bf16_f32 v%d, v%d, v%d' % (o+j, d+2*j, d+2*j+1) for j in range(8)]
    def g2(src, p, first=False, fill=None):
        j = 0
        for nt in range(5):
            s_ = VW+16*nt if src is None else src[nt]
            D = OA + 16*nt
            for z in range(2):
                c = '0' if (first and z == 0) else 'v[%d:%d]' % (D, D+15)
                a.e('v_mfma_f32_32x32x16_bf16 v[%d:%d], v[%d:%d], v[%d:%d], %s', D, D+15, s_+4*z, s_+4*z+3, p[z], p[z]+3, c)
                if fill and j < len(fill):
                    for x in fill[j]: a.e(x)
                j += 1
    def g2_inplace(p):
        for x in cvt_tile(0, None): a.e(x)
        a.e('s_nop 1')
        fill = []
        for nt in range(1, 5):
            c = cvt_tile(nt, None)
            fill += [c[:4], c[4:] + ['s_nop 1']]
        g2(None, p, fill=fill)
    def p_load(hq, p):
        a.e('s_add_u32 s47, s52, %d', hq*2048)
        for z in range(2):
            a.e('buffer_load_dwordx4 v[%d:%d], v%d, s[%d:%d], s47 offen offset:%d sc1', p[z], p[z]+3, PV, SRD_WS, SRD_WS+3, z*1024)
    def publish_p():
        assert not bg
        a.e('s_waitcnt vmcnt(0)')
        a.e('s_lshl_b32 s47, s2, 2')
        a.e('s_add_u32 s47, s47, s%d', S_WAVE)
        a.e('s_lshl_b32 s47, s47, 6')
        a.e('s_add_u32 s47, s47, 0x%x', WS_PFLAG)
        a.e('v_mov_b32 v%d, 0', t0)
        a.e('v_mov_b32 v%d, s%d', t1, S_NONCE)
        a.e('s_mov_b64 exec, 1')
        a.e('buffer_store_dword v%d, v%d, s[%d:%d], s47 offen sc1', t1, t0, SRD_WS, SRD_WS+3)
        a.e('s_mov_b64 exec, -1')
    def poll_p():
        lab = a.newlabel('pollp')
        a.e('v_and_b32 v%d, 3, v0', t0)
        a.e('v_lshlrev_b32 v%d, 5, v%d', t0, t0)
        a.e('s_lshl_b32 s47, s%d, 7', S_HH)
        a.e('s_lshl_b32 s48, s%d, 3', S_MB)
        a.e('s_add_u32 s47, s47, s48')
        a.e('s_add_u32 s47, s47, s%d', S_XCD)
        a.e('v_add_u32 v%d, s47, v%d', t0, t0)
        a.e('v_lshlrev_b32 v%d, 8, v%d', t0, t0)
        a.e('s_lshl_b32 s47, s%d, 6', S_WAVE)
        a.e('s_add_u32 s47, s47, 0x%x', WS_PFLAG)
        a.label(lab)
        a.e('buffer_load_dword v%d, v%d, s[%d:%d], s47 offen sc1', t2, t0, SRD_WS, SRD_WS+3)
        a.e('s_waitcnt vmcnt(0)')
        a.e('v_cmp_ne_u32 vcc, s%d, v%d', S_NONCE, t2)
        a.e('s_add_u32 s63, s63, 64')
        a.e('s_cmp_gt_u32 s63, 300000')
        a.e('s_cbranch_scc1 %s_done', lab)
        a.e('s_nop 2')
        a.e('s_cbranch_vccnz %s', lab)
        a.label(lab + '_done')
    def head(hq):
        for th in range(3):
            for hf in range(2):
                wu = ('wo', hq, th, hf)
                last = (th == 2 and hf == 1)
                if not last:
                    nu = ('wo', hq, th + hf, 1 - hf)
                    nr = (lambda nu=nu, hf=hf: reads('B', ('V', hq, nu[2]), 0 if hf else 2, nu, 0, 0))
                elif hq < 3:
                    nu = ('wo', hq+1, 0, 0)
                    nr = (lambda nu=nu: reads('B', ('V', hq+1, 0), 0, nu, 0, 0))
                else:
                    nu = None; nr = None
                ex0 = None
                if hq == 0 and th == 2 and hf == 0: ex0 = {0: publish_p}
                if hq == 1 and th == 1 and hf == 0: ex0 = {0: (lambda: (poll_p(), p_load(0, PA), p_load(1, PBq), None)[-1])}
                if hq == 2 and th == 1 and hf == 0: ex0 = {0: (lambda: p_load(2, PA))}
                if hq == 3 and th == 1 and hf == 0: ex0 = {0: (lambda: p_load(3, PBq))}
                unit('B', wu, ('V', hq, th), 2*hf, th == 0 and hf == 0, nu, nr, extra0=ex0, nbg=(5 if bg else 0))
    head(0)
    stampc(1)
    a.e('s_nop 7'); a.e('s_nop 3')
    for nt in range(5):
        for x in cvt_tile(nt, VWB0): a.e(x)
    head(1)
    a.e('s_nop 7'); a.e('s_nop 3')
    a.e('s_waitcnt vmcnt(0)')
    fill = []
    for nt in range(5):
        c = cvt_tile(nt, None)
        fill += [c[:4], c[4:]]
    g2(VWB0, PA, first=True, fill=fill)
    a.e('s_nop 1')
    g2(None, PBq)
    head(2)
    a.e('s_nop 7'); a.e('s_nop 3')
    a.e('s_waitcnt vmcnt(0)')
    g2_inplace(PA)
    head(3)
    a.e('s_nop 7'); a.e('s_nop 3')
    a.e('s_waitcnt vmcnt(0)')
    g2_inplace(PBq)
    stampc(2)
    a.e('s_lshl_b32 s53, s%d, 2', S_BETA)
    a.e('s_add_u32 s53, s53, s%d', S_MB)
    a.e('s_lshl_b32 s53, s53, 2')
    a.e('s_add_u32 s53, s53, s%d', S_NS)
    a.e('s_lshl_b32 s53, s53, 3')
    a.e('s_lshl_b32 s54, s%d, 1', S_HG)
    a.e('s_add_u32 s54, s54, s%d', S_HH)
    a.e('s_nop 7'); a.e('s_nop 3')
    Tq = 16
    for ih in range(2):
        for nt in range(5):
            for j in range(4):
                a.e('v_cvt_pk_bf16_f32 v%d, v%d, v%d', Tq+20*ih+4*nt+j, OA+16*nt+8*ih+2*j, OA+16*nt+8*ih+2*j+1)
    for ih in range(2):
        a.e('s_lshl_b32 s47, s%d, 1', S_WAVE)
        a.e('s_add_u32 s47, s47, %d', ih)
        a.e('s_add_u32 s47, s47, s53')
        a.e('s_lshl_b32 s47, s47, 3')
        a.e('s_add_u32 s47, s47, s54')
        a.e('s_mul_i32 s47, s47, 5120')
        a.e('s_add_u32 s47, s47, 0x%x', WS_PART)
        for nt in range(5):
            if nt == 4: a.e('s_add_u32 s47, s47, 4096')
            a.e('buffer_store_dwordx4 v[%d:%d], v%d, s[%d:%d], s47 offen offset:%d sc1', Tq+20*ih+4*nt, Tq+20*ih+4*nt+3, PV, SRD_WS, SRD_WS+3, 1024*(nt % 4))
    a.e('s_waitcnt vmcnt(0)')
    stampc(3)
    a.e('s_lshl_b32 s47, s2, 2')
    a.e('s_add_u32 s47, s47, s%d', S_WAVE)
    a.e('s_lshl_b32 s47, s47, 6')
    a.e('s_add_u32 s47, s47, 0x%x', WS_RFLAG)
    a.e('v_mov_b32 v%d, 0', t0)
    a.e('v_mov_b32 v%d, s%d', t1, S_NONCE)
    a.e('s_mov_b64 exec, 1')
    a.e('buffer_store_dword v%d, v%d, s[%d:%d], s47 offen sc1', t1, t0, SRD_WS, SRD_WS+3)
    a.e('s_mov_b64 exec, -1')
    a.e('v_bfe_u32 v%d, v0, 1, 2', t0)
    a.e('v_and_b32 v%d, 1, v0', t1)
    a.e('v_lshl_add_u32 v%d, v%d, 7, v%d', t0, t1, t0)
    a.e('s_lshl_b32 s47, s%d, 2', S_BETA)
    a.e('s_lshl_b32 s48, s%d, 3', S_MB)
    a.e('s_add_u32 s47, s47, s48')
    a.e('s_lshl_b32 s48, s%d, 5', S_NS)
    a.e('s_add_u32 s47, s47, s48')
    a.e('v_add_u32 v%d, s47, v%d', t0, t0)
    a.e('v_lshlrev_b32 v%d, 8, v%d', t0, t0)
    a.e('s_lshr_b32 s48, s54, 1')
    a.e('s_lshl_b32 s48, s48, 6')
    a.e('s_add_u32 s47, s48, 0x%x', WS_RFLAG)
    lab = a.newlabel('pollr')
    a.label(lab)
    a.e('buffer_load_dword v%d, v%d, s[%d:%d], s47 offen sc1', t2, t0, SRD_WS, SRD_WS+3)
    a.e('s_waitcnt vmcnt(0)')
    a.e('v_cmp_ne_u32 vcc, s%d, v%d', S_NONCE, t2)
    a.e('s_add_u32 s63, s63, 64')
    a.e('s_cmp_gt_u32 s63, 600000')
    a.e('s_cbranch_scc1 %s_done', lab)
    a.e('s_nop 2')
    a.e('s_cbranch_vccnz %s', lab)
    a.label(lab + '_done')
    stampc(4)
    a.e('s_add_u32 s47, s53, s54')
    a.e('s_mul_i32 s47, s47, 40960')
    a.e('s_add_u32 s47, s47, 0x%x', WS_PART)
    a.e('s_lshl_b32 s48, s%d, 10', S_WAVE)
    a.e('s_add_u32 s48, s48, s47')
    a.e('s_add_u32 s49, s47, 4096')
    Rq = 16; Rq2 = 48
    for src in range(8):
        a.e('buffer_load_dwordx4 v[%d:%d], v%d, s[%d:%d], s48 offen sc1', Rq+4*src, Rq+4*src+3, PV, SRD_WS, SRD_WS+3)
        a.e('s_add_u32 s48, s48, 5120')
    a.e('s_lshl_b32 s55, s%d, 4', S_WAVE)
    a.e('s_mov_b64 s[56:57], 0xffff')
    a.e('s_lshl_b64 s[56:57], s[56:57], s55')
    a.e('s_mov_b64 exec, s[56:57]')
    for src in range(8):
        a.e('buffer_load_dwordx4 v[%d:%d], v%d, s[%d:%d], s49 offen sc1', Rq2+4*src, Rq2+4*src+3, PV, SRD_WS, SRD_WS+3)
        a.e('s_add_u32 s49, s49, 5120')
    a.e('s_mov_b64 exec, -1')
    a.e('s_lshl_b32 s47, s%d, 2', S_MB)
    a.e('s_lshr_b32 s48, s54, 1')
    a.e('s_add_u32 s47, s47, s48')
    a.e('s_mul_i32 s47, s47, %d', 32*2560)
    a.e('s_mul_i32 s48, s%d, 1280', S_BETA)
    a.e('s_add_u32 s47, s47, s48')
    a.e('s_mul_i32 s48, s%d, 320', S_NS)
    a.e('s_add_u32 s47, s47, s48')
    a.e('s_and_b32 s48, s54, 1')
    a.e('s_lshl_b32 s48, s48, 5')
    a.e('s_add_u32 s47, s47, s48')
    a.e('v_and_b32 v%d, 31, v0', t0)
    a.e('v_mul_u32_u24 v%d, 2560, v%d', t0, t0)
    a.e('v_lshrrev_b32 v%d, 5, v0', t1)
    a.e('v_lshl_add_u32 v%d, v%d, 3, v%d', t0, t1, t0)
    def reduce_store(R, A8, soff):
        for src in range(8):
            a.e('s_waitcnt vmcnt(%d)', remaining[0]); remaining[0] -= 1
            for j in range(4):
                s = R+4*src+j
                if src == 0:
                    a.e('v_lshlrev_b32 v%d, 16, v%d', A8+2*j, s)
                    a.e('v_and_b32 v%d, 0xffff0000, v%d', A8+2*j+1, s)
                else:
                    a.e('v_lshlrev_b32 v%d, 16, v%d', t2, s)
                    a.e('v_and_b32 v%d, 0xffff0000, v%d', t3, s)
                    a.e('v_add_f32 v%d, v%d, v%d', A8+2*j, A8+2*j, t2)
                    a.e('v_add_f32 v%d, v%d, v%d', A8+2*j+1, A8+2*j+1, t3)
        for j in range(4):
            a.e('v_cvt_pk_bf16_f32 v%d, v%d, v%d', A8+j, A8+2*j, A8+2*j+1)
        a.e('buffer_store_dwordx2 v[%d:%d], v%d, s[%d:%d], s%d offen', A8, A8+1, t0, SRD_OUT, SRD_OUT+3, soff)
        a.e('buffer_store_dwordx2 v[%d:%d], v%d, s[%d:%d], s%d offen offset:16', A8+2, A8+3, t0, SRD_OUT, SRD_OUT+3, soff)
    remaining = [15]
    a.e('s_lshl_b32 s48, s%d, 6', S_WAVE)
    a.e('s_add_u32 s48, s48, s47')
    a.e('s_add_u32 s49, s47, 256')
    reduce_store(Rq, 80, 48)
    remaining[0] = 7 + 2
    a.e('s_mov_b64 exec, s[56:57]')
    reduce_store(Rq2, 88, 49)
    a.e('s_mov_b64 exec, -1')
    if cfg.DIAG:
        a.e('s_waitcnt vmcnt(0)')
        stampc(5)
        a.e('s_waitcnt lgkmcnt(0)')
        a.e('v_mov_b32 v9, 0')
        for i in range(6):
            a.e('v_writelane_b32 v9, s%d, %d', 64+2*i, i)
            a.e('v_writelane_b32 v9, s%d, %d', 80+i, 10+i)
            if i < 3: a.e('v_writelane_b32 v9, s%d, %d', 88+2*i, 20+i)
        a.e('v_writelane_b32 v9, s76, 30'); a.e('v_writelane_b32 v9, s94, 31')
        for k in range(7):
            a.e('v_readlane_b32 s100, v13, %d', k); a.e('s_nop 3'); a.e('v_writelane_b32 v9, s100, %d', 52+k)
        lab = a.newlabel('nost')
        a.e('s_cmp_lg_u32 s%d, 0', S_WAVE)
        a.e('s_cbranch_scc1 %s', lab)
        stamp_store(a, 9, 10, region=1)
        a.label(lab)
    a.e('s_endpgm')
    for (lab, need) in slow:
        a.label(lab + '_slow')
        spin_flags(a, 0, need, VZ, VFL, 59)
        a.e('s_branch %s', lab)
    if cfg.SLOWCALL:
        a.label('common_slow')
        if cfg.DIAG:
            a.e('s_memrealtime s[100:101]'); a.e('s_waitcnt lgkmcnt(0)'); a.e('s_sub_u32 s99, s99, s100'); a.e('s_add_u32 s98, s98, 1')
        a.label('common_slow2')
        a.e('ds_read_b32 v%d, v%d', VF1, VFA)
        a.e('s_waitcnt lgkmcnt(0)')
        a.e('v_cmp_gt_u32 vcc, s61, v%d', VF1)
        a.e('s_add_u32 s63, s63, 1')
        a.e('s_cmp_gt_u32 s63, 300000')
        a.e('s_cbranch_scc1 common_ret')
        a.e('s_nop 1')
        a.e('s_cbranch_vccnz common_slow2')
        a.label('common_ret')
        if cfg.DIAG:
            a.e('s_memrealtime s[100:101]'); a.e('s_waitcnt lgkmcnt(0)'); a.e('s_add_u32 s99, s99, s100')
        a.e('s_add_u32 s56, s56, 4')
        a.e('s_addc_u32 s57, s57, 0')
        a.e('s_setpc_b64 s[56:57]')
    lab = slow_nonce
    a.label(lab)
    a.e('buffer_load_dword v%d, v%d, s[%d:%d], 0 offen sc1', t1, t0, SRD_DBG, SRD_DBG+3)
    a.e('s_waitcnt vmcnt(0)')
    a.e('v_readfirstlane_b32 s%d, v%d', S_NONCE, t1)
    a.e('s_add_u32 s63, s63, 64')
    a.e('s_cmp_gt_u32 s63, 300000')
    a.e('s_cbranch_scc1 %s_ok', lab)
    a.e('s_cmp_lg_u32 s%d, 0', S_NONCE)
    a.e('s_cbranch_scc0 %s', lab)
    a.e('s_branch %s_ok', lab)

def gen_loaders(a, T):
    XE_, XO, W0, VE, VO, WO0 = 2, 3, 4, 8, 9, 10
    LN = 14
    VZ = 22
    VQ, VT = 36, 44
    DUM = 48
    t0, t1, t2, t3 = 32, 33, 34, 35
    S_TMP, S_FULLA, S_LI, S_G = 56, 57, 58, 62
    S_GX, S_GW, S_GV, S_GO, S_GK = 52, 53, 54, 55, 64
    S_PW, S_PK, S_PH, S_PHS, S_PX = 68, 69, 70, 71, 76
    SRD_PH, SRD_T = 72, 84
    S_XI, S_WI, S_XS, S_WS, S_CNT, S_NEED = 77, 78, 79, 80, 81, 82
    S_WSA = 83; S_XSA = 94
    S_LXO, S_LWA, S_LWB = 65, 66, 67
    nt_pf = ' nt' if cfg.NT_PF else ''
    nt_r = ' nt' if cfg.NT else ''
    a.e('s_mov_b32 s63, 0')
    if cfg.LPRIO: a.e('s_setprio %d', cfg.LPRIO)
    a.e('s_sub_u32 s%d, s%d, 4', S_LI, S_WAVE)
    if cfg.DIAG: a.e('v_mov_b32 v30, 0')
    a.e('v_lshlrev_b32 v%d, 4, v0', LN)
    a.e('v_mov_b32 v%d, 0x%x', VZ, FLAG_BASE)
    lab = a.newlabel('init')
    a.e('s_cmp_lg_u32 s%d, 3', S_LI)
    a.e('s_cbranch_scc1 %s', lab)
    a.e('v_lshlrev_b32 v%d, 2, v0', t0)
    a.e('v_and_b32 v%d, 63, v%d', t0, t0)
    a.e('v_add_u32 v%d, v%d, v%d', t0, t0, VZ)
    a.e('v_mov_b32 v%d, 0', t1)
    a.e('ds_write_b32 v%d, v%d', t0, t1)
    a.label(lab)
    XPA = 15
    a.e('v_lshrrev_b32 v%d, 5, v0', t0)
    a.e('v_mul_u32_u24 v%d, 1280, v%d', t0, t0)
    a.e('v_and_b32 v%d, 31, v0', t1)
    a.e('v_lshl_add_u32 v%d, v%d, 4, v%d', XPA, t1, t0)
    a.e('v_lshrrev_b32 v%d, 3, v0', t0)
    a.e('v_and_b32 v%d, 7, v0', t1)
    a.e('v_lshrrev_b32 v%d, 4, v0', t2)
    a.e('v_xor_b32 v%d, v%d, v%d', t1, t1, t2)
    a.e('v_mul_u32_u24 v%d, 1280, v%d', t3, t0)
    a.e('v_lshl_add_u32 v%d, v%d, 4, v%d', XE_, t1, t3)
    a.e('v_xor_b32 v%d, 64, v%d', XO, XE_)
    a.e('v_mul_u32_u24 v%d, 384, v%d', t3, t0)
    a.e('v_lshl_add_u32 v%d, v%d, 4, v%d', VE, t1, t3)
    a.e('v_xor_b32 v%d, 64, v%d', VO, VE)
    for b in range(3):
        a.e('v_add_u32 v%d, %d, v0', t0, 64*b)
        div_const(a, t1, t0, 24, 191)
        a.e('v_mul_u32_u24 v%d, 24, v%d', t2, t1)
        a.e('v_sub_u32 v%d, v%d, v%d', t2, t0, t2)
        a.e('v_bfe_u32 v%d, v%d, 1, 1', t3, t1)
        a.e('v_lshlrev_b32 v%d, 2, v%d', t3, t3)
        a.e('v_xor_b32 v%d, v%d, v%d', t3, t3, t2)
        a.e('v_lshlrev_b32 v%d, 4, v%d', t3, t3)
        a.e('v_mul_u32_u24 v%d, 0x3000, v%d', W0+b, t1)
        a.e('v_add_u32 v%d, v%d, v%d', W0+b, W0+b, t3)
    a.e('s_lshl_b32 s%d, s%d, 7', S_GX, S_MB)
    a.e('s_lshl_b32 s%d, s%d, 5', S_TMP, S_LI)
    a.e('s_add_u32 s%d, s%d, s%d', S_GX, S_GX, S_TMP)
    a.e('s_mul_i32 s%d, s%d, 1280', S_GX, S_GX)
    a.e('s_mul_i32 s%d, s%d, 384', S_GW, S_H)
    a.e('s_mul_i32 s%d, s%d, %d', S_TMP, S_LI, 8*12288)
    a.e('s_add_u32 s%d, s%d, s%d', S_GW, S_GW, S_TMP)
    a.e('s_lshl_b32 s%d, s%d, 12', S_LXO, S_LI)
    a.e('s_add_u32 s%d, s%d, %d', S_LXO, S_LXO, XB)
    a.e('s_mul_i32 s%d, s%d, 3072', S_LWA, S_LI)
    a.e('s_add_u32 s%d, s%d, %d', S_LWA, S_LWA, WB)
    a.e('s_mul_i32 s%d, s%d, 2560', S_LWB, S_LI)
    a.e('s_add_u32 s%d, s%d, %d', S_LWB, S_LWB, WB)
    a.e('s_lshl_b32 s%d, s%d, 2', S_TMP, S_LI)
    a.e('s_add_u32 s%d, s%d, 0x%x', S_FULLA, S_TMP, F_FULL)
    a.e('v_mov_b32 v%d, 0', VT+1)
    a.e('s_getpc_b64 s[%d:%d]', SRD_T, SRD_T+1)
    a.label('pc_here')
    a.e('s_add_u32 s%d, s%d, seqtab-pc_here', SRD_T, SRD_T)
    a.e('s_addc_u32 s%d, s%d, 0', SRD_T+1, SRD_T+1)
    a.e('s_mov_b32 s%d, 512', SRD_T+2)
    a.e('s_mov_b32 s%d, 0x20000', SRD_T+3)
    for r in (S_G, S_XI, S_WI, S_WSA, S_XSA): a.e('s_mov_b32 s%d, 0', r)
    a.e('s_lshl_b32 s%d, s%d, 7', S_PX, S_MB)
    a.e('s_lshl_b32 s%d, s%d, 4', S_TMP, S_HL)
    a.e('s_add_u32 s%d, s%d, s%d', S_PX, S_PX, S_TMP)
    a.e('s_mul_i32 s%d, s%d, 1280', S_PX, S_PX)
    a.e('s_mul_i32 s%d, s%d, 5120', S_TMP, S_LI)
    a.e('s_add_u32 s%d, s%d, s%d', S_PX, S_PX, S_TMP)
    a.e('s_lshl_b32 s%d, s%d, 1', S_PW, S_J)
    a.e('s_lshr_b32 s%d, s%d, 1', S_TMP, S_LI)
    a.e('s_lshl_b32 s%d, s%d, 6', S_TMP, S_TMP)
    a.e('s_add_u32 s%d, s%d, s%d', S_PW, S_PW, S_TMP)
    a.e('s_and_b32 s%d, s%d, 1', S_TMP, S_LI)
    a.e('s_add_u32 s%d, s%d, s%d', S_PW, S_PW, S_TMP)
    a.e('s_add_u32 s%d, s%d, 128', S_PW, S_PW)
    a.e('s_mul_i32 s%d, s%d, 12288', S_PW, S_PW)
    a.e('s_mul_i32 s%d, s%d, 3072', S_TMP, S_HG)
    a.e('s_add_u32 s%d, s%d, s%d', S_PW, S_PW, S_TMP)
    S_FREEC = 88
    a.e('s_mov_b32 s%d, 0', S_FREEC)
    a.e('s_waitcnt lgkmcnt(0)')
    a.e('s_barrier')
    def pf(srd, soff, n, off0=0):
        for i in range(n):
            if cfg.NOLOAD or not cfg.PF_ON: continue
            a.e('buffer_load_dwordx4 v[%d:%d], v%d, s[%d:%d], s%d offen offset:%d%s', DUM, DUM+3, LN, srd, srd+3, soff, off0 + 1024*i, nt_pf)
    def late_setup():
        lab = a.newlabel('nn')
        a.e('s_cmp_lg_u32 s%d, 3', S_LI)
        a.e('s_cbranch_scc1 %s', lab)
        a.e('s_cmp_lg_u32 s2, 0')
        a.e('s_cbranch_scc1 %s', lab)
        a.e('s_memrealtime s[60:61]')
        a.e('s_waitcnt lgkmcnt(0)')
        a.e('s_or_b32 s60, s60, 1')
        a.e('v_mov_b32 v%d, s60', t1)
        a.e('v_mov_b32 v%d, 0', t0)
        a.e('s_mov_b64 exec, 1')
        a.e('buffer_store_dword v%d, v%d, s[%d:%d], 0 offen sc1', t1, t0, SRD_DBG, SRD_DBG+3)
        a.e('s_mov_b64 exec, -1')
        a.label(lab)
        for b in range(3):
            a.e('v_add_u32 v%d, %d, v0', t0, 64*b)
            div_const(a, t1, t0, 20, 191)
            a.e('v_mul_u32_u24 v%d, 20, v%d', t2, t1)
            a.e('v_sub_u32 v%d, v%d, v%d', t2, t0, t2)
            a.e('v_mul_u32_u24 v%d, 1280, v%d', t3, t1)
            a.e('v_lshl_add_u32 v%d, v%d, 4, v%d', WO0+b, t2, t3)
        a.e('s_lshl_b32 s%d, s%d, 2', S_GK, S_MB)
        a.e('s_add_u32 s%d, s%d, s%d', S_GK, S_GK, S_LI)
        a.e('s_lshl_b32 s%d, s%d, 5', S_GK, S_GK)
        a.e('s_lshl_b32 s%d, s%d, 3', S_TMP, S_HG)
        a.e('s_add_u32 s%d, s%d, s%d', S_GV, S_GK, S_TMP)
        a.e('s_lshl_b32 s%d, s%d, 2', S_TMP, S_HH)
        a.e('s_add_u32 s%d, s%d, s%d', S_GV, S_GV, S_TMP)
        a.e('s_mul_i32 s%d, s%d, 12288', S_GV, S_GV)
        a.e('s_add_u32 s%d, s%d, s%d', S_GK, S_GK, S_H)
        a.e('s_mul_i32 s%d, s%d, 12288', S_GK, S_GK)
        a.e('s_mov_b32 s%d, s%d', S_PK, S_GK)
        a.e('s_lshl_b32 s%d, s%d, 3', S_GO, S_HG)
        a.e('s_lshl_b32 s%d, s%d, 2', S_TMP, S_HH)
        a.e('s_add_u32 s%d, s%d, s%d', S_GO, S_GO, S_TMP)
        a.e('s_mul_i32 s%d, s%d, 192', S_GO, S_GO)
        a.e('s_lshl_b32 s%d, s%d, 3', S_TMP, S_LI)
        a.e('s_add_u32 s%d, s%d, s%d', S_GO, S_GO, S_TMP)
        a.e('s_mul_i32 s%d, s%d, 1280', S_GO, S_GO)
        a.e('s_mul_i32 s%d, s%d, 320', S_TMP, S_NS)
        a.e('s_add_u32 s%d, s%d, s%d', S_GO, S_GO, S_TMP)
        labv = a.newlabel('phv'); labe = a.newlabel('phe')
        a.e('s_cmp_ge_u32 s%d, 2', S_LI)
        a.e('s_cbranch_scc0 %s', labv)
        for i in range(4): a.e('s_mov_b32 s%d, s%d', SRD_PH+i, SRD_WO+i)
        a.e('s_mul_i32 s%d, s%d, %d', S_PH, S_HG, 8*245760)
        a.e('s_mul_i32 s%d, s%d, 7680', S_TMP, S_J)
        a.e('s_add_u32 s%d, s%d, s%d', S_PH, S_PH, S_TMP)
        a.e('s_sub_u32 s%d, s%d, 2', S_TMP, S_LI)
        a.e('s_mul_i32 s%d, s%d, 3584', S_TMP, S_TMP)
        a.e('s_add_u32 s%d, s%d, s%d', S_PH, S_PH, S_TMP)
        a.e('s_mov_b32 s%d, 245760', S_PHS)
        a.e('s_branch %s', labe)
        a.label(labv)
        for i in range(4): a.e('s_mov_b32 s%d, s%d', SRD_PH+i, SRD_V+i)
        a.e('s_lshl_b32 s%d, s%d, 2', S_PH, S_MB)
        a.e('s_lshr_b32 s%d, s%d, 1', S_TMP, S_HL)
        a.e('s_add_u32 s%d, s%d, s%d', S_PH, S_PH, S_TMP)
        a.e('s_lshl_b32 s%d, s%d, 5', S_PH, S_PH)
        a.e('s_lshl_b32 s%d, s%d, 3', S_TMP, S_HG)
        a.e('s_add_u32 s%d, s%d, s%d', S_PH, S_PH, S_TMP)
        a.e('s_mul_i32 s%d, s%d, 12288', S_PH, S_PH)
        a.e('s_and_b32 s%d, s%d, 1', S_TMP, S_HL)
        a.e('s_mul_i32 s%d, s%d, %d', S_TMP, S_TMP, 16*384)
        a.e('s_add_u32 s%d, s%d, s%d', S_PH, S_PH, S_TMP)
        a.e('s_lshl_b32 s%d, s%d, 11', S_TMP, S_LI)
        a.e('s_add_u32 s%d, s%d, s%d', S_PH, S_PH, S_TMP)
        a.e('s_mov_b32 s%d, 12288', S_PHS)
        a.label(labe)
    def pfh(hq):
        a.e('s_mul_i32 s%d, s%d, %d', S_TMP, S_PHS, hq)
        a.e('s_add_u32 s%d, s%d, s%d', S_TMP, S_TMP, S_PH)
        pf(SRD_PH, S_TMP, 4)
        a.e('s_lshl_b32 s%d, s%d, 2', S_NEED, S_PHS)
        a.e('s_add_u32 s%d, s%d, s%d', S_TMP, S_TMP, S_NEED)
        pf(SRD_PH, S_TMP, 4)
    def need_calc(ring):
        NX, NW = cfg.NX, cfg.NW
        if ring == 'W':
            a.e('s_sub_i32 s%d, s%d, %d', S_NEED, S_WI, NW-1)
            a.e('s_add_i32 s%d, s%d, 3', S_TMP, S_NEED)
            a.e('s_cmp_ge_i32 s%d, %d', S_WI, 20+NW)
            a.e('s_cselect_b32 s%d, s%d, s%d', S_NEED, S_TMP, S_NEED)
        else:
            a.e('s_sub_i32 s%d, s%d, %d', S_TMP, S_XI, NX)
            a.e('s_lshl_b32 s%d, s%d, 1', S_NEED, S_TMP)
            a.e('s_add_i32 s%d, s%d, 2', S_NEED, S_NEED)
            a.e('s_add_i32 s89, s%d, 11', S_TMP)
            a.e('s_cmp_ge_i32 s%d, 10', S_TMP)
            a.e('s_cselect_b32 s%d, s89, s%d', S_NEED, S_NEED)
            a.e('s_lshl_b32 s89, s%d, 1', S_TMP)
            a.e('s_sub_i32 s89, s89, 1')
            a.e('s_cmp_ge_i32 s%d, 13', S_TMP)
            a.e('s_cselect_b32 s%d, s89, s%d', S_NEED, S_NEED)
    def gate(ring):
        if cfg.NOGATE: return
        lab = a.newlabel('gate')
        need_calc(ring)
        a.e('s_cmp_ge_i32 s%d, s%d', S_FREEC, S_NEED)
        a.e('s_cbranch_scc1 %s_ok', lab)
        a.label(lab)
        a.e('ds_read_b128 v[%d:%d], v%d offset:16', VQ, VQ+3, VZ)
        a.e('s_waitcnt lgkmcnt(0)')
        a.e('v_min3_u32 v%d, v%d, v%d, v%d', VQ, VQ, VQ+1, VQ+2)
        a.e('v_min_u32 v%d, v%d, v%d', VQ, VQ, VQ+3)
        a.e('s_nop 0')
        a.e('v_readfirstlane_b32 s%d, v%d', S_FREEC, VQ)
        a.e('s_add_u32 s63, s63, 1')
        a.e('s_cmp_ge_i32 s%d, s%d', S_FREEC, S_NEED)
        a.e('s_cbranch_scc1 %s_ok', lab)
        if cfg.GSLEEP: a.e('s_sleep %d', cfg.GSLEEP)
        a.e('s_cmp_gt_u32 s63, 300000')
        a.e('s_cbranch_scc0 %s', lab)
        a.label(lab + '_ok')
    def flagdma(stamp_it=False):
        if cfg.NOFLAG:
            a.e('s_add_u32 s%d, s%d, 1', S_G, S_G); return
        a.e('s_lshl_b32 s%d, s%d, 2', S_TMP, S_G)
        a.e('s_mov_b32 m0, s%d', S_FULLA)
        a.e('s_mov_b64 exec, 1')
        a.e('buffer_load_dword v%d, s[%d:%d], s%d offen lds', VT+1, SRD_T, SRD_T+3, S_TMP)
        a.e('s_mov_b64 exec, -1')
        a.e('s_add_u32 s%d, s%d, 1', S_G, S_G)
    def dma(voff, srd, soff_s, gconst, lbase_s, lconst, half=False):
        if cfg.NOLOAD: return
        if cfg.DUMMYLDS: a.e('s_mov_b32 m0, 0x%x', 152576 + (lconst % 4096))
        else: a.e('s_add_u32 m0, s%d, 0x%x', lbase_s, lconst)
        if cfg.LINV: voff = LN
        a.e('s_add_u32 s%d, s%d, 0x%x', S_TMP, soff_s, gconst)
        if half: a.e('s_mov_b32 exec_hi, 0')
        a.e('buffer_load_dwordx4 v%d, s[%d:%d], s%d offen%s lds', voff, srd, srd+3, S_TMP, nt_r)
        if half: a.e('s_mov_b32 exec_hi, -1')
    def xunit(ve, vo, srd, sg, rowstride, flag=False):
        gate('X')
        a.e('s_waitcnt vmcnt(%d)', cfg.VMCAP)
        a.e('s_lshl_b32 s%d, s%d, 14', S_XS, S_XSA)
        a.e('s_add_u32 s%d, s%d, s%d', S_XS, S_XS, S_LXO)
        a.e('s_add_u32 s%d, s%d, 1', S_XSA, S_XSA)
        a.e('s_cmp_eq_u32 s%d, %d', S_XSA, cfg.NX)
        a.e('s_cselect_b32 s%d, 0, s%d', S_XSA, S_XSA)
        for q in range(4):
            dma(ve if q % 2 == 0 else vo, srd, sg, q*8*rowstride, S_XS, q*1024)
        if flag: flagdma()
        else: a.e('s_add_u32 s%d, s%d, 1', S_G, S_G)
        a.e('s_add_u32 s%d, s%d, 1', S_XI, S_XI)
    def wunit(kind, flag=True):
        gate('W')
        a.e('s_mul_i32 s%d, s%d, %d', S_WS, S_WSA, WSZ)
        a.e('s_add_u32 s%d, s%d, s%d', S_WS, S_WS, S_LWA if kind == 'A' else S_LWB)
        if kind == 'A':
            for b in range(3): dma(W0+b, SRD_WQ, S_GW, 0, S_WS, b*1024)
            if not cfg.SAMEADDR: a.e('s_add_u32 s%d, s%d, %d', S_GW, S_GW, 32*12288)
        else:
            for b in range(3): dma(WO0+b, SRD_WO, S_GO, 0, S_WS, b*1024, half=(b == 2))
            if not cfg.SAMEADDR: a.e('s_add_u32 s%d, s%d, %d', S_GO, S_GO, 32*1280)
        if flag: flagdma()
        else: a.e('s_add_u32 s%d, s%d, 1', S_G, S_G)
        a.e('s_add_u32 s%d, s%d, 1', S_WI, S_WI)
        a.e('s_add_u32 s%d, s%d, 1', S_WSA, S_WSA)
        a.e('s_cmp_eq_u32 s%d, %d', S_WSA, cfg.NW)
        a.e('s_cselect_b32 s%d, 0, s%d', S_WSA, S_WSA)
    def stampx():
        if cfg.DIAG:
            a.e('s_memrealtime s[60:61]')
            a.e('s_mov_b32 m0, s%d', S_XI)
            a.e('s_waitcnt lgkmcnt(0)')
            a.e('v_writelane_b32 v30, s60, m0')
    def chunkA():
        xunit(XE_, XO, SRD_X, S_GX, 1280)
        if not cfg.SAMEADDR: a.e('s_add_u32 s%d, s%d, 128', S_GX, S_GX)
        wunit('A', False); wunit('A')
        stampx()
    def thirdB(th):
        xunit(VE, VO, SRD_V, S_GV, 384)
        if not cfg.SAMEADDR: a.e('s_add_u32 s%d, s%d, %d', S_GV, S_GV, 128 if th < 2 else 12288-256)
        wunit('B', False); wunit('B')
        stampx()
    S_PHASE, S_PW0 = 90+2, 90+3
    NPH = cfg.NPHASE
    def pf_wq(p):
        if p >= 1: a.e('s_add_u32 s%d, s%d, %d', S_TMP, S_PW, (p-1)*2*786432)
        else: a.e('s_sub_u32 s%d, s%d, %d', S_TMP, S_PW, 2*786432)
        pf(SRD_WQ, S_TMP, 3)
    def pf_head(hd):
        a.e('s_mul_i32 s%d, s%d, %d', S_TMP, S_PHS, hd)
        a.e('s_add_u32 s%d, s%d, s%d', S_TMP, S_TMP, S_PH)
        pf(SRD_PH, S_TMP, 4)
    bursts = cfg.BURSTS
    def maybe_burst(slot):
        for (bs, items) in bursts:
            for ph in range(NPH):
                if bs + ph == slot:
                    lab = a.newlabel('nb')
                    if NPH > 1:
                        a.e('s_cmp_eq_u32 s%d, %d', S_PHASE, ph)
                        a.e('s_cbranch_scc0 %s', lab)
                    if cfg.DIAG3:
                        a.e('s_waitcnt vmcnt(0)')
                        a.e('s_memrealtime s[60:61]'); a.e('s_waitcnt lgkmcnt(0)'); a.e('s_mov_b32 s95, s60')
                    for it in items:
                        if it[0] == 'w': pf_wq(it[1])
                        elif it[0] == 'h': pf_head(it[1])
                        elif it[0] == 'x':
                            pf(SRD_X, S_PX, 4)
                            a.e('s_add_u32 s%d, s%d, 4096', S_TMP, S_PX)
                            pf(SRD_X, S_TMP, 1)
                        elif it[0] == 'k':
                            a.e('s_add_u32 s%d, s%d, %d', S_TMP, S_PK, it[1]*4096)
                            pf(SRD_K, S_TMP, 4)
                    if cfg.DIAG3:
                        a.e('s_waitcnt vmcnt(0)')
                        a.e('s_memrealtime s[60:61]'); a.e('s_waitcnt lgkmcnt(0)'); a.e('s_sub_u32 s60, s60, s95')
                        a.e('s_add_u32 s60, s60, 1')
                        a.e('v_writelane_b32 v30, s60, %d', 52 + bursts.index((bs, items)))
                    a.label(lab)
    if cfg.START == 0:
        chunkA()
        pf(SRD_X, S_PX, 4)
        a.e('s_add_u32 s%d, s%d, 4096', S_TMP, S_PX)
        pf(SRD_X, S_TMP, 1)
        pf_wq(1)
        late_setup()
    else:
        pf_wq(0); pf_wq(1)
        if cfg.PF_ON and not cfg.NOLOAD:
            a.e('s_mul_i32 s%d, s%d, 5120', S_TMP, S_LI)
            a.e('s_sub_u32 s%d, s%d, s%d', S_NEED, S_PX, S_TMP)
            a.e('s_mul_i32 s%d, s%d, %d', S_TMP, S_LI, 4*1280)
            a.e('s_add_u32 s%d, s%d, s%d', S_TMP, S_TMP, S_NEED)
            for i in range(2):
                a.e('buffer_load_dwordx4 v[%d:%d], v%d, s[%d:%d], s%d offen offset:%d%s', DUM, DUM+3, XPA, SRD_X, SRD_X+3, S_TMP, 2560*i, nt_pf)
        chunkA()
        late_setup()
    if NPH == 3:
        a.e('s_mul_i32 s%d, s%d, 11', S_PHASE, S_J)
        a.e('s_lshr_b32 s%d, s%d, 5', S_PHASE, S_PHASE)
        a.e('s_mul_i32 s%d, s%d, 3', S_PHASE, S_PHASE)
        a.e('s_sub_u32 s%d, s%d, s%d', S_PHASE, S_J, S_PHASE)
    else:
        a.e('s_and_b32 s%d, s%d, %d', S_PHASE, S_J, NPH-1)
    if cfg.DIAG:
        stamp(a, 0)
        a.e('s_memtime s[60:61]')
        a.e('s_waitcnt lgkmcnt(0)')
        a.e('v_writelane_b32 v30, s60, 50')
    for slot in range(1, 23):
        maybe_burst(slot)
        if slot < 10: chunkA()
        elif slot == 10:
            for th in range(3):
                xunit(VE, VO, SRD_K, S_GK, 384, flag=True)
                if not cfg.SAMEADDR: a.e('s_add_u32 s%d, s%d, 128', S_GK, S_GK)
                stampx()
        else: thirdB((slot - 11) % 3)
    a.e('s_waitcnt vmcnt(0)')
    if cfg.DIAG:
        lab = a.newlabel('dge')
        a.e('s_cmp_lg_u32 s%d, 0', S_LI)
        a.e('s_cbranch_scc1 %s', lab)
        stamp(a, 40)
        a.e('v_writelane_b32 v30, s90, 41')
        a.e('s_memtime s[60:61]')
        a.e('s_waitcnt lgkmcnt(0)')
        a.e('v_writelane_b32 v30, s60, 51')
        a.e('s_getreg_b32 s60, hwreg(HW_REG_XCC_ID)')
        a.e('s_add_u32 s60, s60, 100')
        a.e('v_writelane_b32 v30, s60, 63')
        stamp_store(a)
        a.label(lab)
    a.e('s_waitcnt lgkmcnt(0)')
    a.e('s_endpgm')

def main(outpath):
    layout()
    a = Asm()
    T = tables()
    hdr = HEADER + '; @launch grid=(256,1,1) block=(512,1,1) lds=%d\n' % LDS_TOTAL
    a.raw(hdr + '.amdgcn_target "amdgcn-amd-amdhsa--gfx950"\n.text')
    kernel_begin(a, KNAME)
    prologue(a, 'kend')
    a.e('s_cmp_ge_u32 s%d, 4', S_WAVE)
    a.e('s_cbranch_scc0 computew')
    gen_loaders(a, T)
    a.label('computew')
    gen_compute(a, T)
    a.label('kend')
    a.e('s_endpgm')
    a.raw('.p2align 8')
    a.label('seqtab')
    for i in range(128): a.raw('    .long %d' % (i+1))
    a.raw('.section .rodata,"a"\n.p2align 6')
    a.raw(kernel_desc(KNAME, 256))
    open(outpath, 'w').write(a.text())

if __name__ == '__main__':
    for k, v in os.environ.items():
        if k.startswith('CFG_'):
            name = k[4:]
            cur = getattr(cfg, name)
            setattr(cfg, name, (v not in ('0', 'False', '')) if isinstance(cur, bool) else int(v))
    BSETS = {
      0: [(1, [('w', 2), ('w', 3)]), (3, [('w', 4), ('h', 0)]), (6, [('h', 4), ('h', 1)]), (9, [('h', 5), ('h', 2)]), (12, [('h', 6), ('h', 3)]), (15, [('h', 7)])],
      1: [(1, [('w', 2)]), (2, [('w', 3)]), (4, [('w', 4)]), (7, [('h', 0), ('h', 4)]), (11, [('h', 1), ('h', 5)]), (14, [('h', 2), ('h', 6)]), (17, [('h', 3), ('h', 7)])],
      3: [(1, [('x',), ('w', 2)]), (3, [('w', 3), ('w', 4)]), (6, [('h', 0), ('h', 4)]), (11, [('h', 1), ('h', 5)]), (14, [('h', 2), ('h', 6)]), (17, [('h', 3), ('h', 7)])],
      4: [(1, [('x',), ('w', 2)]), (3, [('w', 3), ('w', 4)]), (5, [('k', 0), ('k', 1)]), (7, [('k', 2), ('h', 0)]), (9, [('h', 4), ('h', 1)]), (12, [('h', 5), ('h', 2)]), (15, [('h', 6), ('h', 3)]), (18, [('h', 7)])],
      5: [(1, [('x',), ('w', 2), ('w', 3)]), (4, [('w', 4), ('k', 0)]), (6, [('k', 1), ('k', 2)]), (8, [('h', 0), ('h', 4)]), (11, [('h', 1), ('h', 5)]), (14, [('h', 2), ('h', 6)]), (17, [('h', 3), ('h', 7)])],
      2: [(1, [('w', 2), ('w', 3)]), (4, [('w', 4), ('h', 0)]), (7, [('h', 4), ('h', 1)]), (10, [('h', 5), ('h', 2)]), (13, [('h', 6), ('h', 3)]), (16, [('h', 7)])],
    }
    cfg.BURSTS = BSETS[cfg.BSET]
    main(sys.argv[1])
```

```python
import sys, os, math, struct
from asmlib import *

NAME = 'concat_heads__gqa_block_cached__mha_block_cached__near_ridge'
KNAME = NAME + '_kernel'
WS_P = 0
WS_PFLAG = 3 << 20
WS_RFLAG = (3 << 20) + (1 << 17)
WS_PART = 4 << 20
WS_DIAG = 24 << 20
WS_SIZE = 32 << 20

EVENTS = []
class Cfg: pass
cfg = Cfg()
cfg.DIAG = False; cfg.NT = False; cfg.NT_PF = False; cfg.PF_ON = False; cfg.NOLOAD = False; cfg.SAMEADDR = False
cfg.VMCAP = 40; cfg.NPHASE = 1; cfg.FIRST2 = False; cfg.BARFREE = False; cfg.SMOOTH = False; cfg.FREE1 = False; cfg.FREEX = False; cfg.ROTA = False; cfg.ROTB = False; cfg.INITPF = True; cfg.PUB = 4; cfg.POLL = 2; cfg.START = 0; cfg.DIAG3 = False; cfg.BSET = 3; cfg.SLOWCALL = True; cfg.NOSYNC = False; cfg.NOGATE = False; cfg.GSLEEP = 0; cfg.NOFLAG = False; cfg.DUMMYLDS = False; cfg.LINV = False; cfg.LPRIO = 0; cfg.CPRIO = 0; cfg.PF_K = False; cfg.NX = 4; cfg.NW = 7

S_BETA, S_HG, S_MB, S_HL = 4, 5, 6, 7
SRD_X, SRD_WQ, SRD_K, SRD_V, SRD_WO, SRD_WS, SRD_OUT, SRD_DBG = 8, 12, 16, 20, 24, 28, 32, 36
S_WAVE, S_XCD, S_J, S_H, S_NS, S_HH = 3, 40, 41, 46, 42, 43
LDS_TOTAL = 163840
XB, XSZ = 0, 16384
WSZ = 12288

def layout():
    global WB, FLAG_BASE, F_FULL, F_FREE
    WB = XB + cfg.NX * XSZ
    FLAG_BASE = WB + cfg.NW * WSZ
    assert FLAG_BASE + 64 <= LDS_TOTAL
    F_FULL = FLAG_BASE; F_FREE = FLAG_BASE + 16

def tables():
    xs = [('x', i) for i in range(10)] + [('K', t) for t in range(3)] + [('V', h, t) for h in range(4) for t in range(3)]
    wsq = [('wq', i) for i in range(20)] + [('wo', h, t, f) for h in range(4) for t in range(3) for f in range(2)]
    load = []
    for i in range(10): load += [('x', i), ('wq', 2*i), ('wq', 2*i+1)]
    load += [('K', t) for t in range(3)]
    for h in range(4):
        for t in range(3): load += [('V', h, t), ('wo', h, t, 0), ('wo', h, t, 1)]
    lidx = {u: i for i, u in enumerate(load)}
    tick = {}
    tk = 0
    for i in range(10):
        tk += 1; tick[('wq', 2*i)] = tk
        tk += 1; tick[('wq', 2*i+1)] = tk; tick[('x', i)] = tk
    for t in range(3):
        tk += 1; tick[('K', t)] = tk
    for h in range(4):
        for t in range(3):
            tk += 1; tick[('wo', h, t, 0)] = tk
            tk += 1; tick[('wo', h, t, 1)] = tk; tick[('V', h, t)] = tk
    xsl = {u: (i % cfg.NX) for i, u in enumerate(xs)}
    wsl = {u: (i % cfg.NW) for i, u in enumerate(wsq)}
    xneed = [tick[xs[i-cfg.NX]] if i >= cfg.NX else 0 for i in range(len(xs))]
    wneed = [tick[wsq[i-cfg.NW]] if i >= cfg.NW else 0 for i in range(len(wsq))]
    return dict(xs=xs, ws=wsq, load=load, lidx=lidx, tick=tick, xsl=xsl, wsl=wsl, xneed=xneed, wneed=wneed, ntick=tk)

def stamp(a, idx, vreg=30):
    if not cfg.DIAG: return
    a.e('s_memrealtime s[60:61]')
    a.e('s_waitcnt lgkmcnt(0)')
    a.e('v_writelane_b32 v%d, s60, %d', vreg, idx)
def stamp_store(a, vreg=30, vtmp=31, region=0):
    if not cfg.DIAG: return
    a.e('v_lshlrev_b32 v%d, 2, v0', vtmp)
    a.e('s_lshl_b32 s60, s2, 8')
    a.e('s_add_u32 s60, s60, 0x%x', WS_DIAG + region*65536)
    a.e('buffer_store_dword v%d, v%d, s[%d:%d], s60 offen', vreg, vtmp, SRD_WS, SRD_WS+3)

def prologue(a, endlabel):
    if cfg.DIAG: a.e('s_memrealtime s[90:91]')
    a.e('s_cmp_ge_u32 s2, 256')
    a.e('s_cbranch_scc1 %s', endlabel)
    a.e('s_and_b32 s%d, s2, 7', S_XCD)
    a.e('s_lshr_b32 s%d, s2, 3', S_J)
    a.e('s_lshr_b32 s%d, s%d, 2', S_BETA, S_XCD)
    a.e('s_and_b32 s%d, s%d, 3', S_HG, S_XCD)
    a.e('s_and_b32 s%d, s%d, 3', S_MB, S_J)
    a.e('s_lshr_b32 s%d, s%d, 2', S_HL, S_J)
    a.e('s_mul_i32 s47, s%d, 40', S_BETA)
    a.e('s_add_u32 s44, s0, s47')
    a.e('s_addc_u32 s45, s1, 0')
    a.e('s_load_dwordx2 s[%d:%d], s[44:45], 0', SRD_X, SRD_X+1)
    a.e('s_load_dwordx2 s[%d:%d], s[44:45], 24', SRD_WQ, SRD_WQ+1)
    a.e('s_load_dwordx2 s[%d:%d], s[44:45], 8', SRD_K, SRD_K+1)
    a.e('s_load_dwordx2 s[%d:%d], s[44:45], 16', SRD_V, SRD_V+1)
    a.e('s_load_dwordx2 s[%d:%d], s[44:45], 32', SRD_WO, SRD_WO+1)
    a.e('s_load_dwordx2 s[%d:%d], s[0:1], 80', SRD_OUT, SRD_OUT+1)
    a.e('s_load_dwordx2 s[%d:%d], s[0:1], 88', SRD_DBG, SRD_DBG+1)
    a.e('s_load_dwordx2 s[%d:%d], s[0:1], 96', SRD_WS, SRD_WS+1)
    a.e('v_lshrrev_b32 v1, 6, v0')
    a.e('v_and_b32 v0, 63, v0')
    for srd, sz in ((SRD_X, 655360), (SRD_WQ, 7864320), (SRD_K, 6291456), (SRD_V, 6291456), (SRD_WO, 7864320),
                    (SRD_WS, WS_SIZE), (SRD_OUT, 1310720), (SRD_DBG, 256)):
        a.e('s_mov_b32 s%d, 0x%x', srd+2, sz)
        a.e('s_mov_b32 s%d, 0x20000', srd+3)
    a.e('v_readfirstlane_b32 s%d, v1', S_WAVE)
    a.e('s_lshl_b32 s%d, s%d, 3', S_H, S_HG)
    a.e('s_add_u32 s%d, s%d, s%d', S_H, S_H, S_HL)
    a.e('s_and_b32 s%d, s%d, 3', S_NS, S_HL)
    a.e('s_lshr_b32 s%d, s%d, 2', S_HH, S_HL)

def div_const(a, vd, vs, d, maxv):
    M = -(-65536 // d)
    for x in range(maxv+1):
        assert (x*M) >> 16 == x // d, (x, d)
    a.e('v_mul_u32_u24 v%d, 0x%x, v%d', vd, M, vs)
    a.e('v_lshrrev_b32 v%d, 16, v%d', vd, vd)

class LdsTrack:
    def __init__(self, a):
        self.a = a; self.q = []
    def read(self, text, lo, n):
        self.a.e(text); self.q.append((lo, lo+n-1))
    def other(self, text):
        self.a.e(text); self.q.append((-1, -1))
    def need(self, *ranges):
        last = -1
        for i, (lo, hi) in enumerate(self.q):
            for (l, n) in ranges:
                if not (hi < l or lo > l+n-1): last = i
        if last >= 0:
            k = min(15, len(self.q) - 1 - last)
            self.a.e('s_waitcnt lgkmcnt(%d)', k)
            self.q = self.q[len(self.q)-k:] if k else []
    def drain(self):
        if self.q:
            self.a.e('s_waitcnt lgkmcnt(0)'); self.q = []

def spin_flags(a, off, need, vz, vt, stmp, sleep=0):
    lab = a.newlabel('sp')
    a.label(lab)
    a.e('ds_read_b128 v[%d:%d], v%d offset:%d', vt, vt+3, vz, off)
    a.e('s_waitcnt lgkmcnt(0)')
    a.e('v_min3_u32 v%d, v%d, v%d, v%d', vt, vt, vt+1, vt+2)
    a.e('v_min_u32 v%d, v%d, v%d', vt, vt, vt+3)
    a.e('s_nop 0')
    a.e('v_readfirstlane_b32 s%d, v%d', stmp, vt)
    a.e('s_add_u32 s63, s63, 1')
    a.e('s_cmp_gt_u32 s63, 0x%x', 300000)
    a.e('s_cbranch_scc1 %s_ok', lab)
    a.e('s_cmp_ge_u32 s%d, %d', stmp, need)
    if sleep:
        a.e('s_cbranch_scc1 %s_ok', lab)
        a.e('s_sleep %d', sleep)
        a.e('s_branch %s', lab)
    else:
        a.e('s_cbranch_scc0 %s', lab)
    a.label(lab + '_ok')

def gen_compute(a, T):
    lidx, tick, xsl, wsl = T['lidx'], T['tick'], T['xsl'], T['wsl']
    XREL = 2
    WEl, WOl, WEh, WOh = 6, 7, 8, 9
    WBl, WBh = 6, 8
    VFA, VFR, VCNT, PV = 10, 1, 15, 11
    VZ, VFL, TMP = 14, 252, 248
    VF1 = 12
    t0, t1, t2, t3 = TMP, TMP+1, TMP+2, TMP+3
    ACC = 16
    AF = [112, 136]; XF = [160, 164]
    VW, OA, SACC = 16, 168, 96
    QBm = [OA+0, OA+4, OA+8, OA+12] + [OA+16*k+q for k in range(1, 5) for q in (0, 4)]
    QBm += []
    VWB0 = [OA+16*(nt+1)+8 for nt in range(4)] + [104]
    PA = [96, 100]; PBq = [132, 156]
    PK = OA
    S_NONCE = 62
    L = LdsTrack(a)
    a.e('s_mov_b32 s63, 0')
    if cfg.DIAG: a.e('s_mov_b32 s99, 0'); a.e('s_mov_b32 s98, 0')
    if cfg.CPRIO: a.e('s_setprio %d', cfg.CPRIO)
    a.e('v_mov_b32 v%d, 0x%x', VZ, FLAG_BASE)
    a.e('v_and_b32 v%d, 3, v0', t0)
    a.e('v_lshl_add_u32 v%d, v%d, 2, v%d', VFA, t0, VZ)
    a.e('v_lshlrev_b32 v%d, 2, v0', t0)
    a.e('v_add_u32 v%d, 0x%x, v%d', VFR, FLAG_BASE + 64, t0)
    a.e('s_lshl_b32 s58, s%d, 2', S_WAVE)
    a.e('s_add_u32 s58, s58, 0x%x', F_FREE)
    a.e('v_writelane_b32 v%d, s58, 0', VFR)
    a.e('v_mov_b32 v%d, 0', VCNT)
    a.e('v_and_b32 v%d, 31, v0', t0)
    a.e('v_lshrrev_b32 v%d, 5, v0', t1)
    a.e('v_bfe_u32 v%d, v0, 1, 3', t2)
    a.e('v_xor_b32 v%d, v%d, v%d', t2, t2, t1)
    a.e('s_lshl_b32 s47, s%d, 12', S_WAVE)
    a.e('v_lshlrev_b32 v%d, 7, v%d', t3, t0)
    a.e('v_add_u32 v%d, s47, v%d', t3, t3)
    if XB: a.e('v_add_u32 v%d, %d, v%d', t3, XB, t3)
    for s_ in range(4):
        a.e('v_xor_b32 v%d, %d, v%d', XREL+s_, 2*s_, t2)
        a.e('v_lshl_add_u32 v%d, v%d, 4, v%d', XREL+s_, XREL+s_, t3)
        a.e('v_add_u32 v%d, 0x10000, v%d', 252+s_, XREL+s_)
    a.e('v_bfe_u32 v%d, v0, 2, 2', t0)
    a.e('v_lshrrev_b32 v%d, 5, v0', t1)
    a.e('v_lshl_add_u32 v%d, v%d, 3, v%d', t0, t1, t0)
    a.e('v_mul_u32_u24 v%d, 384, v%d', t0, t0)
    a.e('v_bfe_u32 v%d, v0, 4, 1', t1)
    a.e('v_lshl_add_u32 v%d, v%d, 5, v%d', t0, t1, t0)
    a.e('v_and_b32 v%d, 1, v0', t1)
    a.e('v_lshl_add_u32 v%d, v%d, 4, v%d', t0, t1, t0)
    a.e('v_bfe_u32 v%d, v0, 1, 1', t1)
    a.e('v_lshl_add_u32 v%d, v%d, 3, v%d', t0, t1, t0)
    a.e('v_add_u32 v%d, 0x%x, v%d', t0, WB, t0)
    a.e('v_bfe_u32 v%d, v0, 3, 1', t1)
    a.e('v_lshlrev_b32 v%d, 6, v%d', t1, t1)
    a.e('v_add_u32 v%d, v%d, v%d', WEl, t0, t1)
    a.e('v_sub_u32 v%d, v%d, v%d', WOl, t0, t1)
    a.e('v_add_u32 v%d, %d, v%d', WEh, 4*WSZ, WEl)
    a.e('v_add_u32 v%d, %d, v%d', WOh, 4*WSZ, WOl)
    a.e('v_lshlrev_b32 v%d, 4, v0', PV)
    a.e('s_waitcnt lgkmcnt(0)')
    a.e('s_barrier')

    slow = []
    bg = []
    def emit_bg(n):
        for _ in range(n):
            if bg: a.e(bg.pop(0))
    def flag_prefetch():
        L.read('ds_read_b32 v%d, v%d' % (VF1, VFA), VF1, 1)
    pend = {}
    def flag_cmp(unit):
        L.need((VF1, 1))
        need = lidx[unit] + 1
        a.e('v_cmp_gt_u32 vcc, %d, v%d', need, VF1)
        pend['need'] = need
    def flag_branch():
        if cfg.NOSYNC: return
        if cfg.SLOWCALL:
            a.e('s_mov_b32 s61, %d', pend['need'])
            a.e('s_getpc_b64 s[56:57]')
            a.e('s_cbranch_vccnz common_slow')
        else:
            lab = a.newlabel('fl')
            a.e('s_cbranch_vccnz %s_slow', lab)
            a.label(lab)
            slow.append((lab, pend['need']))
    def flag_check(unit):
        flag_cmp(unit); a.e('s_nop 4'); flag_branch()
    ticknow = [0]
    def signal_free(skip=False):
        if cfg.BARFREE:
            ticknow[0] += 1
            if skip: return
            EVENTS.append(ticknow[0])
            a.e('s_barrier')
            return
        a.e('v_add_u32 v%d, 1, v%d', VCNT, VCNT)
        if skip and cfg.FREE1: return
        if cfg.FREEX:
            a.e('s_mov_b64 exec, 1')
            L.other('ds_write_b32 v%d, v%d' % (VFR, VCNT))
            a.e('s_mov_b64 exec, -1')
        else:
            L.other('ds_write_b32 v%d, v%d' % (VFR, VCNT))
    XRELH = 252
    def xread(dst, xu, xs_):
        sl = xsl[xu]
        if sl >= 4: return ('ds_read_b128 v[%d:%d], v%d offset:%d' % (dst, dst+3, XRELH+xs_, (sl-4)*XSZ), dst, 4)
        return ('ds_read_b128 v[%d:%d], v%d offset:%d' % (dst, dst+3, XREL+xs_, sl*XSZ), dst, 4)
    def reads(kind, xu, xs_, wu, ws_, k):
        r = [xread(XF[k], xu, xs_)]
        sl = wsl[wu]; hi = sl >= 4; so = (sl - 4 if hi else sl)*WSZ
        for t in range(6 if kind == 'A' else 5):
            for u in range(2):
                d = AF[k]+4*t+2*u
                if kind == 'A':
                    base = (WEh if hi else WEl) if t % 2 == 0 else (WOh if hi else WOl)
                    off = so + (16*ws_+4*u)*384 + 64*t
                else:
                    base = WBh if hi else WBl
                    off = so + (16*ws_+4*u)*320 + 64*t
                r.append(('ds_read_b64_tr_b16 v[%d:%d], v%d offset:%d' % (d, d+1, base, off), d, 2))
        return r
    def step(kind, k, nreads, per, first=False, hooks=None, nbg=0):
        nt_ = 6 if kind == 'A' else 5
        idx = 0
        for t in range(nt_):
            L.need((AF[k]+4*t, 4), (XF[k], 4))
            D = (ACC if kind == 'A' else VW) + 16*t
            c = '0' if first else 'v[%d:%d]' % (D, D+15)
            if kind == 'A':
                a.e('v_mfma_f32_32x32x16_bf16 v[%d:%d], v[%d:%d], v[%d:%d], %s', D, D+15, AF[k]+4*t, AF[k]+4*t+3, XF[k], XF[k]+3, c)
            else:
                a.e('v_mfma_f32_32x32x16_bf16 v[%d:%d], v[%d:%d], v[%d:%d], %s', D, D+15, XF[k], XF[k]+3, AF[k]+4*t, AF[k]+4*t+3, c)
            if hooks and t in hooks:
                for h in (hooks[t] if isinstance(hooks[t], list) else [hooks[t]]):
                    r = h()
                    if r is not None: nreads = r
            n = 0
            for _ in range(per[t]):
                if idx < len(nreads):
                    L.read(*nreads[idx]); idx += 1; n += 1
            emit_bg(max(0, min(nbg, 5 - n)))
        assert idx == len(nreads), (idx, len(nreads), kind)
    def stampc(i):
        if cfg.DIAG:
            a.e('s_memrealtime s[%d:%d]', 64+2*i, 65+2*i)
            a.e('s_mov_b32 s%d, s63', 80+i)
            if i < 3:
                a.e('s_memtime s[%d:%d]', 88+2*i, 89+2*i)
                a.e('v_writelane_b32 v13, s99, %d', i); a.e('v_writelane_b32 v13, s98, %d', 4+i)
    def needflag(u):
        if u[0] == 'wq': return u[1] % 2 == 0 or (cfg.FIRST2 and u[1] == 1)
        if u[0] == 'wo': return u[3] == 0
        return True
    def flagunit(u):
        if u[0] == 'wq': return ('wq', u[1] + 1) if u[1] % 2 == 0 else u
        if u[0] == 'wo': return ('wo', u[1], u[2], 1)
        return u
    def unit(kind, wu, xu, xs0, first, nxt_unit, nxt_reads, extra0=None, nbg=0):
        nt_ = 6 if kind == 'A' else 5
        chk = nxt_unit is not None and needflag(nxt_unit)
        rd1 = reads(kind, xu, xs0+1, wu, 1, 1)
        if cfg.SMOOTH:
            sm = [3,2,2,2,2,2] if kind == 'A' else [3,2,2,2,2]
            hk0 = {}
            if extra0: hk0.update(extra0)
            step(kind, 0, rd1, sm, first=first, hooks=hk0, nbg=nbg)
            if chk: flag_prefetch()
            if nxt_unit and not chk:
                def h0():
                    signal_free(skip=True)
                    return nxt_reads()
                step(kind, 1, [], sm, hooks={0: h0}, nbg=nbg)
            elif nxt_unit:
                def h1(): flag_cmp(flagunit(nxt_unit)); signal_free()
                def h2(): flag_branch(); return nxt_reads()
                nr = len(nxt_reads())
                if kind == 'A': per1 = [0,0,4,3,3,3] if nr == 13 else [0,0,2,2,0,0]
                else: per1 = [0,0,4,4,3] if nr == 11 else [0,0,2,2,0]
                step(kind, 1, [], per1, hooks={1: h1, 2: h2}, nbg=nbg)
            else:
                def h0(): L.drain(); signal_free()
                step(kind, 1, [], [0]*nt_, hooks={1: h0}, nbg=nbg)
            return
        per0 = [4,3,3,3,0,0] if kind == 'A' else [4,4,3,0,0]
        hk0 = {(4 if kind == 'A' else 3): flag_prefetch} if chk else {}
        if extra0: hk0.update(extra0)
        step(kind, 0, rd1, per0, first=first, hooks=hk0, nbg=nbg)
        if nxt_unit:
            def h0():
                if chk: flag_cmp(flagunit(nxt_unit))
                else: L.need((rd1[-1][1], rd1[-1][2]))
                signal_free(skip=not chk)
            def h1():
                if chk: flag_branch()
                return nxt_reads()
            nr = len(nxt_reads())
            if kind == 'A': per1 = [0,4,3,3,3,0] if nr == 13 else [0,2,2,0,0,0]
            else: per1 = [0,4,4,3,0] if nr == 11 else [0,2,2,0,0]
            step(kind, 1, [], per1, hooks={0: h0, 1: h1}, nbg=nbg)
        else:
            def h0(): L.drain(); signal_free()
            step(kind, 1, [], [0]*nt_, hooks={1: h0}, nbg=nbg)

    KF = [AF[0]+4*i for i in range(6)] + [AF[1]+4*i for i in range(6)]
    flag_prefetch(); flag_check(('wq', 0) if cfg.FIRST2 else ('wq', 1))
    if cfg.DIAG:
        a.e('s_memrealtime s[76:77]'); a.e('s_memtime s[94:95]'); a.e('s_waitcnt lgkmcnt(0)')
    for r in reads('A', ('x', 0), 0, ('wq', 0), 0, 0): L.read(*r)
    for wi in range(20):
        i, hf = wi // 2, wi % 2
        ex0 = None
        if wi == 8:
            def nl():
                a.e('v_mov_b32 v%d, 0', t0)
                a.e('buffer_load_dword v%d, v%d, s[%d:%d], 0 offen sc1', t1, t0, SRD_DBG, SRD_DBG+3)
            ex0 = {0: nl}
        if wi < 19:
            nu = ('wq', wi+1)
            nr = (lambda i=i, hf=hf, nu=nu: reads('A', ('x', i+1 if hf else i), 0 if hf else 2, nu, 0, 0))
        else:
            nu = ('K', 0)
            nr = (lambda: [xread(KF[s_], ('K', 0), s_) for s_ in range(4)])
        unit('A', ('wq', wi), ('x', i), 2*hf, wi == 0, nu, nr, extra0=ex0)
    lab = a.newlabel('nonce')
    a.e('s_waitcnt vmcnt(0)')
    a.e('s_nop 0')
    a.e('v_readfirstlane_b32 s%d, v%d', S_NONCE, t1)
    a.e('s_nop 0')
    a.e('s_cmp_lg_u32 s%d, 0', S_NONCE)
    a.e('s_cbranch_scc0 %s', lab)
    a.label(lab + '_ok')
    slow_nonce = lab
    a.e('v_bfe_u32 v%d, v0, 2, 2', t0)
    a.e('v_lshrrev_b32 v%d, 5, v0', t1)
    a.e('v_lshl_add_u32 v%d, v%d, 3, v%d', t0, t1, t0)
    a.e('v_mul_u32_u24 v%d, 320, v%d', t0, t0)
    a.e('v_bfe_u32 v%d, v0, 4, 1', t1)
    a.e('v_lshl_add_u32 v%d, v%d, 5, v%d', t0, t1, t0)
    a.e('v_and_b32 v%d, 3, v0', t1)
    a.e('v_lshl_add_u32 v%d, v%d, 3, v%d', t0, t1, t0)
    a.e('v_add_u32 v%d, 0x%x, v%d', WBl, WB, t0)
    a.e('v_add_u32 v%d, %d, v%d', WBh, 4*WSZ, WBl)
    a.e('s_lshl_b32 s51, s%d, 4', S_BETA)
    a.e('s_lshl_b32 s47, s%d, 2', S_MB)
    a.e('s_add_u32 s51, s51, s47')
    a.e('s_add_u32 s51, s51, s%d', S_WAVE)
    a.e('s_lshl_b32 s51, s51, 5')
    a.e('s_lshl_b32 s52, s%d, 3', S_HG)
    a.e('s_lshl_b32 s47, s%d, 2', S_HH)
    a.e('s_add_u32 s52, s52, s47')
    a.e('s_add_u32 s52, s52, s51')
    a.e('s_lshl_b32 s52, s52, 11')
    a.e('s_add_u32 s52, s52, 0x%x', WS_P)
    stampc(0)
    def cvtq(sp):
        t, hf = sp // 2, sp % 2
        return ['v_cvt_pk_bf16_f32 v%d, v%d, v%d' % (QBm[sp]+j, ACC+16*t+8*hf+2*j, ACC+16*t+8*hf+2*j+1) for j in range(4)]
    for sp in range(4):
        for x in cvtq(sp): a.e(x)
    L.drain(); signal_free()
    flag_prefetch(); flag_check(('K', 1))
    for s_ in range(4): L.read(*xread(KF[4+s_], ('K', 1), s_))
    for sp in range(4, 8):
        for x in cvtq(sp): a.e(x)
    L.drain(); signal_free()
    flag_prefetch(); flag_check(('K', 2))
    for s_ in range(4): L.read(*xread(KF[8+s_], ('K', 2), s_))
    for sp in range(8, 12): bg.extend(cvtq(sp))
    emit_bg(16)
    for sp in range(12):
        L.need((KF[sp], 4))
        c = '0' if sp == 0 else 'v[%d:%d]' % (SACC, SACC+15)
        a.e('v_mfma_f32_32x32x16_bf16 v[%d:%d], v[%d:%d], v[%d:%d], %s', SACC, SACC+15, KF[sp], KF[sp]+3, QBm[sp], QBm[sp]+3, c)
        if sp == 7:
            L.drain(); signal_free(); flag_prefetch()
        if sp == 9: flag_cmp(('wo', 0, 0, 1))
        if sp == 10:
            flag_branch()
            for r in reads('B', ('V', 0, 0), 0, ('wo', 0, 0, 0), 0, 0): L.read(*r)
    cval = (192 ** -0.5) * math.log2(math.e)
    cb = struct.unpack('<I', struct.pack('<f', cval))[0]
    a.e('s_mov_b32 s50, 0x%x', cb)
    a.e('s_add_u32 s53, s51, s%d', S_H)
    a.e('s_lshl_b32 s53, s53, 11')
    a.e('s_add_u32 s53, s53, 0x%x', WS_P)
    q = []
    q.append('s_nop 7')
    q.append('v_max3_f32 v%d, v%d, v%d, v%d' % (t0, SACC, SACC+1, SACC+2))
    for r in range(3, 15, 2):
        q.append('v_max3_f32 v%d, v%d, v%d, v%d' % (t0, t0, SACC+r, SACC+r+1))
    q.append('v_max_f32 v%d, v%d, v%d' % (t0, t0, SACC+15))
    q.append('v_mov_b32 v%d, v%d' % (t1, t0))
    q.append('s_nop 1')
    q.append('v_permlane32_swap_b32 v%d, v%d' % (t0, t1))
    q.append('v_max_f32 v%d, v%d, v%d' % (t0, t0, t1))
    q.append('v_mul_f32 v%d, s50, v%d' % (t2, t0))
    for r in range(16): q.append('v_fma_f32 v%d, v%d, s50, -v%d' % (SACC+r, SACC+r, t2))
    for r in range(16): q.append('v_exp_f32 v%d, v%d' % (SACC+r, SACC+r))
    q.append('s_nop 0')
    q.append('v_add_f32 v%d, v%d, v%d' % (t0, SACC, SACC+1))
    q.append('v_add_f32 v%d, v%d, v%d' % (t1, SACC+2, SACC+3))
    for r in range(4, 16, 2):
        q.append('v_add_f32 v%d, v%d, v%d' % (t0, t0, SACC+r))
        q.append('v_add_f32 v%d, v%d, v%d' % (t1, t1, SACC+r+1))
    q.append('v_add_f32 v%d, v%d, v%d' % (t0, t0, t1))
    q.append('v_mov_b32 v%d, v%d' % (t1, t0))
    q.append('s_nop 1')
    q.append('v_permlane32_swap_b32 v%d, v%d' % (t0, t1))
    q.append('v_add_f32 v%d, v%d, v%d' % (t0, t0, t1))
    q.append('v_rcp_f32 v%d, v%d' % (t0, t0))
    q.append('s_nop 0')
    for r in range(16): q.append('v_mul_f32 v%d, v%d, v%d' % (SACC+r, SACC+r, t0))
    for j in range(8): q.append('v_cvt_pk_bf16_f32 v%d, v%d, v%d' % (PK+j, SACC+2*j, SACC+2*j+1))
    q.append('buffer_store_dwordx4 v[%d:%d], v%d, s[%d:%d], s53 offen sc1' % (PK, PK+3, PV, SRD_WS, SRD_WS+3))
    q.append('buffer_store_dwordx4 v[%d:%d], v%d, s[%d:%d], s53 offen offset:1024 sc1' % (PK+4, PK+7, PV, SRD_WS, SRD_WS+3))
    bg.extend(q)

    def g2cvt(dst_first, p, first=False, src=None):
        pass
    def cvt_tile(nt, dst):
        d = VW + 16*nt
        o = d if dst is None else dst[nt]
        return ['v_cvt_pk_bf16_f32 v%d, v%d, v%d' % (o+j, d+2*j, d+2*j+1) for j in range(8)]
    def g2(src, p, first=False, fill=None):
        j = 0
        for nt in range(5):
            s_ = VW+16*nt if src is None else src[nt]
            D = OA + 16*nt
            for z in range(2):
                c = '0' if (first and z == 0) else 'v[%d:%d]' % (D, D+15)
                a.e('v_mfma_f32_32x32x16_bf16 v[%d:%d], v[%d:%d], v[%d:%d], %s', D, D+15, s_+4*z, s_+4*z+3, p[z], p[z]+3, c)
                if fill and j < len(fill):
                    for x in fill[j]: a.e(x)
                j += 1
    def g2_inplace(p):
        for x in cvt_tile(0, None): a.e(x)
        a.e('s_nop 1')
        fill = []
        for nt in range(1, 5):
            c = cvt_tile(nt, None)
            fill += [c[:4], c[4:] + ['s_nop 1']]
        g2(None, p, fill=fill)
    def p_load(hq, p):
        if cfg.ROTB:
            a.e('s_add_u32 s47, s%d, s%d', S_MB, S_NS)
            a.e('s_add_u32 s47, s47, %d', hq)
            a.e('s_and_b32 s47, s47, 3')
            a.e('s_lshl_b32 s47, s47, 11')
            a.e('s_add_u32 s47, s47, s52')
        else:
            a.e('s_add_u32 s47, s52, %d', hq*2048)
        for z in range(2):
            a.e('buffer_load_dwordx4 v[%d:%d], v%d, s[%d:%d], s47 offen offset:%d sc1', p[z], p[z]+3, PV, SRD_WS, SRD_WS+3, z*1024)
    def publish_p():
        assert not bg
        a.e('s_waitcnt vmcnt(0)')
        a.e('s_lshl_b32 s47, s2, 2')
        a.e('s_add_u32 s47, s47, s%d', S_WAVE)
        a.e('s_lshl_b32 s47, s47, 6')
        a.e('s_add_u32 s47, s47, 0x%x', WS_PFLAG)
        a.e('v_mov_b32 v%d, 0', t0)
        a.e('v_mov_b32 v%d, s%d', t1, S_NONCE)
        a.e('s_mov_b64 exec, 1')
        a.e('buffer_store_dword v%d, v%d, s[%d:%d], s47 offen sc1', t1, t0, SRD_WS, SRD_WS+3)
        a.e('s_mov_b64 exec, -1')
    def poll_p():
        lab = a.newlabel('pollp')
        a.e('v_and_b32 v%d, 3, v0', t0)
        a.e('v_lshlrev_b32 v%d, 5, v%d', t0, t0)
        a.e('s_lshl_b32 s47, s%d, 7', S_HH)
        a.e('s_lshl_b32 s48, s%d, 3', S_MB)
        a.e('s_add_u32 s47, s47, s48')
        a.e('s_add_u32 s47, s47, s%d', S_XCD)
        a.e('v_add_u32 v%d, s47, v%d', t0, t0)
        a.e('v_lshlrev_b32 v%d, 8, v%d', t0, t0)
        a.e('s_lshl_b32 s47, s%d, 6', S_WAVE)
        a.e('s_add_u32 s47, s47, 0x%x', WS_PFLAG)
        a.label(lab)
        a.e('buffer_load_dword v%d, v%d, s[%d:%d], s47 offen sc1', t2, t0, SRD_WS, SRD_WS+3)
        a.e('s_waitcnt vmcnt(0)')
        a.e('v_cmp_ne_u32 vcc, s%d, v%d', S_NONCE, t2)
        a.e('s_add_u32 s63, s63, 64')
        a.e('s_cmp_gt_u32 s63, 300000')
        a.e('s_cbranch_scc1 %s_done', lab)
        a.e('s_nop 2')
        a.e('s_cbranch_vccnz %s', lab)
        a.label(lab + '_done')
    def head(hq):
        for th in range(3):
            for hf in range(2):
                wu = ('wo', hq, th, hf)
                last = (th == 2 and hf == 1)
                if not last:
                    nu = ('wo', hq, th + hf, 1 - hf)
                    nr = (lambda nu=nu, hf=hf: reads('B', ('V', hq, nu[2]), 0 if hf else 2, nu, 0, 0))
                elif hq < 3:
                    nu = ('wo', hq+1, 0, 0)
                    nr = (lambda nu=nu: reads('B', ('V', hq+1, 0), 0, nu, 0, 0))
                else:
                    nu = None; nr = None
                ex0 = None
                if hq == 0 and (th, hf) == cfg.PUB_AT: ex0 = {0: publish_p}
                if hq == 1 and (th, hf) == cfg.POLL_AT: ex0 = {0: (lambda: (poll_p(), p_load(0, PA), p_load(1, PBq), None)[-1])}
                if hq == 2 and th == 1 and hf == 0: ex0 = {0: (lambda: p_load(2, PA))}
                if hq == 3 and th == 1 and hf == 0: ex0 = {0: (lambda: p_load(3, PBq))}
                unit('B', wu, ('V', hq, th), 2*hf, th == 0 and hf == 0, nu, nr, extra0=ex0, nbg=(5 if bg else 0))
    head(0)
    stampc(1)
    a.e('s_nop 7'); a.e('s_nop 3')
    for nt in range(5):
        for x in cvt_tile(nt, VWB0): a.e(x)
    head(1)
    a.e('s_nop 7'); a.e('s_nop 3')
    a.e('s_waitcnt vmcnt(0)')
    fill = []
    for nt in range(5):
        c = cvt_tile(nt, None)
        fill += [c[:4], c[4:]]
    g2(VWB0, PA, first=True, fill=fill)
    a.e('s_nop 1')
    g2(None, PBq)
    head(2)
    a.e('s_nop 7'); a.e('s_nop 3')
    a.e('s_waitcnt vmcnt(0)')
    g2_inplace(PA)
    head(3)
    a.e('s_nop 7'); a.e('s_nop 3')
    a.e('s_waitcnt vmcnt(0)')
    g2_inplace(PBq)
    stampc(2)
    a.e('s_lshl_b32 s53, s%d, 2', S_BETA)
    a.e('s_add_u32 s53, s53, s%d', S_MB)
    a.e('s_lshl_b32 s53, s53, 2')
    a.e('s_add_u32 s53, s53, s%d', S_NS)
    a.e('s_lshl_b32 s53, s53, 3')
    a.e('s_lshl_b32 s54, s%d, 1', S_HG)
    a.e('s_add_u32 s54, s54, s%d', S_HH)
    a.e('s_nop 7'); a.e('s_nop 3')
    Tq = 16
    for ih in range(2):
        for nt in range(5):
            for j in range(4):
                a.e('v_cvt_pk_bf16_f32 v%d, v%d, v%d', Tq+20*ih+4*nt+j, OA+16*nt+8*ih+2*j, OA+16*nt+8*ih+2*j+1)
    for ih in range(2):
        a.e('s_lshl_b32 s47, s%d, 1', S_WAVE)
        a.e('s_add_u32 s47, s47, %d', ih)
        a.e('s_add_u32 s47, s47, s53')
        a.e('s_lshl_b32 s47, s47, 3')
        a.e('s_add_u32 s47, s47, s54')
        a.e('s_mul_i32 s47, s47, 5120')
        a.e('s_add_u32 s47, s47, 0x%x', WS_PART)
        for nt in range(5):
            if nt == 4: a.e('s_add_u32 s47, s47, 4096')
            a.e('buffer_store_dwordx4 v[%d:%d], v%d, s[%d:%d], s47 offen offset:%d sc1', Tq+20*ih+4*nt, Tq+20*ih+4*nt+3, PV, SRD_WS, SRD_WS+3, 1024*(nt % 4))
    a.e('s_waitcnt vmcnt(0)')
    stampc(3)
    a.e('s_lshl_b32 s47, s2, 2')
    a.e('s_add_u32 s47, s47, s%d', S_WAVE)
    a.e('s_lshl_b32 s47, s47, 6')
    a.e('s_add_u32 s47, s47, 0x%x', WS_RFLAG)
    a.e('v_mov_b32 v%d, 0', t0)
    a.e('v_mov_b32 v%d, s%d', t1, S_NONCE)
    a.e('s_mov_b64 exec, 1')
    a.e('buffer_store_dword v%d, v%d, s[%d:%d], s47 offen sc1', t1, t0, SRD_WS, SRD_WS+3)
    a.e('s_mov_b64 exec, -1')
    a.e('v_bfe_u32 v%d, v0, 1, 2', t0)
    a.e('v_and_b32 v%d, 1, v0', t1)
    a.e('v_lshl_add_u32 v%d, v%d, 7, v%d', t0, t1, t0)
    a.e('s_lshl_b32 s47, s%d, 2', S_BETA)
    a.e('s_lshl_b32 s48, s%d, 3', S_MB)
    a.e('s_add_u32 s47, s47, s48')
    a.e('s_lshl_b32 s48, s%d, 5', S_NS)
    a.e('s_add_u32 s47, s47, s48')
    a.e('v_add_u32 v%d, s47, v%d', t0, t0)
    a.e('v_lshlrev_b32 v%d, 8, v%d', t0, t0)
    a.e('s_lshr_b32 s48, s54, 1')
    a.e('s_lshl_b32 s48, s48, 6')
    a.e('s_add_u32 s47, s48, 0x%x', WS_RFLAG)
    lab = a.newlabel('pollr')
    a.label(lab)
    a.e('buffer_load_dword v%d, v%d, s[%d:%d], s47 offen sc1', t2, t0, SRD_WS, SRD_WS+3)
    a.e('s_waitcnt vmcnt(0)')
    a.e('v_cmp_ne_u32 vcc, s%d, v%d', S_NONCE, t2)
    a.e('s_add_u32 s63, s63, 64')
    a.e('s_cmp_gt_u32 s63, 600000')
    a.e('s_cbranch_scc1 %s_done', lab)
    a.e('s_nop 2')
    a.e('s_cbranch_vccnz %s', lab)
    a.label(lab + '_done')
    stampc(4)
    a.e('s_add_u32 s47, s53, s54')
    a.e('s_mul_i32 s47, s47, 40960')
    a.e('s_add_u32 s47, s47, 0x%x', WS_PART)
    a.e('s_lshl_b32 s48, s%d, 10', S_WAVE)
    a.e('s_add_u32 s48, s48, s47')
    a.e('s_add_u32 s49, s47, 4096')
    Rq = 16; Rq2 = 48
    for src in range(8):
        a.e('buffer_load_dwordx4 v[%d:%d], v%d, s[%d:%d], s48 offen sc1', Rq+4*src, Rq+4*src+3, PV, SRD_WS, SRD_WS+3)
        a.e('s_add_u32 s48, s48, 5120')
    a.e('s_lshl_b32 s55, s%d, 4', S_WAVE)
    a.e('s_mov_b64 s[56:57], 0xffff')
    a.e('s_lshl_b64 s[56:57], s[56:57], s55')
    a.e('s_mov_b64 exec, s[56:57]')
    for src in range(8):
        a.e('buffer_load_dwordx4 v[%d:%d], v%d, s[%d:%d], s49 offen sc1', Rq2+4*src, Rq2+4*src+3, PV, SRD_WS, SRD_WS+3)
        a.e('s_add_u32 s49, s49, 5120')
    a.e('s_mov_b64 exec, -1')
    a.e('s_lshl_b32 s47, s%d, 2', S_MB)
    a.e('s_lshr_b32 s48, s54, 1')
    a.e('s_add_u32 s47, s47, s48')
    a.e('s_mul_i32 s47, s47, %d', 32*2560)
    a.e('s_mul_i32 s48, s%d, 1280', S_BETA)
    a.e('s_add_u32 s47, s47, s48')
    a.e('s_mul_i32 s48, s%d, 320', S_NS)
    a.e('s_add_u32 s47, s47, s48')
    a.e('s_and_b32 s48, s54, 1')
    a.e('s_lshl_b32 s48, s48, 5')
    a.e('s_add_u32 s47, s47, s48')
    a.e('v_and_b32 v%d, 31, v0', t0)
    a.e('v_mul_u32_u24 v%d, 2560, v%d', t0, t0)
    a.e('v_lshrrev_b32 v%d, 5, v0', t1)
    a.e('v_lshl_add_u32 v%d, v%d, 3, v%d', t0, t1, t0)
    def reduce_store(R, A8, soff):
        for src in range(8):
            a.e('s_waitcnt vmcnt(%d)', remaining[0]); remaining[0] -= 1
            for j in range(4):
                s = R+4*src+j
                if src == 0:
                    a.e('v_lshlrev_b32 v%d, 16, v%d', A8+2*j, s)
                    a.e('v_and_b32 v%d, 0xffff0000, v%d', A8+2*j+1, s)
                else:
                    a.e('v_lshlrev_b32 v%d, 16, v%d', t2, s)
                    a.e('v_and_b32 v%d, 0xffff0000, v%d', t3, s)
                    a.e('v_add_f32 v%d, v%d, v%d', A8+2*j, A8+2*j, t2)
                    a.e('v_add_f32 v%d, v%d, v%d', A8+2*j+1, A8+2*j+1, t3)
        for j in range(4):
            a.e('v_cvt_pk_bf16_f32 v%d, v%d, v%d', A8+j, A8+2*j, A8+2*j+1)
        a.e('buffer_store_dwordx2 v[%d:%d], v%d, s[%d:%d], s%d offen', A8, A8+1, t0, SRD_OUT, SRD_OUT+3, soff)
        a.e('buffer_store_dwordx2 v[%d:%d], v%d, s[%d:%d], s%d offen offset:16', A8+2, A8+3, t0, SRD_OUT, SRD_OUT+3, soff)
    remaining = [15]
    a.e('s_lshl_b32 s48, s%d, 6', S_WAVE)
    a.e('s_add_u32 s48, s48, s47')
    a.e('s_add_u32 s49, s47, 256')
    reduce_store(Rq, 80, 48)
    remaining[0] = 7 + 2
    a.e('s_mov_b64 exec, s[56:57]')
    reduce_store(Rq2, 88, 49)
    a.e('s_mov_b64 exec, -1')
    if cfg.DIAG:
        a.e('s_waitcnt vmcnt(0)')
        stampc(5)
        a.e('s_waitcnt lgkmcnt(0)')
        a.e('v_mov_b32 v9, 0')
        for i in range(6):
            a.e('v_writelane_b32 v9, s%d, %d', 64+2*i, i)
            a.e('v_writelane_b32 v9, s%d, %d', 80+i, 10+i)
            if i < 3: a.e('v_writelane_b32 v9, s%d, %d', 88+2*i, 20+i)
        a.e('v_writelane_b32 v9, s76, 30'); a.e('v_writelane_b32 v9, s94, 31')
        for k in range(7):
            a.e('v_readlane_b32 s100, v13, %d', k); a.e('s_nop 3'); a.e('v_writelane_b32 v9, s100, %d', 52+k)
        lab = a.newlabel('nost')
        a.e('s_cmp_lg_u32 s%d, 0', S_WAVE)
        a.e('s_cbranch_scc1 %s', lab)
        stamp_store(a, 9, 10, region=1)
        a.label(lab)
    a.e('s_endpgm')
    for (lab, need) in slow:
        a.label(lab + '_slow')
        spin_flags(a, 0, need, VZ, VFL, 59)
        a.e('s_branch %s', lab)
    if cfg.SLOWCALL:
        a.label('common_slow')
        if cfg.DIAG:
            a.e('s_memrealtime s[100:101]'); a.e('s_waitcnt lgkmcnt(0)'); a.e('s_sub_u32 s99, s99, s100'); a.e('s_add_u32 s98, s98, 1')
        a.label('common_slow2')
        a.e('ds_read_b32 v%d, v%d', VF1, VFA)
        a.e('s_waitcnt lgkmcnt(0)')
        a.e('v_cmp_gt_u32 vcc, s61, v%d', VF1)
        a.e('s_add_u32 s63, s63, 1')
        a.e('s_cmp_gt_u32 s63, 300000')
        a.e('s_cbranch_scc1 common_ret')
        a.e('s_nop 1')
        a.e('s_cbranch_vccnz common_slow2')
        a.label('common_ret')
        if cfg.DIAG:
            a.e('s_memrealtime s[100:101]'); a.e('s_waitcnt lgkmcnt(0)'); a.e('s_add_u32 s99, s99, s100')
        a.e('s_add_u32 s56, s56, 4')
        a.e('s_addc_u32 s57, s57, 0')
        a.e('s_setpc_b64 s[56:57]')
    lab = slow_nonce
    a.label(lab)
    a.e('buffer_load_dword v%d, v%d, s[%d:%d], 0 offen sc1', t1, t0, SRD_DBG, SRD_DBG+3)
    a.e('s_waitcnt vmcnt(0)')
    a.e('v_readfirstlane_b32 s%d, v%d', S_NONCE, t1)
    a.e('s_add_u32 s63, s63, 64')
    a.e('s_cmp_gt_u32 s63, 300000')
    a.e('s_cbranch_scc1 %s_ok', lab)
    a.e('s_cmp_lg_u32 s%d, 0', S_NONCE)
    a.e('s_cbranch_scc0 %s', lab)
    a.e('s_branch %s_ok', lab)

def gen_loaders(a, T):
    XE_, XO, W0, VE, VO, WO0 = 2, 3, 4, 8, 9, 10
    LN = 14
    VZ = 22
    VQ, VT = 36, 44
    DUM = 48
    t0, t1, t2, t3 = 32, 33, 34, 35
    S_TMP, S_FULLA, S_LI, S_G = 56, 57, 58, 62
    S_GX, S_GW, S_GV, S_GO, S_GK = 52, 53, 54, 55, 64
    S_PW, S_PK, S_PH, S_PHS, S_PX = 68, 69, 70, 71, 76
    SRD_PH, SRD_T = 72, 84
    S_XI, S_WI, S_XS, S_WS, S_CNT, S_NEED = 77, 78, 79, 80, 81, 82
    S_WSA = 83; S_XSA = 94
    S_LXO, S_LWA, S_LWB = 65, 66, 67
    nt_pf = ' nt' if cfg.NT_PF else ''
    nt_r = ' nt' if cfg.NT else ''
    a.e('s_mov_b32 s63, 0')
    if cfg.LPRIO: a.e('s_setprio %d', cfg.LPRIO)
    a.e('s_sub_u32 s%d, s%d, 4', S_LI, S_WAVE)
    if cfg.DIAG: a.e('v_mov_b32 v30, 0')
    a.e('v_lshlrev_b32 v%d, 4, v0', LN)
    a.e('v_mov_b32 v%d, 0x%x', VZ, FLAG_BASE)
    lab = a.newlabel('init')
    a.e('s_cmp_lg_u32 s%d, 3', S_LI)
    a.e('s_cbranch_scc1 %s', lab)
    a.e('v_lshlrev_b32 v%d, 2, v0', t0)
    a.e('v_and_b32 v%d, 63, v%d', t0, t0)
    a.e('v_add_u32 v%d, v%d, v%d', t0, t0, VZ)
    a.e('v_mov_b32 v%d, 0', t1)
    a.e('ds_write_b32 v%d, v%d', t0, t1)
    a.label(lab)
    XPA = 15
    a.e('v_lshrrev_b32 v%d, 5, v0', t0)
    a.e('v_mul_u32_u24 v%d, 1280, v%d', t0, t0)
    a.e('v_and_b32 v%d, 31, v0', t1)
    a.e('v_lshl_add_u32 v%d, v%d, 4, v%d', XPA, t1, t0)
    a.e('v_lshrrev_b32 v%d, 3, v0', t0)
    a.e('v_and_b32 v%d, 7, v0', t1)
    a.e('v_lshrrev_b32 v%d, 4, v0', t2)
    a.e('v_xor_b32 v%d, v%d, v%d', t1, t1, t2)
    a.e('v_mul_u32_u24 v%d, 1280, v%d', t3, t0)
    a.e('v_lshl_add_u32 v%d, v%d, 4, v%d', XE_, t1, t3)
    a.e('v_xor_b32 v%d, 64, v%d', XO, XE_)
    a.e('v_mul_u32_u24 v%d, 384, v%d', t3, t0)
    a.e('v_lshl_add_u32 v%d, v%d, 4, v%d', VE, t1, t3)
    a.e('v_xor_b32 v%d, 64, v%d', VO, VE)
    for b in range(3):
        a.e('v_add_u32 v%d, %d, v0', t0, 64*b)
        div_const(a, t1, t0, 24, 191)
        a.e('v_mul_u32_u24 v%d, 24, v%d', t2, t1)
        a.e('v_sub_u32 v%d, v%d, v%d', t2, t0, t2)
        a.e('v_bfe_u32 v%d, v%d, 1, 1', t3, t1)
        a.e('v_lshlrev_b32 v%d, 2, v%d', t3, t3)
        a.e('v_xor_b32 v%d, v%d, v%d', t3, t3, t2)
        a.e('v_lshlrev_b32 v%d, 4, v%d', t3, t3)
        a.e('v_mul_u32_u24 v%d, 0x3000, v%d', W0+b, t1)
        a.e('v_add_u32 v%d, v%d, v%d', W0+b, W0+b, t3)
    a.e('s_lshl_b32 s%d, s%d, 7', S_GX, S_MB)
    a.e('s_lshl_b32 s%d, s%d, 5', S_TMP, S_LI)
    a.e('s_add_u32 s%d, s%d, s%d', S_GX, S_GX, S_TMP)
    a.e('s_mul_i32 s%d, s%d, 1280', S_GX, S_GX)
    a.e('s_mul_i32 s%d, s%d, 384', S_GW, S_H)
    a.e('s_mul_i32 s%d, s%d, %d', S_TMP, S_LI, 8*12288)
    a.e('s_add_u32 s%d, s%d, s%d', S_GW, S_GW, S_TMP)
    S_RC, S_RH = 96, 97
    if cfg.ROTA:
        a.e('s_mul_i32 s%d, s%d, 5', S_RC, S_MB)
        a.e('s_add_u32 s%d, s%d, 1', S_RC, S_RC)
        a.e('s_lshr_b32 s%d, s%d, 1', S_RC, S_RC)
        a.e('s_add_u32 s%d, s%d, s%d', S_RC, S_RC, S_HL)
        a.e('s_sub_u32 s%d, s%d, 10', S_TMP, S_RC)
        a.e('s_cmp_ge_u32 s%d, 10', S_RC)
        a.e('s_cselect_b32 s%d, s%d, s%d', S_RC, S_TMP, S_RC)
        a.e('s_lshl_b32 s%d, s%d, 7', S_TMP, S_RC)
        a.e('s_add_u32 s%d, s%d, s%d', S_GX, S_GX, S_TMP)
        a.e('s_mul_i32 s%d, s%d, 786432', S_TMP, S_RC)
        a.e('s_add_u32 s%d, s%d, s%d', S_GW, S_GW, S_TMP)
    a.e('s_lshl_b32 s%d, s%d, 12', S_LXO, S_LI)
    a.e('s_add_u32 s%d, s%d, %d', S_LXO, S_LXO, XB)
    a.e('s_mul_i32 s%d, s%d, 3072', S_LWA, S_LI)
    a.e('s_add_u32 s%d, s%d, %d', S_LWA, S_LWA, WB)
    a.e('s_mul_i32 s%d, s%d, 2560', S_LWB, S_LI)
    a.e('s_add_u32 s%d, s%d, %d', S_LWB, S_LWB, WB)
    a.e('s_lshl_b32 s%d, s%d, 2', S_TMP, S_LI)
    a.e('s_add_u32 s%d, s%d, 0x%x', S_FULLA, S_TMP, F_FULL)
    a.e('v_mov_b32 v%d, 0', VT+1)
    a.e('s_getpc_b64 s[%d:%d]', SRD_T, SRD_T+1)
    a.label('pc_here')
    a.e('s_add_u32 s%d, s%d, seqtab-pc_here', SRD_T, SRD_T)
    a.e('s_addc_u32 s%d, s%d, 0', SRD_T+1, SRD_T+1)
    a.e('s_mov_b32 s%d, 512', SRD_T+2)
    a.e('s_mov_b32 s%d, 0x20000', SRD_T+3)
    for r in (S_G, S_XI, S_WI, S_WSA, S_XSA): a.e('s_mov_b32 s%d, 0', r)
    a.e('s_lshl_b32 s%d, s%d, 7', S_PX, S_MB)
    a.e('s_lshl_b32 s%d, s%d, 4', S_TMP, S_HL)
    a.e('s_add_u32 s%d, s%d, s%d', S_PX, S_PX, S_TMP)
    a.e('s_mul_i32 s%d, s%d, 1280', S_PX, S_PX)
    a.e('s_mul_i32 s%d, s%d, 5120', S_TMP, S_LI)
    a.e('s_add_u32 s%d, s%d, s%d', S_PX, S_PX, S_TMP)
    a.e('s_lshl_b32 s%d, s%d, 1', S_PW, S_J)
    a.e('s_lshr_b32 s%d, s%d, 1', S_TMP, S_LI)
    a.e('s_lshl_b32 s%d, s%d, 6', S_TMP, S_TMP)
    a.e('s_add_u32 s%d, s%d, s%d', S_PW, S_PW, S_TMP)
    a.e('s_and_b32 s%d, s%d, 1', S_TMP, S_LI)
    a.e('s_add_u32 s%d, s%d, s%d', S_PW, S_PW, S_TMP)
    a.e('s_add_u32 s%d, s%d, 128', S_PW, S_PW)
    a.e('s_mul_i32 s%d, s%d, 12288', S_PW, S_PW)
    a.e('s_mul_i32 s%d, s%d, 3072', S_TMP, S_HG)
    a.e('s_add_u32 s%d, s%d, s%d', S_PW, S_PW, S_TMP)
    S_FREEC = 88
    a.e('s_mov_b32 s%d, 0', S_FREEC)
    a.e('s_waitcnt lgkmcnt(0)')
    a.e('s_barrier')
    def pf(srd, soff, n, off0=0):
        for i in range(n):
            if cfg.NOLOAD or not cfg.PF_ON: continue
            a.e('buffer_load_dwordx4 v[%d:%d], v%d, s[%d:%d], s%d offen offset:%d%s', DUM, DUM+3, LN, srd, srd+3, soff, off0 + 1024*i, nt_pf)
    def late_setup():
        lab = a.newlabel('nn')
        a.e('s_cmp_lg_u32 s%d, 3', S_LI)
        a.e('s_cbranch_scc1 %s', lab)
        a.e('s_cmp_lg_u32 s2, 0')
        a.e('s_cbranch_scc1 %s', lab)
        a.e('s_memrealtime s[60:61]')
        a.e('s_waitcnt lgkmcnt(0)')
        a.e('s_or_b32 s60, s60, 1')
        a.e('v_mov_b32 v%d, s60', t1)
        a.e('v_mov_b32 v%d, 0', t0)
        a.e('s_mov_b64 exec, 1')
        a.e('buffer_store_dword v%d, v%d, s[%d:%d], 0 offen sc1', t1, t0, SRD_DBG, SRD_DBG+3)
        a.e('s_mov_b64 exec, -1')
        a.label(lab)
        for b in range(3):
            a.e('v_add_u32 v%d, %d, v0', t0, 64*b)
            div_const(a, t1, t0, 20, 191)
            a.e('v_mul_u32_u24 v%d, 20, v%d', t2, t1)
            a.e('v_sub_u32 v%d, v%d, v%d', t2, t0, t2)
            a.e('v_mul_u32_u24 v%d, 1280, v%d', t3, t1)
            a.e('v_lshl_add_u32 v%d, v%d, 4, v%d', WO0+b, t2, t3)
        a.e('s_lshl_b32 s%d, s%d, 2', S_GK, S_MB)
        a.e('s_add_u32 s%d, s%d, s%d', S_GK, S_GK, S_LI)
        a.e('s_lshl_b32 s%d, s%d, 5', S_GK, S_GK)
        a.e('s_lshl_b32 s%d, s%d, 3', S_TMP, S_HG)
        a.e('s_add_u32 s%d, s%d, s%d', S_GV, S_GK, S_TMP)
        a.e('s_lshl_b32 s%d, s%d, 2', S_TMP, S_HH)
        a.e('s_add_u32 s%d, s%d, s%d', S_GV, S_GV, S_TMP)
        a.e('s_mul_i32 s%d, s%d, 12288', S_GV, S_GV)
        a.e('s_add_u32 s%d, s%d, s%d', S_GK, S_GK, S_H)
        a.e('s_mul_i32 s%d, s%d, 12288', S_GK, S_GK)
        a.e('s_mov_b32 s%d, s%d', S_PK, S_GK)
        a.e('s_lshl_b32 s%d, s%d, 3', S_GO, S_HG)
        a.e('s_lshl_b32 s%d, s%d, 2', S_TMP, S_HH)
        a.e('s_add_u32 s%d, s%d, s%d', S_GO, S_GO, S_TMP)
        a.e('s_mul_i32 s%d, s%d, 192', S_GO, S_GO)
        a.e('s_lshl_b32 s%d, s%d, 3', S_TMP, S_LI)
        a.e('s_add_u32 s%d, s%d, s%d', S_GO, S_GO, S_TMP)
        a.e('s_mul_i32 s%d, s%d, 1280', S_GO, S_GO)
        a.e('s_mul_i32 s%d, s%d, 320', S_TMP, S_NS)
        a.e('s_add_u32 s%d, s%d, s%d', S_GO, S_GO, S_TMP)
        if cfg.ROTB:
            a.e('s_add_u32 s%d, s%d, s%d', S_RH, S_MB, S_NS)
            a.e('s_and_b32 s%d, s%d, 3', S_RH, S_RH)
            a.e('s_mul_i32 s%d, s%d, 12288', S_TMP, S_RH)
            a.e('s_add_u32 s%d, s%d, s%d', S_GV, S_GV, S_TMP)
            a.e('s_mul_i32 s%d, s%d, %d', S_TMP, S_RH, 192*1280)
            a.e('s_add_u32 s%d, s%d, s%d', S_GO, S_GO, S_TMP)
        labv = a.newlabel('phv'); labe = a.newlabel('phe')
        a.e('s_cmp_ge_u32 s%d, 2', S_LI)
        a.e('s_cbranch_scc0 %s', labv)
        for i in range(4): a.e('s_mov_b32 s%d, s%d', SRD_PH+i, SRD_WO+i)
        a.e('s_mul_i32 s%d, s%d, %d', S_PH, S_HG, 8*245760)
        a.e('s_mul_i32 s%d, s%d, 7680', S_TMP, S_J)
        a.e('s_add_u32 s%d, s%d, s%d', S_PH, S_PH, S_TMP)
        a.e('s_sub_u32 s%d, s%d, 2', S_TMP, S_LI)
        a.e('s_mul_i32 s%d, s%d, 3584', S_TMP, S_TMP)
        a.e('s_add_u32 s%d, s%d, s%d', S_PH, S_PH, S_TMP)
        a.e('s_mov_b32 s%d, 245760', S_PHS)
        a.e('s_branch %s', labe)
        a.label(labv)
        for i in range(4): a.e('s_mov_b32 s%d, s%d', SRD_PH+i, SRD_V+i)
        a.e('s_lshl_b32 s%d, s%d, 2', S_PH, S_MB)
        a.e('s_lshr_b32 s%d, s%d, 1', S_TMP, S_HL)
        a.e('s_add_u32 s%d, s%d, s%d', S_PH, S_PH, S_TMP)
        a.e('s_lshl_b32 s%d, s%d, 5', S_PH, S_PH)
        a.e('s_lshl_b32 s%d, s%d, 3', S_TMP, S_HG)
        a.e('s_add_u32 s%d, s%d, s%d', S_PH, S_PH, S_TMP)
        a.e('s_mul_i32 s%d, s%d, 12288', S_PH, S_PH)
        a.e('s_and_b32 s%d, s%d, 1', S_TMP, S_HL)
        a.e('s_mul_i32 s%d, s%d, %d', S_TMP, S_TMP, 16*384)
        a.e('s_add_u32 s%d, s%d, s%d', S_PH, S_PH, S_TMP)
        a.e('s_lshl_b32 s%d, s%d, 11', S_TMP, S_LI)
        a.e('s_add_u32 s%d, s%d, s%d', S_PH, S_PH, S_TMP)
        a.e('s_mov_b32 s%d, 12288', S_PHS)
        a.label(labe)
    def pfh(hq):
        a.e('s_mul_i32 s%d, s%d, %d', S_TMP, S_PHS, hq)
        a.e('s_add_u32 s%d, s%d, s%d', S_TMP, S_TMP, S_PH)
        pf(SRD_PH, S_TMP, 4)
        a.e('s_lshl_b32 s%d, s%d, 2', S_NEED, S_PHS)
        a.e('s_add_u32 s%d, s%d, s%d', S_TMP, S_TMP, S_NEED)
        pf(SRD_PH, S_TMP, 4)
    def need_calc(ring):
        NX, NW = cfg.NX, cfg.NW
        if ring == 'W':
            a.e('s_sub_i32 s%d, s%d, %d', S_NEED, S_WI, NW-1)
            a.e('s_add_i32 s%d, s%d, 3', S_TMP, S_NEED)
            a.e('s_cmp_ge_i32 s%d, %d', S_WI, 20+NW)
            a.e('s_cselect_b32 s%d, s%d, s%d', S_NEED, S_TMP, S_NEED)
        else:
            a.e('s_sub_i32 s%d, s%d, %d', S_TMP, S_XI, NX)
            a.e('s_lshl_b32 s%d, s%d, 1', S_NEED, S_TMP)
            a.e('s_add_i32 s%d, s%d, 2', S_NEED, S_NEED)
            a.e('s_add_i32 s89, s%d, 11', S_TMP)
            a.e('s_cmp_ge_i32 s%d, 10', S_TMP)
            a.e('s_cselect_b32 s%d, s89, s%d', S_NEED, S_NEED)
            a.e('s_lshl_b32 s89, s%d, 1', S_TMP)
            a.e('s_sub_i32 s89, s89, 1')
            a.e('s_cmp_ge_i32 s%d, 13', S_TMP)
            a.e('s_cselect_b32 s%d, s89, s%d', S_NEED, S_NEED)
    gstate = {'X': 0, 'W': 0, 'done': 0}
    def gate(ring):
        if cfg.BARFREE:
            idx = gstate[ring]; gstate[ring] += 1
            need = (T['xneed'] if ring == 'X' else T['wneed'])[idx]
            if need > 0:
                k = next(i for i, t in enumerate(EVENTS) if t >= need) + 1
                while gstate['done'] < k:
                    a.e('s_barrier'); gstate['done'] += 1
            return
        if cfg.NOGATE: return
        lab = a.newlabel('gate')
        need_calc(ring)
        a.e('s_cmp_ge_i32 s%d, s%d', S_FREEC, S_NEED)
        a.e('s_cbranch_scc1 %s_ok', lab)
        a.label(lab)
        a.e('ds_read_b128 v[%d:%d], v%d offset:16', VQ, VQ+3, VZ)
        a.e('s_waitcnt lgkmcnt(0)')
        a.e('v_min3_u32 v%d, v%d, v%d, v%d', VQ, VQ, VQ+1, VQ+2)
        a.e('v_min_u32 v%d, v%d, v%d', VQ, VQ, VQ+3)
        a.e('s_nop 0')
        a.e('v_readfirstlane_b32 s%d, v%d', S_FREEC, VQ)
        a.e('s_add_u32 s63, s63, 1')
        a.e('s_cmp_ge_i32 s%d, s%d', S_FREEC, S_NEED)
        a.e('s_cbranch_scc1 %s_ok', lab)
        if cfg.GSLEEP: a.e('s_sleep %d', cfg.GSLEEP)
        a.e('s_cmp_gt_u32 s63, 300000')
        a.e('s_cbranch_scc0 %s', lab)
        a.label(lab + '_ok')
    def flagdma(stamp_it=False):
        if cfg.NOFLAG:
            a.e('s_add_u32 s%d, s%d, 1', S_G, S_G); return
        a.e('s_lshl_b32 s%d, s%d, 2', S_TMP, S_G)
        a.e('s_mov_b32 m0, s%d', S_FULLA)
        a.e('s_mov_b64 exec, 1')
        a.e('buffer_load_dword v%d, s[%d:%d], s%d offen lds', VT+1, SRD_T, SRD_T+3, S_TMP)
        a.e('s_mov_b64 exec, -1')
        a.e('s_add_u32 s%d, s%d, 1', S_G, S_G)
    def dma(voff, srd, soff_s, gconst, lbase_s, lconst, half=False):
        if cfg.NOLOAD: return
        if cfg.DUMMYLDS: a.e('s_mov_b32 m0, 0x%x', 152576 + (lconst % 4096))
        else: a.e('s_add_u32 m0, s%d, 0x%x', lbase_s, lconst)
        if cfg.LINV: voff = LN
        a.e('s_add_u32 s%d, s%d, 0x%x', S_TMP, soff_s, gconst)
        if half: a.e('s_mov_b32 exec_hi, 0')
        a.e('buffer_load_dwordx4 v%d, s[%d:%d], s%d offen%s lds', voff, srd, srd+3, S_TMP, nt_r)
        if half: a.e('s_mov_b32 exec_hi, -1')
    def xunit(ve, vo, srd, sg, rowstride, flag=False):
        gate('X')
        a.e('s_waitcnt vmcnt(%d)', cfg.VMCAP)
        a.e('s_lshl_b32 s%d, s%d, 14', S_XS, S_XSA)
        a.e('s_add_u32 s%d, s%d, s%d', S_XS, S_XS, S_LXO)
        a.e('s_add_u32 s%d, s%d, 1', S_XSA, S_XSA)
        a.e('s_cmp_eq_u32 s%d, %d', S_XSA, cfg.NX)
        a.e('s_cselect_b32 s%d, 0, s%d', S_XSA, S_XSA)
        for q in range(4):
            dma(ve if q % 2 == 0 else vo, srd, sg, q*8*rowstride, S_XS, q*1024)
        if flag: flagdma()
        else: a.e('s_add_u32 s%d, s%d, 1', S_G, S_G)
        a.e('s_add_u32 s%d, s%d, 1', S_XI, S_XI)
    def wunit(kind, flag=True):
        gate('W')
        a.e('s_mul_i32 s%d, s%d, %d', S_WS, S_WSA, WSZ)
        a.e('s_add_u32 s%d, s%d, s%d', S_WS, S_WS, S_LWA if kind == 'A' else S_LWB)
        if kind == 'A':
            for b in range(3): dma(W0+b, SRD_WQ, S_GW, 0, S_WS, b*1024)
            if not cfg.SAMEADDR: a.e('s_add_u32 s%d, s%d, %d', S_GW, S_GW, 32*12288)
        else:
            for b in range(3): dma(WO0+b, SRD_WO, S_GO, 0, S_WS, b*1024, half=(b == 2))
            if not cfg.SAMEADDR: a.e('s_add_u32 s%d, s%d, %d', S_GO, S_GO, 32*1280)
        if flag: flagdma()
        else: a.e('s_add_u32 s%d, s%d, 1', S_G, S_G)
        a.e('s_add_u32 s%d, s%d, 1', S_WI, S_WI)
        a.e('s_add_u32 s%d, s%d, 1', S_WSA, S_WSA)
        a.e('s_cmp_eq_u32 s%d, %d', S_WSA, cfg.NW)
        a.e('s_cselect_b32 s%d, 0, s%d', S_WSA, S_WSA)
    def stampx():
        if cfg.DIAG:
            a.e('s_memrealtime s[60:61]')
            a.e('s_mov_b32 m0, s%d', S_XI)
            a.e('s_waitcnt lgkmcnt(0)')
            a.e('v_writelane_b32 v30, s60, m0')
    def chunkA(firstflag=False):
        xunit(XE_, XO, SRD_X, S_GX, 1280)
        if not cfg.SAMEADDR: a.e('s_add_u32 s%d, s%d, 128', S_GX, S_GX)
        wunit('A', firstflag); wunit('A')
        if cfg.ROTA:
            a.e('s_add_u32 s%d, s%d, 1', S_RC, S_RC)
            a.e('s_cmp_eq_u32 s%d, 10', S_RC)
            a.e('s_cselect_b32 s98, 1280, 0')
            a.e('s_cselect_b32 s99, %d, 0', 10*786432)
            a.e('s_cselect_b32 s%d, 0, s%d', S_RC, S_RC)
            a.e('s_sub_u32 s%d, s%d, s98', S_GX, S_GX)
            a.e('s_sub_u32 s%d, s%d, s99', S_GW, S_GW)
        stampx()
    def thirdB(th):
        xunit(VE, VO, SRD_V, S_GV, 384)
        if not cfg.SAMEADDR: a.e('s_add_u32 s%d, s%d, %d', S_GV, S_GV, 128 if th < 2 else 12288-256)
        wunit('B', False); wunit('B')
        if cfg.ROTB and th == 2:
            a.e('s_add_u32 s%d, s%d, 1', S_RH, S_RH)
            a.e('s_cmp_eq_u32 s%d, 4', S_RH)
            a.e('s_cselect_b32 s98, %d, 0', 4*12288)
            a.e('s_cselect_b32 s99, %d, 0', 4*192*1280)
            a.e('s_cselect_b32 s%d, 0, s%d', S_RH, S_RH)
            a.e('s_sub_u32 s%d, s%d, s98', S_GV, S_GV)
            a.e('s_sub_u32 s%d, s%d, s99', S_GO, S_GO)
        stampx()
    S_PHASE, S_PW0 = 90+2, 90+3
    NPH = cfg.NPHASE
    def pf_wq(p):
        if p >= 1: a.e('s_add_u32 s%d, s%d, %d', S_TMP, S_PW, (p-1)*2*786432)
        else: a.e('s_sub_u32 s%d, s%d, %d', S_TMP, S_PW, 2*786432)
        pf(SRD_WQ, S_TMP, 3)
    def pf_head(hd):
        a.e('s_mul_i32 s%d, s%d, %d', S_TMP, S_PHS, hd)
        a.e('s_add_u32 s%d, s%d, s%d', S_TMP, S_TMP, S_PH)
        pf(SRD_PH, S_TMP, 4)
    bursts = cfg.BURSTS
    def maybe_burst(slot):
        for (bs, items) in bursts:
            for ph in range(NPH):
                if bs + ph == slot:
                    lab = a.newlabel('nb')
                    if NPH > 1:
                        a.e('s_cmp_eq_u32 s%d, %d', S_PHASE, ph)
                        a.e('s_cbranch_scc0 %s', lab)
                    if cfg.DIAG3:
                        a.e('s_waitcnt vmcnt(0)')
                        a.e('s_memrealtime s[60:61]'); a.e('s_waitcnt lgkmcnt(0)'); a.e('s_mov_b32 s95, s60')
                    for it in items:
                        if it[0] == 'w': pf_wq(it[1])
                        elif it[0] == 'h': pf_head(it[1])
                        elif it[0] == 'x':
                            pf(SRD_X, S_PX, 4)
                            a.e('s_add_u32 s%d, s%d, 4096', S_TMP, S_PX)
                            pf(SRD_X, S_TMP, 1)
                        elif it[0] == 'k':
                            a.e('s_add_u32 s%d, s%d, %d', S_TMP, S_PK, it[1]*4096)
                            pf(SRD_K, S_TMP, 4)
                    if cfg.DIAG3:
                        a.e('s_waitcnt vmcnt(0)')
                        a.e('s_memrealtime s[60:61]'); a.e('s_waitcnt lgkmcnt(0)'); a.e('s_sub_u32 s60, s60, s95')
                        a.e('s_add_u32 s60, s60, 1')
                        a.e('v_writelane_b32 v30, s60, %d', 52 + bursts.index((bs, items)))
                    a.label(lab)
    if cfg.START == 0:
        chunkA(cfg.FIRST2)
        if cfg.INITPF:
            pf(SRD_X, S_PX, 4)
            a.e('s_add_u32 s%d, s%d, 4096', S_TMP, S_PX)
            pf(SRD_X, S_TMP, 1)
            pf_wq(1)
        late_setup()
    else:
        pf_wq(0); pf_wq(1)
        if cfg.PF_ON and not cfg.NOLOAD:
            a.e('s_mul_i32 s%d, s%d, 5120', S_TMP, S_LI)
            a.e('s_sub_u32 s%d, s%d, s%d', S_NEED, S_PX, S_TMP)
            a.e('s_mul_i32 s%d, s%d, %d', S_TMP, S_LI, 4*1280)
            a.e('s_add_u32 s%d, s%d, s%d', S_TMP, S_TMP, S_NEED)
            for i in range(2):
                a.e('buffer_load_dwordx4 v[%d:%d], v%d, s[%d:%d], s%d offen offset:%d%s', DUM, DUM+3, XPA, SRD_X, SRD_X+3, S_TMP, 2560*i, nt_pf)
        chunkA()
        late_setup()
    if NPH == 3:
        a.e('s_mul_i32 s%d, s%d, 11', S_PHASE, S_J)
        a.e('s_lshr_b32 s%d, s%d, 5', S_PHASE, S_PHASE)
        a.e('s_mul_i32 s%d, s%d, 3', S_PHASE, S_PHASE)
        a.e('s_sub_u32 s%d, s%d, s%d', S_PHASE, S_J, S_PHASE)
    else:
        a.e('s_and_b32 s%d, s%d, %d', S_PHASE, S_J, NPH-1)
    if cfg.DIAG:
        stamp(a, 0)
        a.e('s_memtime s[60:61]')
        a.e('s_waitcnt lgkmcnt(0)')
        a.e('v_writelane_b32 v30, s60, 50')
    for slot in range(1, 23):
        maybe_burst(slot)
        if slot < 10: chunkA()
        elif slot == 10:
            for th in range(3):
                xunit(VE, VO, SRD_K, S_GK, 384, flag=True)
                if not cfg.SAMEADDR: a.e('s_add_u32 s%d, s%d, 128', S_GK, S_GK)
                stampx()
        else: thirdB((slot - 11) % 3)
    a.e('s_waitcnt vmcnt(0)')
    if cfg.DIAG:
        lab = a.newlabel('dge')
        a.e('s_cmp_lg_u32 s%d, 0', S_LI)
        a.e('s_cbranch_scc1 %s', lab)
        stamp(a, 40)
        a.e('v_writelane_b32 v30, s90, 41')
        a.e('s_memtime s[60:61]')
        a.e('s_waitcnt lgkmcnt(0)')
        a.e('v_writelane_b32 v30, s60, 51')
        a.e('s_getreg_b32 s60, hwreg(HW_REG_XCC_ID)')
        a.e('s_add_u32 s60, s60, 100')
        a.e('v_writelane_b32 v30, s60, 63')
        stamp_store(a)
        a.label(lab)
    a.e('s_waitcnt lgkmcnt(0)')
    a.e('s_endpgm')

def main(outpath):
    layout()
    a = Asm()
    T = tables()
    hdr = HEADER + '; @launch grid=(256,1,1) block=(512,1,1) lds=%d\n' % LDS_TOTAL
    a.raw(hdr + '.amdgcn_target "amdgcn-amd-amdhsa--gfx950"\n.text')
    kernel_begin(a, KNAME)
    prologue(a, 'kend')
    a.e('s_cmp_ge_u32 s%d, 4', S_WAVE)
    a.e('s_cbranch_scc0 computew')
    ac = Asm(); ac.nlabel = 100000
    gen_compute(ac, T)
    gen_loaders(a, T)
    a.label('computew')
    a.lines += ac.lines
    a.label('kend')
    a.e('s_endpgm')
    a.raw('.p2align 8')
    a.label('seqtab')
    for i in range(128): a.raw('    .long %d' % (i+1))
    a.raw('.section .rodata,"a"\n.p2align 6')
    a.raw(kernel_desc(KNAME, 256))
    open(outpath, 'w').write(a.text())

if __name__ == '__main__':
    for k, v in os.environ.items():
        if k.startswith('CFG_'):
            name = k[4:]
            cur = getattr(cfg, name)
            setattr(cfg, name, (v not in ('0', 'False', '')) if isinstance(cur, bool) else int(v))
    BSETS = {
      0: [(1, [('w', 2), ('w', 3)]), (3, [('w', 4), ('h', 0)]), (6, [('h', 4), ('h', 1)]), (9, [('h', 5), ('h', 2)]), (12, [('h', 6), ('h', 3)]), (15, [('h', 7)])],
      1: [(1, [('w', 2)]), (2, [('w', 3)]), (4, [('w', 4)]), (7, [('h', 0), ('h', 4)]), (11, [('h', 1), ('h', 5)]), (14, [('h', 2), ('h', 6)]), (17, [('h', 3), ('h', 7)])],
      3: [(1, [('x',), ('w', 2)]), (3, [('w', 3), ('w', 4)]), (6, [('h', 0), ('h', 4)]), (11, [('h', 1), ('h', 5)]), (14, [('h', 2), ('h', 6)]), (17, [('h', 3), ('h', 7)])],
      4: [(1, [('x',), ('w', 2)]), (3, [('w', 3), ('w', 4)]), (5, [('k', 0), ('k', 1)]), (7, [('k', 2), ('h', 0)]), (9, [('h', 4), ('h', 1)]), (12, [('h', 5), ('h', 2)]), (15, [('h', 6), ('h', 3)]), (18, [('h', 7)])],
      5: [(1, [('x',), ('w', 2), ('w', 3)]), (4, [('w', 4), ('k', 0)]), (6, [('k', 1), ('k', 2)]), (8, [('h', 0), ('h', 4)]), (11, [('h', 1), ('h', 5)]), (14, [('h', 2), ('h', 6)]), (17, [('h', 3), ('h', 7)])],
      6: [(1, [('w', 2)]), (2, [('w', 3)]), (4, [('w', 4)])],
      7: [(7, [('h', 0), ('h', 4)]), (11, [('h', 1), ('h', 5)]), (14, [('h', 2), ('h', 6)]), (17, [('h', 3), ('h', 7)])],
      8: [(9, [('h', 0), ('h', 4)]), (12, [('h', 1), ('h', 5)]), (15, [('h', 2), ('h', 6)]), (18, [('h', 3), ('h', 7)])],
      9: [(5, [('k', 0), ('k', 1), ('k', 2)])],
      2: [(1, [('w', 2), ('w', 3)]), (4, [('w', 4), ('h', 0)]), (7, [('h', 4), ('h', 1)]), (10, [('h', 5), ('h', 2)]), (13, [('h', 6), ('h', 3)]), (16, [('h', 7)])],
    }
    cfg.BURSTS = BSETS[cfg.BSET]
    cfg.PUB_AT = (cfg.PUB // 2, cfg.PUB % 2); cfg.POLL_AT = (cfg.POLL // 2, cfg.POLL % 2)
    main(sys.argv[1])
```

```python
import sys, os, math, struct
from asmlib import *

NAME = 'concat_heads__gqa_block_cached__mha_block_cached__near_ridge'
KNAME = NAME + '_kernel'
WS_P = 0
WS_PFLAG = 3 << 20
WS_RFLAG = (3 << 20) + (1 << 17)
WS_PART = 4 << 20
WS_DIAG = 24 << 20
WS_SIZE = 32 << 20

EVENTS = []
class Cfg: pass
cfg = Cfg()
cfg.DIAG = False; cfg.NT = False; cfg.NT_PF = False; cfg.PF_ON = False; cfg.NOLOAD = False; cfg.SAMEADDR = False
cfg.VMCAP = 24; cfg.NPHASE = 1; cfg.OUT16 = True; cfg.OUTPOL = 0; cfg.FIRST2 = False; cfg.BARFREE = False; cfg.SMOOTH = False; cfg.FREE1 = True; cfg.FREEX = False; cfg.ROTA = False; cfg.ROTB = False; cfg.INITPF = True; cfg.PUB = 4; cfg.POLL = 4; cfg.START = 0; cfg.DIAG3 = False; cfg.BSET = 3; cfg.SLOWCALL = True; cfg.NOSYNC = False; cfg.NOGATE = False; cfg.GSLEEP = 0; cfg.NOFLAG = False; cfg.DUMMYLDS = False; cfg.LINV = False; cfg.LPRIO = 0; cfg.CPRIO = 0; cfg.PF_K = False; cfg.NX = 4; cfg.NW = 7

S_BETA, S_HG, S_MB, S_HL = 4, 5, 6, 7
SRD_X, SRD_WQ, SRD_K, SRD_V, SRD_WO, SRD_WS, SRD_OUT, SRD_DBG = 8, 12, 16, 20, 24, 28, 32, 36
S_WAVE, S_XCD, S_J, S_H, S_NS, S_HH = 3, 40, 41, 46, 42, 43
LDS_TOTAL = 163840
XB, XSZ = 0, 16384
WSZ = 12288

def layout():
    global WB, FLAG_BASE, F_FULL, F_FREE
    WB = XB + cfg.NX * XSZ
    FLAG_BASE = WB + cfg.NW * WSZ
    assert FLAG_BASE + 64 <= LDS_TOTAL
    F_FULL = FLAG_BASE; F_FREE = FLAG_BASE + 16

def tables():
    xs = [('x', i) for i in range(10)] + [('K', t) for t in range(3)] + [('V', h, t) for h in range(4) for t in range(3)]
    wsq = [('wq', i) for i in range(20)] + [('wo', h, t, f) for h in range(4) for t in range(3) for f in range(2)]
    load = []
    for i in range(10): load += [('x', i), ('wq', 2*i), ('wq', 2*i+1)]
    load += [('K', t) for t in range(3)]
    for h in range(4):
        for t in range(3): load += [('V', h, t), ('wo', h, t, 0), ('wo', h, t, 1)]
    lidx = {u: i for i, u in enumerate(load)}
    tick = {}
    tk = 0
    for i in range(10):
        tk += 1; tick[('wq', 2*i)] = tk
        tk += 1; tick[('wq', 2*i+1)] = tk; tick[('x', i)] = tk
    for t in range(3):
        tk += 1; tick[('K', t)] = tk
    for h in range(4):
        for t in range(3):
            tk += 1; tick[('wo', h, t, 0)] = tk
            tk += 1; tick[('wo', h, t, 1)] = tk; tick[('V', h, t)] = tk
    xsl = {u: (i % cfg.NX) for i, u in enumerate(xs)}
    wsl = {u: (i % cfg.NW) for i, u in enumerate(wsq)}
    xneed = [tick[xs[i-cfg.NX]] if i >= cfg.NX else 0 for i in range(len(xs))]
    wneed = [tick[wsq[i-cfg.NW]] if i >= cfg.NW else 0 for i in range(len(wsq))]
    return dict(xs=xs, ws=wsq, load=load, lidx=lidx, tick=tick, xsl=xsl, wsl=wsl, xneed=xneed, wneed=wneed, ntick=tk)

def stamp(a, idx, vreg=30):
    if not cfg.DIAG: return
    a.e('s_memrealtime s[60:61]')
    a.e('s_waitcnt lgkmcnt(0)')
    a.e('v_writelane_b32 v%d, s60, %d', vreg, idx)
def stamp_store(a, vreg=30, vtmp=31, region=0):
    if not cfg.DIAG: return
    a.e('v_lshlrev_b32 v%d, 2, v0', vtmp)
    a.e('s_lshl_b32 s60, s2, 8')
    a.e('s_add_u32 s60, s60, 0x%x', WS_DIAG + region*65536)
    a.e('buffer_store_dword v%d, v%d, s[%d:%d], s60 offen', vreg, vtmp, SRD_WS, SRD_WS+3)

def prologue(a, endlabel):
    if cfg.DIAG: a.e('s_memrealtime s[90:91]')
    a.e('s_cmp_ge_u32 s2, 256')
    a.e('s_cbranch_scc1 %s', endlabel)
    a.e('s_and_b32 s%d, s2, 7', S_XCD)
    a.e('s_lshr_b32 s%d, s2, 3', S_J)
    a.e('s_lshr_b32 s%d, s%d, 2', S_BETA, S_XCD)
    a.e('s_and_b32 s%d, s%d, 3', S_HG, S_XCD)
    a.e('s_and_b32 s%d, s%d, 3', S_MB, S_J)
    a.e('s_lshr_b32 s%d, s%d, 2', S_HL, S_J)
    a.e('s_mul_i32 s47, s%d, 40', S_BETA)
    a.e('s_add_u32 s44, s0, s47')
    a.e('s_addc_u32 s45, s1, 0')
    a.e('s_load_dwordx2 s[%d:%d], s[44:45], 0', SRD_X, SRD_X+1)
    a.e('s_load_dwordx2 s[%d:%d], s[44:45], 24', SRD_WQ, SRD_WQ+1)
    a.e('s_load_dwordx2 s[%d:%d], s[44:45], 8', SRD_K, SRD_K+1)
    a.e('s_load_dwordx2 s[%d:%d], s[44:45], 16', SRD_V, SRD_V+1)
    a.e('s_load_dwordx2 s[%d:%d], s[44:45], 32', SRD_WO, SRD_WO+1)
    a.e('s_load_dwordx2 s[%d:%d], s[0:1], 80', SRD_OUT, SRD_OUT+1)
    a.e('s_load_dwordx2 s[%d:%d], s[0:1], 88', SRD_DBG, SRD_DBG+1)
    a.e('s_load_dwordx2 s[%d:%d], s[0:1], 96', SRD_WS, SRD_WS+1)
    a.e('v_lshrrev_b32 v1, 6, v0')
    a.e('v_and_b32 v0, 63, v0')
    for srd, sz in ((SRD_X, 655360), (SRD_WQ, 7864320), (SRD_K, 6291456), (SRD_V, 6291456), (SRD_WO, 7864320),
                    (SRD_WS, WS_SIZE), (SRD_OUT, 1310720), (SRD_DBG, 256)):
        a.e('s_mov_b32 s%d, 0x%x', srd+2, sz)
        a.e('s_mov_b32 s%d, 0x20000', srd+3)
    a.e('v_readfirstlane_b32 s%d, v1', S_WAVE)
    a.e('s_lshl_b32 s%d, s%d, 3', S_H, S_HG)
    a.e('s_add_u32 s%d, s%d, s%d', S_H, S_H, S_HL)
    a.e('s_and_b32 s%d, s%d, 3', S_NS, S_HL)
    a.e('s_lshr_b32 s%d, s%d, 2', S_HH, S_HL)

def div_const(a, vd, vs, d, maxv):
    M = -(-65536 // d)
    for x in range(maxv+1):
        assert (x*M) >> 16 == x // d, (x, d)
    a.e('v_mul_u32_u24 v%d, 0x%x, v%d', vd, M, vs)
    a.e('v_lshrrev_b32 v%d, 16, v%d', vd, vd)

class LdsTrack:
    def __init__(self, a):
        self.a = a; self.q = []
    def read(self, text, lo, n):
        self.a.e(text); self.q.append((lo, lo+n-1))
    def other(self, text):
        self.a.e(text); self.q.append((-1, -1))
    def need(self, *ranges):
        last = -1
        for i, (lo, hi) in enumerate(self.q):
            for (l, n) in ranges:
                if not (hi < l or lo > l+n-1): last = i
        if last >= 0:
            k = min(15, len(self.q) - 1 - last)
            self.a.e('s_waitcnt lgkmcnt(%d)', k)
            self.q = self.q[len(self.q)-k:] if k else []
    def drain(self):
        if self.q:
            self.a.e('s_waitcnt lgkmcnt(0)'); self.q = []

def spin_flags(a, off, need, vz, vt, stmp, sleep=0):
    lab = a.newlabel('sp')
    a.label(lab)
    a.e('ds_read_b128 v[%d:%d], v%d offset:%d', vt, vt+3, vz, off)
    a.e('s_waitcnt lgkmcnt(0)')
    a.e('v_min3_u32 v%d, v%d, v%d, v%d', vt, vt, vt+1, vt+2)
    a.e('v_min_u32 v%d, v%d, v%d', vt, vt, vt+3)
    a.e('s_nop 0')
    a.e('v_readfirstlane_b32 s%d, v%d', stmp, vt)
    a.e('s_add_u32 s63, s63, 1')
    a.e('s_cmp_gt_u32 s63, 0x%x', 300000)
    a.e('s_cbranch_scc1 %s_ok', lab)
    a.e('s_cmp_ge_u32 s%d, %d', stmp, need)
    if sleep:
        a.e('s_cbranch_scc1 %s_ok', lab)
        a.e('s_sleep %d', sleep)
        a.e('s_branch %s', lab)
    else:
        a.e('s_cbranch_scc0 %s', lab)
    a.label(lab + '_ok')

def gen_compute(a, T):
    lidx, tick, xsl, wsl = T['lidx'], T['tick'], T['xsl'], T['wsl']
    XREL = 2
    WEl, WOl, WEh, WOh = 6, 7, 8, 9
    WBl, WBh = 6, 8
    VFA, VFR, VCNT, PV = 10, 1, 15, 11
    VZ, VFL, TMP = 14, 252, 248
    VF1 = 12
    t0, t1, t2, t3 = TMP, TMP+1, TMP+2, TMP+3
    ACC = 16
    AF = [112, 136]; XF = [160, 164]
    VW, OA, SACC = 16, 168, 96
    QBm = [OA+0, OA+4, OA+8, OA+12] + [OA+16*k+q for k in range(1, 5) for q in (0, 4)]
    QBm += []
    VWB0 = [OA+16*(nt+1)+8 for nt in range(4)] + [104]
    PA = [96, 100]; PBq = [132, 156]
    PK = OA
    S_NONCE = 62
    L = LdsTrack(a)
    a.e('s_mov_b32 s63, 0')
    if cfg.DIAG: a.e('s_mov_b32 s99, 0'); a.e('s_mov_b32 s98, 0')
    if cfg.CPRIO: a.e('s_setprio %d', cfg.CPRIO)
    a.e('v_mov_b32 v%d, 0x%x', VZ, FLAG_BASE)
    a.e('v_and_b32 v%d, 3, v0', t0)
    a.e('v_lshl_add_u32 v%d, v%d, 2, v%d', VFA, t0, VZ)
    a.e('v_lshlrev_b32 v%d, 2, v0', t0)
    a.e('v_add_u32 v%d, 0x%x, v%d', VFR, FLAG_BASE + 64, t0)
    a.e('s_lshl_b32 s58, s%d, 2', S_WAVE)
    a.e('s_add_u32 s58, s58, 0x%x', F_FREE)
    a.e('v_writelane_b32 v%d, s58, 0', VFR)
    a.e('v_mov_b32 v%d, 0', VCNT)
    a.e('v_and_b32 v%d, 31, v0', t0)
    a.e('v_lshrrev_b32 v%d, 5, v0', t1)
    a.e('v_bfe_u32 v%d, v0, 1, 3', t2)
    a.e('v_xor_b32 v%d, v%d, v%d', t2, t2, t1)
    a.e('s_lshl_b32 s47, s%d, 12', S_WAVE)
    a.e('v_lshlrev_b32 v%d, 7, v%d', t3, t0)
    a.e('v_add_u32 v%d, s47, v%d', t3, t3)
    if XB: a.e('v_add_u32 v%d, %d, v%d', t3, XB, t3)
    for s_ in range(4):
        a.e('v_xor_b32 v%d, %d, v%d', XREL+s_, 2*s_, t2)
        a.e('v_lshl_add_u32 v%d, v%d, 4, v%d', XREL+s_, XREL+s_, t3)
        a.e('v_add_u32 v%d, 0x10000, v%d', 252+s_, XREL+s_)
    a.e('v_bfe_u32 v%d, v0, 2, 2', t0)
    a.e('v_lshrrev_b32 v%d, 5, v0', t1)
    a.e('v_lshl_add_u32 v%d, v%d, 3, v%d', t0, t1, t0)
    a.e('v_mul_u32_u24 v%d, 384, v%d', t0, t0)
    a.e('v_bfe_u32 v%d, v0, 4, 1', t1)
    a.e('v_lshl_add_u32 v%d, v%d, 5, v%d', t0, t1, t0)
    a.e('v_and_b32 v%d, 1, v0', t1)
    a.e('v_lshl_add_u32 v%d, v%d, 4, v%d', t0, t1, t0)
    a.e('v_bfe_u32 v%d, v0, 1, 1', t1)
    a.e('v_lshl_add_u32 v%d, v%d, 3, v%d', t0, t1, t0)
    a.e('v_add_u32 v%d, 0x%x, v%d', t0, WB, t0)
    a.e('v_bfe_u32 v%d, v0, 3, 1', t1)
    a.e('v_lshlrev_b32 v%d, 6, v%d', t1, t1)
    a.e('v_add_u32 v%d, v%d, v%d', WEl, t0, t1)
    a.e('v_sub_u32 v%d, v%d, v%d', WOl, t0, t1)
    a.e('v_add_u32 v%d, %d, v%d', WEh, 4*WSZ, WEl)
    a.e('v_add_u32 v%d, %d, v%d', WOh, 4*WSZ, WOl)
    a.e('v_lshlrev_b32 v%d, 4, v0', PV)
    a.e('s_waitcnt lgkmcnt(0)')
    a.e('s_barrier')

    slow = []
    bg = []
    def emit_bg(n):
        for _ in range(n):
            if bg: a.e(bg.pop(0))
    def flag_prefetch():
        L.read('ds_read_b32 v%d, v%d' % (VF1, VFA), VF1, 1)
    pend = {}
    def flag_cmp(unit):
        L.need((VF1, 1))
        need = lidx[unit] + 1
        a.e('v_cmp_gt_u32 vcc, %d, v%d', need, VF1)
        pend['need'] = need
    def flag_branch():
        if cfg.NOSYNC: return
        if cfg.SLOWCALL:
            a.e('s_mov_b32 s61, %d', pend['need'])
            a.e('s_getpc_b64 s[56:57]')
            a.e('s_cbranch_vccnz common_slow')
        else:
            lab = a.newlabel('fl')
            a.e('s_cbranch_vccnz %s_slow', lab)
            a.label(lab)
            slow.append((lab, pend['need']))
    def flag_check(unit):
        flag_cmp(unit); a.e('s_nop 4'); flag_branch()
    ticknow = [0]
    def signal_free(skip=False):
        if cfg.BARFREE:
            ticknow[0] += 1
            if skip: return
            EVENTS.append(ticknow[0])
            a.e('s_barrier')
            return
        a.e('v_add_u32 v%d, 1, v%d', VCNT, VCNT)
        if skip and cfg.FREE1: return
        if cfg.FREEX:
            a.e('s_mov_b64 exec, 1')
            L.other('ds_write_b32 v%d, v%d' % (VFR, VCNT))
            a.e('s_mov_b64 exec, -1')
        else:
            L.other('ds_write_b32 v%d, v%d' % (VFR, VCNT))
    XRELH = 252
    def xread(dst, xu, xs_):
        sl = xsl[xu]
        if sl >= 4: return ('ds_read_b128 v[%d:%d], v%d offset:%d' % (dst, dst+3, XRELH+xs_, (sl-4)*XSZ), dst, 4)
        return ('ds_read_b128 v[%d:%d], v%d offset:%d' % (dst, dst+3, XREL+xs_, sl*XSZ), dst, 4)
    def reads(kind, xu, xs_, wu, ws_, k):
        r = [xread(XF[k], xu, xs_)]
        sl = wsl[wu]; hi = sl >= 4; so = (sl - 4 if hi else sl)*WSZ
        for t in range(6 if kind == 'A' else 5):
            for u in range(2):
                d = AF[k]+4*t+2*u
                if kind == 'A':
                    base = (WEh if hi else WEl) if t % 2 == 0 else (WOh if hi else WOl)
                    off = so + (16*ws_+4*u)*384 + 64*t
                else:
                    base = WBh if hi else WBl
                    off = so + (16*ws_+4*u)*320 + 64*t
                r.append(('ds_read_b64_tr_b16 v[%d:%d], v%d offset:%d' % (d, d+1, base, off), d, 2))
        return r
    def step(kind, k, nreads, per, first=False, hooks=None, nbg=0):
        nt_ = 6 if kind == 'A' else 5
        idx = 0
        for t in range(nt_):
            L.need((AF[k]+4*t, 4), (XF[k], 4))
            D = (ACC if kind == 'A' else VW) + 16*t
            c = '0' if first else 'v[%d:%d]' % (D, D+15)
            if kind == 'A':
                a.e('v_mfma_f32_32x32x16_bf16 v[%d:%d], v[%d:%d], v[%d:%d], %s', D, D+15, AF[k]+4*t, AF[k]+4*t+3, XF[k], XF[k]+3, c)
            else:
                a.e('v_mfma_f32_32x32x16_bf16 v[%d:%d], v[%d:%d], v[%d:%d], %s', D, D+15, XF[k], XF[k]+3, AF[k]+4*t, AF[k]+4*t+3, c)
            if hooks and t in hooks:
                for h in (hooks[t] if isinstance(hooks[t], list) else [hooks[t]]):
                    r = h()
                    if r is not None: nreads = r
            n = 0
            for _ in range(per[t]):
                if idx < len(nreads):
                    L.read(*nreads[idx]); idx += 1; n += 1
            emit_bg(max(0, min(nbg, 5 - n)))
        assert idx == len(nreads), (idx, len(nreads), kind)
    def stampc(i):
        if cfg.DIAG:
            a.e('s_memrealtime s[%d:%d]', 64+2*i, 65+2*i)
            a.e('s_mov_b32 s%d, s63', 80+i)
            if i < 3:
                a.e('s_memtime s[%d:%d]', 88+2*i, 89+2*i)
                a.e('v_writelane_b32 v13, s99, %d', i); a.e('v_writelane_b32 v13, s98, %d', 4+i)
    def needflag(u):
        if u[0] == 'wq': return u[1] % 2 == 0 or (cfg.FIRST2 and u[1] == 1)
        if u[0] == 'wo': return u[3] == 0
        return True
    def flagunit(u):
        if u[0] == 'wq': return ('wq', u[1] + 1) if u[1] % 2 == 0 else u
        if u[0] == 'wo': return ('wo', u[1], u[2], 1)
        return u
    def unit(kind, wu, xu, xs0, first, nxt_unit, nxt_reads, extra0=None, nbg=0):
        nt_ = 6 if kind == 'A' else 5
        chk = nxt_unit is not None and needflag(nxt_unit)
        rd1 = reads(kind, xu, xs0+1, wu, 1, 1)
        if cfg.SMOOTH:
            sm = [3,2,2,2,2,2] if kind == 'A' else [3,2,2,2,2]
            hk0 = {}
            if extra0: hk0.update(extra0)
            step(kind, 0, rd1, sm, first=first, hooks=hk0, nbg=nbg)
            if chk: flag_prefetch()
            if nxt_unit and not chk:
                def h0():
                    signal_free(skip=True)
                    return nxt_reads()
                step(kind, 1, [], sm, hooks={0: h0}, nbg=nbg)
            elif nxt_unit:
                def h1(): flag_cmp(flagunit(nxt_unit)); signal_free()
                def h2(): flag_branch(); return nxt_reads()
                nr = len(nxt_reads())
                if kind == 'A': per1 = [0,0,4,3,3,3] if nr == 13 else [0,0,2,2,0,0]
                else: per1 = [0,0,4,4,3] if nr == 11 else [0,0,2,2,0]
                step(kind, 1, [], per1, hooks={1: h1, 2: h2}, nbg=nbg)
            else:
                def h0(): L.drain(); signal_free()
                step(kind, 1, [], [0]*nt_, hooks={1: h0}, nbg=nbg)
            return
        per0 = [4,3,3,3,0,0] if kind == 'A' else [4,4,3,0,0]
        hk0 = {(4 if kind == 'A' else 3): flag_prefetch} if chk else {}
        if extra0: hk0.update(extra0)
        step(kind, 0, rd1, per0, first=first, hooks=hk0, nbg=nbg)
        if nxt_unit:
            def h0():
                if chk: flag_cmp(flagunit(nxt_unit))
                else: L.need((rd1[-1][1], rd1[-1][2]))
                signal_free(skip=not chk)
            def h1():
                if chk: flag_branch()
                return nxt_reads()
            nr = len(nxt_reads())
            if kind == 'A': per1 = [0,4,3,3,3,0] if nr == 13 else [0,2,2,0,0,0]
            else: per1 = [0,4,4,3,0] if nr == 11 else [0,2,2,0,0]
            step(kind, 1, [], per1, hooks={0: h0, 1: h1}, nbg=nbg)
        else:
            def h0(): L.drain(); signal_free()
            step(kind, 1, [], [0]*nt_, hooks={1: h0}, nbg=nbg)

    KF = [AF[0]+4*i for i in range(6)] + [AF[1]+4*i for i in range(6)]
    flag_prefetch(); flag_check(('wq', 0) if cfg.FIRST2 else ('wq', 1))
    if cfg.DIAG:
        a.e('s_memrealtime s[76:77]'); a.e('s_memtime s[94:95]'); a.e('s_waitcnt lgkmcnt(0)')
    for r in reads('A', ('x', 0), 0, ('wq', 0), 0, 0): L.read(*r)
    for wi in range(20):
        i, hf = wi // 2, wi % 2
        ex0 = None
        if wi == 8:
            def nl():
                a.e('v_mov_b32 v%d, 0', t0)
                a.e('buffer_load_dword v%d, v%d, s[%d:%d], 0 offen sc1', t1, t0, SRD_DBG, SRD_DBG+3)
            ex0 = {0: nl}
        if wi < 19:
            nu = ('wq', wi+1)
            nr = (lambda i=i, hf=hf, nu=nu: reads('A', ('x', i+1 if hf else i), 0 if hf else 2, nu, 0, 0))
        else:
            nu = ('K', 0)
            nr = (lambda: [xread(KF[s_], ('K', 0), s_) for s_ in range(4)])
        unit('A', ('wq', wi), ('x', i), 2*hf, wi == 0, nu, nr, extra0=ex0)
    lab = a.newlabel('nonce')
    a.e('s_waitcnt vmcnt(0)')
    a.e('s_nop 0')
    a.e('v_readfirstlane_b32 s%d, v%d', S_NONCE, t1)
    a.e('s_nop 0')
    a.e('s_cmp_lg_u32 s%d, 0', S_NONCE)
    a.e('s_cbranch_scc0 %s', lab)
    a.label(lab + '_ok')
    slow_nonce = lab
    a.e('v_bfe_u32 v%d, v0, 2, 2', t0)
    a.e('v_lshrrev_b32 v%d, 5, v0', t1)
    a.e('v_lshl_add_u32 v%d, v%d, 3, v%d', t0, t1, t0)
    a.e('v_mul_u32_u24 v%d, 320, v%d', t0, t0)
    a.e('v_bfe_u32 v%d, v0, 4, 1', t1)
    a.e('v_lshl_add_u32 v%d, v%d, 5, v%d', t0, t1, t0)
    a.e('v_and_b32 v%d, 3, v0', t1)
    a.e('v_lshl_add_u32 v%d, v%d, 3, v%d', t0, t1, t0)
    a.e('v_add_u32 v%d, 0x%x, v%d', WBl, WB, t0)
    a.e('v_add_u32 v%d, %d, v%d', WBh, 4*WSZ, WBl)
    a.e('s_lshl_b32 s51, s%d, 4', S_BETA)
    a.e('s_lshl_b32 s47, s%d, 2', S_MB)
    a.e('s_add_u32 s51, s51, s47')
    a.e('s_add_u32 s51, s51, s%d', S_WAVE)
    a.e('s_lshl_b32 s51, s51, 5')
    a.e('s_lshl_b32 s52, s%d, 3', S_HG)
    a.e('s_lshl_b32 s47, s%d, 2', S_HH)
    a.e('s_add_u32 s52, s52, s47')
    a.e('s_add_u32 s52, s52, s51')
    a.e('s_lshl_b32 s52, s52, 11')
    a.e('s_add_u32 s52, s52, 0x%x', WS_P)
    stampc(0)
    def cvtq(sp):
        t, hf = sp // 2, sp % 2
        return ['v_cvt_pk_bf16_f32 v%d, v%d, v%d' % (QBm[sp]+j, ACC+16*t+8*hf+2*j, ACC+16*t+8*hf+2*j+1) for j in range(4)]
    for sp in range(4):
        for x in cvtq(sp): a.e(x)
    L.drain(); signal_free()
    flag_prefetch(); flag_check(('K', 1))
    for s_ in range(4): L.read(*xread(KF[4+s_], ('K', 1), s_))
    for sp in range(4, 8):
        for x in cvtq(sp): a.e(x)
    L.drain(); signal_free()
    flag_prefetch(); flag_check(('K', 2))
    for s_ in range(4): L.read(*xread(KF[8+s_], ('K', 2), s_))
    for sp in range(8, 12): bg.extend(cvtq(sp))
    emit_bg(16)
    for sp in range(12):
        L.need((KF[sp], 4))
        c = '0' if sp == 0 else 'v[%d:%d]' % (SACC, SACC+15)
        a.e('v_mfma_f32_32x32x16_bf16 v[%d:%d], v[%d:%d], v[%d:%d], %s', SACC, SACC+15, KF[sp], KF[sp]+3, QBm[sp], QBm[sp]+3, c)
        if sp == 7:
            L.drain(); signal_free(); flag_prefetch()
        if sp == 9: flag_cmp(('wo', 0, 0, 1))
        if sp == 10:
            flag_branch()
            for r in reads('B', ('V', 0, 0), 0, ('wo', 0, 0, 0), 0, 0): L.read(*r)
    cval = (192 ** -0.5) * math.log2(math.e)
    cb = struct.unpack('<I', struct.pack('<f', cval))[0]
    a.e('s_mov_b32 s50, 0x%x', cb)
    a.e('s_add_u32 s53, s51, s%d', S_H)
    a.e('s_lshl_b32 s53, s53, 11')
    a.e('s_add_u32 s53, s53, 0x%x', WS_P)
    q = []
    q.append('s_nop 7')
    q.append('v_max3_f32 v%d, v%d, v%d, v%d' % (t0, SACC, SACC+1, SACC+2))
    for r in range(3, 15, 2):
        q.append('v_max3_f32 v%d, v%d, v%d, v%d' % (t0, t0, SACC+r, SACC+r+1))
    q.append('v_max_f32 v%d, v%d, v%d' % (t0, t0, SACC+15))
    q.append('v_mov_b32 v%d, v%d' % (t1, t0))
    q.append('s_nop 1')
    q.append('v_permlane32_swap_b32 v%d, v%d' % (t0, t1))
    q.append('v_max_f32 v%d, v%d, v%d' % (t0, t0, t1))
    q.append('v_mul_f32 v%d, s50, v%d' % (t2, t0))
    for r in range(16): q.append('v_fma_f32 v%d, v%d, s50, -v%d' % (SACC+r, SACC+r, t2))
    for r in range(16): q.append('v_exp_f32 v%d, v%d' % (SACC+r, SACC+r))
    q.append('s_nop 0')
    q.append('v_add_f32 v%d, v%d, v%d' % (t0, SACC, SACC+1))
    q.append('v_add_f32 v%d, v%d, v%d' % (t1, SACC+2, SACC+3))
    for r in range(4, 16, 2):
        q.append('v_add_f32 v%d, v%d, v%d' % (t0, t0, SACC+r))
        q.append('v_add_f32 v%d, v%d, v%d' % (t1, t1, SACC+r+1))
    q.append('v_add_f32 v%d, v%d, v%d' % (t0, t0, t1))
    q.append('v_mov_b32 v%d, v%d' % (t1, t0))
    q.append('s_nop 1')
    q.append('v_permlane32_swap_b32 v%d, v%d' % (t0, t1))
    q.append('v_add_f32 v%d, v%d, v%d' % (t0, t0, t1))
    q.append('v_rcp_f32 v%d, v%d' % (t0, t0))
    q.append('s_nop 0')
    for r in range(16): q.append('v_mul_f32 v%d, v%d, v%d' % (SACC+r, SACC+r, t0))
    for j in range(8): q.append('v_cvt_pk_bf16_f32 v%d, v%d, v%d' % (PK+j, SACC+2*j, SACC+2*j+1))
    q.append('buffer_store_dwordx4 v[%d:%d], v%d, s[%d:%d], s53 offen sc1' % (PK, PK+3, PV, SRD_WS, SRD_WS+3))
    q.append('buffer_store_dwordx4 v[%d:%d], v%d, s[%d:%d], s53 offen offset:1024 sc1' % (PK+4, PK+7, PV, SRD_WS, SRD_WS+3))
    bg.extend(q)

    def g2cvt(dst_first, p, first=False, src=None):
        pass
    def cvt_tile(nt, dst):
        d = VW + 16*nt
        o = d if dst is None else dst[nt]
        return ['v_cvt_pk_bf16_f32 v%d, v%d, v%d' % (o+j, d+2*j, d+2*j+1) for j in range(8)]
    def g2(src, p, first=False, fill=None):
        j = 0
        for nt in range(5):
            s_ = VW+16*nt if src is None else src[nt]
            D = OA + 16*nt
            for z in range(2):
                c = '0' if (first and z == 0) else 'v[%d:%d]' % (D, D+15)
                a.e('v_mfma_f32_32x32x16_bf16 v[%d:%d], v[%d:%d], v[%d:%d], %s', D, D+15, s_+4*z, s_+4*z+3, p[z], p[z]+3, c)
                if fill and j < len(fill):
                    for x in fill[j]: a.e(x)
                j += 1
    def g2_inplace(p):
        for x in cvt_tile(0, None): a.e(x)
        a.e('s_nop 1')
        fill = []
        for nt in range(1, 5):
            c = cvt_tile(nt, None)
            fill += [c[:4], c[4:] + ['s_nop 1']]
        g2(None, p, fill=fill)
    def p_load(hq, p):
        if cfg.ROTB:
            a.e('s_add_u32 s47, s%d, s%d', S_MB, S_NS)
            a.e('s_add_u32 s47, s47, %d', hq)
            a.e('s_and_b32 s47, s47, 3')
            a.e('s_lshl_b32 s47, s47, 11')
            a.e('s_add_u32 s47, s47, s52')
        else:
            a.e('s_add_u32 s47, s52, %d', hq*2048)
        for z in range(2):
            a.e('buffer_load_dwordx4 v[%d:%d], v%d, s[%d:%d], s47 offen offset:%d sc1', p[z], p[z]+3, PV, SRD_WS, SRD_WS+3, z*1024)
    def publish_p():
        assert not bg
        a.e('s_waitcnt vmcnt(0)')
        a.e('s_lshl_b32 s47, s2, 2')
        a.e('s_add_u32 s47, s47, s%d', S_WAVE)
        a.e('s_lshl_b32 s47, s47, 6')
        a.e('s_add_u32 s47, s47, 0x%x', WS_PFLAG)
        a.e('v_mov_b32 v%d, 0', t0)
        a.e('v_mov_b32 v%d, s%d', t1, S_NONCE)
        a.e('s_mov_b64 exec, 1')
        a.e('buffer_store_dword v%d, v%d, s[%d:%d], s47 offen sc1', t1, t0, SRD_WS, SRD_WS+3)
        a.e('s_mov_b64 exec, -1')
    def poll_p():
        lab = a.newlabel('pollp')
        a.e('v_and_b32 v%d, 3, v0', t0)
        a.e('v_lshlrev_b32 v%d, 5, v%d', t0, t0)
        a.e('s_lshl_b32 s47, s%d, 7', S_HH)
        a.e('s_lshl_b32 s48, s%d, 3', S_MB)
        a.e('s_add_u32 s47, s47, s48')
        a.e('s_add_u32 s47, s47, s%d', S_XCD)
        a.e('v_add_u32 v%d, s47, v%d', t0, t0)
        a.e('v_lshlrev_b32 v%d, 8, v%d', t0, t0)
        a.e('s_lshl_b32 s47, s%d, 6', S_WAVE)
        a.e('s_add_u32 s47, s47, 0x%x', WS_PFLAG)
        a.label(lab)
        a.e('buffer_load_dword v%d, v%d, s[%d:%d], s47 offen sc1', t2, t0, SRD_WS, SRD_WS+3)
        a.e('s_waitcnt vmcnt(0)')
        a.e('v_cmp_ne_u32 vcc, s%d, v%d', S_NONCE, t2)
        a.e('s_add_u32 s63, s63, 64')
        a.e('s_cmp_gt_u32 s63, 300000')
        a.e('s_cbranch_scc1 %s_done', lab)
        a.e('s_nop 2')
        a.e('s_cbranch_vccnz %s', lab)
        a.label(lab + '_done')
    def head(hq):
        for th in range(3):
            for hf in range(2):
                wu = ('wo', hq, th, hf)
                last = (th == 2 and hf == 1)
                if not last:
                    nu = ('wo', hq, th + hf, 1 - hf)
                    nr = (lambda nu=nu, hf=hf: reads('B', ('V', hq, nu[2]), 0 if hf else 2, nu, 0, 0))
                elif hq < 3:
                    nu = ('wo', hq+1, 0, 0)
                    nr = (lambda nu=nu: reads('B', ('V', hq+1, 0), 0, nu, 0, 0))
                else:
                    nu = None; nr = None
                ex0 = None
                if hq == 0 and (th, hf) == cfg.PUB_AT: ex0 = {0: publish_p}
                if hq == 1 and (th, hf) == cfg.POLL_AT: ex0 = {0: (lambda: (poll_p(), p_load(0, PA), p_load(1, PBq), None)[-1])}
                if hq == 2 and th == 1 and hf == 0: ex0 = {0: (lambda: p_load(2, PA))}
                if hq == 3 and th == 1 and hf == 0: ex0 = {0: (lambda: p_load(3, PBq))}
                unit('B', wu, ('V', hq, th), 2*hf, th == 0 and hf == 0, nu, nr, extra0=ex0, nbg=(5 if bg else 0))
    head(0)
    stampc(1)
    a.e('s_nop 7'); a.e('s_nop 3')
    for nt in range(5):
        for x in cvt_tile(nt, VWB0): a.e(x)
    head(1)
    a.e('s_nop 7'); a.e('s_nop 3')
    a.e('s_waitcnt vmcnt(0)')
    fill = []
    for nt in range(5):
        c = cvt_tile(nt, None)
        fill += [c[:4], c[4:]]
    g2(VWB0, PA, first=True, fill=fill)
    a.e('s_nop 1')
    g2(None, PBq)
    head(2)
    a.e('s_nop 7'); a.e('s_nop 3')
    a.e('s_waitcnt vmcnt(0)')
    g2_inplace(PA)
    head(3)
    a.e('s_nop 7'); a.e('s_nop 3')
    a.e('s_waitcnt vmcnt(0)')
    g2_inplace(PBq)
    stampc(2)
    a.e('s_lshl_b32 s53, s%d, 2', S_BETA)
    a.e('s_add_u32 s53, s53, s%d', S_MB)
    a.e('s_lshl_b32 s53, s53, 2')
    a.e('s_add_u32 s53, s53, s%d', S_NS)
    a.e('s_lshl_b32 s53, s53, 3')
    a.e('s_lshl_b32 s54, s%d, 1', S_HG)
    a.e('s_add_u32 s54, s54, s%d', S_HH)
    a.e('s_nop 7'); a.e('s_nop 3')
    Tq = 16
    for ih in range(2):
        for nt in range(5):
            for j in range(4):
                a.e('v_cvt_pk_bf16_f32 v%d, v%d, v%d', Tq+20*ih+4*nt+j, OA+16*nt+8*ih+2*j, OA+16*nt+8*ih+2*j+1)
    for ih in range(2):
        a.e('s_lshl_b32 s47, s%d, 1', S_WAVE)
        a.e('s_add_u32 s47, s47, %d', ih)
        a.e('s_add_u32 s47, s47, s53')
        a.e('s_lshl_b32 s47, s47, 3')
        a.e('s_add_u32 s47, s47, s54')
        a.e('s_mul_i32 s47, s47, 5120')
        a.e('s_add_u32 s47, s47, 0x%x', WS_PART)
        for nt in range(5):
            if nt == 4: a.e('s_add_u32 s47, s47, 4096')
            a.e('buffer_store_dwordx4 v[%d:%d], v%d, s[%d:%d], s47 offen offset:%d sc1', Tq+20*ih+4*nt, Tq+20*ih+4*nt+3, PV, SRD_WS, SRD_WS+3, 1024*(nt % 4))
    a.e('s_waitcnt vmcnt(0)')
    stampc(3)
    a.e('s_lshl_b32 s47, s2, 2')
    a.e('s_add_u32 s47, s47, s%d', S_WAVE)
    a.e('s_lshl_b32 s47, s47, 6')
    a.e('s_add_u32 s47, s47, 0x%x', WS_RFLAG)
    a.e('v_mov_b32 v%d, 0', t0)
    a.e('v_mov_b32 v%d, s%d', t1, S_NONCE)
    a.e('s_mov_b64 exec, 1')
    a.e('buffer_store_dword v%d, v%d, s[%d:%d], s47 offen sc1', t1, t0, SRD_WS, SRD_WS+3)
    a.e('s_mov_b64 exec, -1')
    a.e('v_bfe_u32 v%d, v0, 1, 2', t0)
    a.e('v_and_b32 v%d, 1, v0', t1)
    a.e('v_lshl_add_u32 v%d, v%d, 7, v%d', t0, t1, t0)
    a.e('s_lshl_b32 s47, s%d, 2', S_BETA)
    a.e('s_lshl_b32 s48, s%d, 3', S_MB)
    a.e('s_add_u32 s47, s47, s48')
    a.e('s_lshl_b32 s48, s%d, 5', S_NS)
    a.e('s_add_u32 s47, s47, s48')
    a.e('v_add_u32 v%d, s47, v%d', t0, t0)
    a.e('v_lshlrev_b32 v%d, 8, v%d', t0, t0)
    a.e('s_lshr_b32 s48, s54, 1')
    a.e('s_lshl_b32 s48, s48, 6')
    a.e('s_add_u32 s47, s48, 0x%x', WS_RFLAG)
    lab = a.newlabel('pollr')
    a.label(lab)
    a.e('buffer_load_dword v%d, v%d, s[%d:%d], s47 offen sc1', t2, t0, SRD_WS, SRD_WS+3)
    a.e('s_waitcnt vmcnt(0)')
    a.e('v_cmp_ne_u32 vcc, s%d, v%d', S_NONCE, t2)
    a.e('s_add_u32 s63, s63, 64')
    a.e('s_cmp_gt_u32 s63, 600000')
    a.e('s_cbranch_scc1 %s_done', lab)
    a.e('s_nop 2')
    a.e('s_cbranch_vccnz %s', lab)
    a.label(lab + '_done')
    stampc(4)
    a.e('s_add_u32 s47, s53, s54')
    a.e('s_mul_i32 s47, s47, 40960')
    a.e('s_add_u32 s47, s47, 0x%x', WS_PART)
    a.e('s_lshl_b32 s48, s%d, 10', S_WAVE)
    a.e('s_add_u32 s48, s48, s47')
    a.e('s_add_u32 s49, s47, 4096')
    Rq = 16; Rq2 = 48
    for src in range(8):
        a.e('buffer_load_dwordx4 v[%d:%d], v%d, s[%d:%d], s48 offen sc1', Rq+4*src, Rq+4*src+3, PV, SRD_WS, SRD_WS+3)
        a.e('s_add_u32 s48, s48, 5120')
    if cfg.OUT16:
        a.e('s_lshl_b32 s55, s%d, 3', S_WAVE)
        a.e('s_lshl_b32 s56, 0xff, s55')
        a.e('s_mov_b32 s57, s56')
    else:
        a.e('s_lshl_b32 s55, s%d, 4', S_WAVE)
        a.e('s_mov_b64 s[56:57], 0xffff')
        a.e('s_lshl_b64 s[56:57], s[56:57], s55')
    a.e('s_mov_b64 exec, s[56:57]')
    for src in range(8):
        a.e('buffer_load_dwordx4 v[%d:%d], v%d, s[%d:%d], s49 offen sc1', Rq2+4*src, Rq2+4*src+3, PV, SRD_WS, SRD_WS+3)
        a.e('s_add_u32 s49, s49, 5120')
    a.e('s_mov_b64 exec, -1')
    a.e('s_lshl_b32 s47, s%d, 2', S_MB)
    a.e('s_lshr_b32 s48, s54, 1')
    a.e('s_add_u32 s47, s47, s48')
    a.e('s_mul_i32 s47, s47, %d', 32*2560)
    a.e('s_mul_i32 s48, s%d, 1280', S_BETA)
    a.e('s_add_u32 s47, s47, s48')
    a.e('s_mul_i32 s48, s%d, 320', S_NS)
    a.e('s_add_u32 s47, s47, s48')
    a.e('s_and_b32 s48, s54, 1')
    a.e('s_lshl_b32 s48, s48, 5')
    a.e('s_add_u32 s47, s47, s48')
    a.e('v_and_b32 v%d, 31, v0', t0)
    a.e('v_mul_u32_u24 v%d, 2560, v%d', t0, t0)
    a.e('v_lshrrev_b32 v%d, 5, v0', t1)
    a.e('v_lshl_add_u32 v%d, v%d, %d, v%d', t0, t1, 4 if cfg.OUT16 else 3, t0)
    def reduce_store(R, A8, soff, mask=None):
        for src in range(8):
            a.e('s_waitcnt vmcnt(%d)', remaining[0]); remaining[0] -= 1
            for j in range(4):
                s = R+4*src+j
                if src == 0:
                    a.e('v_lshlrev_b32 v%d, 16, v%d', A8+2*j, s)
                    a.e('v_and_b32 v%d, 0xffff0000, v%d', A8+2*j+1, s)
                else:
                    a.e('v_lshlrev_b32 v%d, 16, v%d', t2, s)
                    a.e('v_and_b32 v%d, 0xffff0000, v%d', t3, s)
                    a.e('v_add_f32 v%d, v%d, v%d', A8+2*j, A8+2*j, t2)
                    a.e('v_add_f32 v%d, v%d, v%d', A8+2*j+1, A8+2*j+1, t3)
        for j in range(4):
            a.e('v_cvt_pk_bf16_f32 v%d, v%d, v%d', A8+j, A8+2*j, A8+2*j+1)
        pol = {0: '', 1: ' sc1', 2: ' nt', 3: ' sc0 sc1'}[cfg.OUTPOL]
        if cfg.OUT16:
            a.e('s_mov_b64 exec, -1')
            a.e('s_nop 1')
            a.e('v_permlane32_swap_b32 v%d, v%d', A8, A8+2)
            a.e('v_permlane32_swap_b32 v%d, v%d', A8+1, A8+3)
            if mask: a.e('s_mov_b64 exec, s[%d:%d]', mask, mask+1)
            a.e('buffer_store_dwordx4 v[%d:%d], v%d, s[%d:%d], s%d offen%s', A8, A8+3, t0, SRD_OUT, SRD_OUT+3, soff, pol)
        else:
            a.e('buffer_store_dwordx2 v[%d:%d], v%d, s[%d:%d], s%d offen%s', A8, A8+1, t0, SRD_OUT, SRD_OUT+3, soff, pol)
            a.e('buffer_store_dwordx2 v[%d:%d], v%d, s[%d:%d], s%d offen offset:16%s', A8+2, A8+3, t0, SRD_OUT, SRD_OUT+3, soff, pol)
    remaining = [15]
    a.e('s_lshl_b32 s48, s%d, 6', S_WAVE)
    a.e('s_add_u32 s48, s48, s47')
    a.e('s_add_u32 s49, s47, 256')
    reduce_store(Rq, 80, 48)
    remaining[0] = 7 + (1 if cfg.OUT16 else 2)
    a.e('s_mov_b64 exec, s[56:57]')
    reduce_store(Rq2, 88, 49, mask=56)
    a.e('s_mov_b64 exec, -1')
    if cfg.DIAG:
        a.e('s_waitcnt vmcnt(0)')
        stampc(5)
        a.e('s_waitcnt lgkmcnt(0)')
        a.e('v_mov_b32 v9, 0')
        for i in range(6):
            a.e('v_writelane_b32 v9, s%d, %d', 64+2*i, i)
            a.e('v_writelane_b32 v9, s%d, %d', 80+i, 10+i)
            if i < 3: a.e('v_writelane_b32 v9, s%d, %d', 88+2*i, 20+i)
        a.e('v_writelane_b32 v9, s76, 30'); a.e('v_writelane_b32 v9, s94, 31')
        for k in range(7):
            a.e('v_readlane_b32 s100, v13, %d', k); a.e('s_nop 3'); a.e('v_writelane_b32 v9, s100, %d', 52+k)
        lab = a.newlabel('nost')
        a.e('s_cmp_lg_u32 s%d, 0', S_WAVE)
        a.e('s_cbranch_scc1 %s', lab)
        stamp_store(a, 9, 10, region=1)
        a.label(lab)
    a.e('s_endpgm')
    for (lab, need) in slow:
        a.label(lab + '_slow')
        spin_flags(a, 0, need, VZ, VFL, 59)
        a.e('s_branch %s', lab)
    if cfg.SLOWCALL:
        a.label('common_slow')
        if cfg.DIAG:
            a.e('s_memrealtime s[100:101]'); a.e('s_waitcnt lgkmcnt(0)'); a.e('s_sub_u32 s99, s99, s100'); a.e('s_add_u32 s98, s98, 1')
        a.label('common_slow2')
        a.e('ds_read_b32 v%d, v%d', VF1, VFA)
        a.e('s_waitcnt lgkmcnt(0)')
        a.e('v_cmp_gt_u32 vcc, s61, v%d', VF1)
        a.e('s_add_u32 s63, s63, 1')
        a.e('s_cmp_gt_u32 s63, 300000')
        a.e('s_cbranch_scc1 common_ret')
        a.e('s_nop 1')
        a.e('s_cbranch_vccnz common_slow2')
        a.label('common_ret')
        if cfg.DIAG:
            a.e('s_memrealtime s[100:101]'); a.e('s_waitcnt lgkmcnt(0)'); a.e('s_add_u32 s99, s99, s100')
        a.e('s_add_u32 s56, s56, 4')
        a.e('s_addc_u32 s57, s57, 0')
        a.e('s_setpc_b64 s[56:57]')
    lab = slow_nonce
    a.label(lab)
    a.e('buffer_load_dword v%d, v%d, s[%d:%d], 0 offen sc1', t1, t0, SRD_DBG, SRD_DBG+3)
    a.e('s_waitcnt vmcnt(0)')
    a.e('v_readfirstlane_b32 s%d, v%d', S_NONCE, t1)
    a.e('s_add_u32 s63, s63, 64')
    a.e('s_cmp_gt_u32 s63, 300000')
    a.e('s_cbranch_scc1 %s_ok', lab)
    a.e('s_cmp_lg_u32 s%d, 0', S_NONCE)
    a.e('s_cbranch_scc0 %s', lab)
    a.e('s_branch %s_ok', lab)

def gen_loaders(a, T):
    XE_, XO, W0, VE, VO, WO0 = 2, 3, 4, 8, 9, 10
    LN = 14
    VZ = 22
    VQ, VT = 36, 44
    DUM = 48
    t0, t1, t2, t3 = 32, 33, 34, 35
    S_TMP, S_FULLA, S_LI, S_G = 56, 57, 58, 62
    S_GX, S_GW, S_GV, S_GO, S_GK = 52, 53, 54, 55, 64
    S_PW, S_PK, S_PH, S_PHS, S_PX = 68, 69, 70, 71, 76
    SRD_PH, SRD_T = 72, 84
    S_XI, S_WI, S_XS, S_WS, S_CNT, S_NEED = 77, 78, 79, 80, 81, 82
    S_WSA = 83; S_XSA = 94
    S_LXO, S_LWA, S_LWB = 65, 66, 67
    nt_pf = ' nt' if cfg.NT_PF else ''
    nt_r = ' nt' if cfg.NT else ''
    a.e('s_mov_b32 s63, 0')
    if cfg.LPRIO: a.e('s_setprio %d', cfg.LPRIO)
    a.e('s_sub_u32 s%d, s%d, 4', S_LI, S_WAVE)
    if cfg.DIAG: a.e('v_mov_b32 v30, 0')
    a.e('v_lshlrev_b32 v%d, 4, v0', LN)
    a.e('v_mov_b32 v%d, 0x%x', VZ, FLAG_BASE)
    lab = a.newlabel('init')
    a.e('s_cmp_lg_u32 s%d, 3', S_LI)
    a.e('s_cbranch_scc1 %s', lab)
    a.e('v_lshlrev_b32 v%d, 2, v0', t0)
    a.e('v_and_b32 v%d, 63, v%d', t0, t0)
    a.e('v_add_u32 v%d, v%d, v%d', t0, t0, VZ)
    a.e('v_mov_b32 v%d, 0', t1)
    a.e('ds_write_b32 v%d, v%d', t0, t1)
    a.label(lab)
    XPA = 15
    a.e('v_lshrrev_b32 v%d, 5, v0', t0)
    a.e('v_mul_u32_u24 v%d, 1280, v%d', t0, t0)
    a.e('v_and_b32 v%d, 31, v0', t1)
    a.e('v_lshl_add_u32 v%d, v%d, 4, v%d', XPA, t1, t0)
    a.e('v_lshrrev_b32 v%d, 3, v0', t0)
    a.e('v_and_b32 v%d, 7, v0', t1)
    a.e('v_lshrrev_b32 v%d, 4, v0', t2)
    a.e('v_xor_b32 v%d, v%d, v%d', t1, t1, t2)
    a.e('v_mul_u32_u24 v%d, 1280, v%d', t3, t0)
    a.e('v_lshl_add_u32 v%d, v%d, 4, v%d', XE_, t1, t3)
    a.e('v_xor_b32 v%d, 64, v%d', XO, XE_)
    a.e('v_mul_u32_u24 v%d, 384, v%d', t3, t0)
    a.e('v_lshl_add_u32 v%d, v%d, 4, v%d', VE, t1, t3)
    a.e('v_xor_b32 v%d, 64, v%d', VO, VE)
    for b in range(3):
        a.e('v_add_u32 v%d, %d, v0', t0, 64*b)
        div_const(a, t1, t0, 24, 191)
        a.e('v_mul_u32_u24 v%d, 24, v%d', t2, t1)
        a.e('v_sub_u32 v%d, v%d, v%d', t2, t0, t2)
        a.e('v_bfe_u32 v%d, v%d, 1, 1', t3, t1)
        a.e('v_lshlrev_b32 v%d, 2, v%d', t3, t3)
        a.e('v_xor_b32 v%d, v%d, v%d', t3, t3, t2)
        a.e('v_lshlrev_b32 v%d, 4, v%d', t3, t3)
        a.e('v_mul_u32_u24 v%d, 0x3000, v%d', W0+b, t1)
        a.e('v_add_u32 v%d, v%d, v%d', W0+b, W0+b, t3)
    a.e('s_lshl_b32 s%d, s%d, 7', S_GX, S_MB)
    a.e('s_lshl_b32 s%d, s%d, 5', S_TMP, S_LI)
    a.e('s_add_u32 s%d, s%d, s%d', S_GX, S_GX, S_TMP)
    a.e('s_mul_i32 s%d, s%d, 1280', S_GX, S_GX)
    a.e('s_mul_i32 s%d, s%d, 384', S_GW, S_H)
    a.e('s_mul_i32 s%d, s%d, %d', S_TMP, S_LI, 8*12288)
    a.e('s_add_u32 s%d, s%d, s%d', S_GW, S_GW, S_TMP)
    S_RC, S_RH = 96, 97
    if cfg.ROTA:
        a.e('s_mul_i32 s%d, s%d, 5', S_RC, S_MB)
        a.e('s_add_u32 s%d, s%d, 1', S_RC, S_RC)
        a.e('s_lshr_b32 s%d, s%d, 1', S_RC, S_RC)
        a.e('s_add_u32 s%d, s%d, s%d', S_RC, S_RC, S_HL)
        a.e('s_sub_u32 s%d, s%d, 10', S_TMP, S_RC)
        a.e('s_cmp_ge_u32 s%d, 10', S_RC)
        a.e('s_cselect_b32 s%d, s%d, s%d', S_RC, S_TMP, S_RC)
        a.e('s_lshl_b32 s%d, s%d, 7', S_TMP, S_RC)
        a.e('s_add_u32 s%d, s%d, s%d', S_GX, S_GX, S_TMP)
        a.e('s_mul_i32 s%d, s%d, 786432', S_TMP, S_RC)
        a.e('s_add_u32 s%d, s%d, s%d', S_GW, S_GW, S_TMP)
    a.e('s_lshl_b32 s%d, s%d, 12', S_LXO, S_LI)
    a.e('s_add_u32 s%d, s%d, %d', S_LXO, S_LXO, XB)
    a.e('s_mul_i32 s%d, s%d, 3072', S_LWA, S_LI)
    a.e('s_add_u32 s%d, s%d, %d', S_LWA, S_LWA, WB)
    a.e('s_mul_i32 s%d, s%d, 2560', S_LWB, S_LI)
    a.e('s_add_u32 s%d, s%d, %d', S_LWB, S_LWB, WB)
    a.e('s_lshl_b32 s%d, s%d, 2', S_TMP, S_LI)
    a.e('s_add_u32 s%d, s%d, 0x%x', S_FULLA, S_TMP, F_FULL)
    a.e('v_mov_b32 v%d, 0', VT+1)
    a.e('s_getpc_b64 s[%d:%d]', SRD_T, SRD_T+1)
    a.label('pc_here')
    a.e('s_add_u32 s%d, s%d, seqtab-pc_here', SRD_T, SRD_T)
    a.e('s_addc_u32 s%d, s%d, 0', SRD_T+1, SRD_T+1)
    a.e('s_mov_b32 s%d, 512', SRD_T+2)
    a.e('s_mov_b32 s%d, 0x20000', SRD_T+3)
    for r in (S_G, S_XI, S_WI, S_WSA, S_XSA): a.e('s_mov_b32 s%d, 0', r)
    a.e('s_lshl_b32 s%d, s%d, 7', S_PX, S_MB)
    a.e('s_lshl_b32 s%d, s%d, 4', S_TMP, S_HL)
    a.e('s_add_u32 s%d, s%d, s%d', S_PX, S_PX, S_TMP)
    a.e('s_mul_i32 s%d, s%d, 1280', S_PX, S_PX)
    a.e('s_mul_i32 s%d, s%d, 5120', S_TMP, S_LI)
    a.e('s_add_u32 s%d, s%d, s%d', S_PX, S_PX, S_TMP)
    a.e('s_lshl_b32 s%d, s%d, 1', S_PW, S_J)
    a.e('s_lshr_b32 s%d, s%d, 1', S_TMP, S_LI)
    a.e('s_lshl_b32 s%d, s%d, 6', S_TMP, S_TMP)
    a.e('s_add_u32 s%d, s%d, s%d', S_PW, S_PW, S_TMP)
    a.e('s_and_b32 s%d, s%d, 1', S_TMP, S_LI)
    a.e('s_add_u32 s%d, s%d, s%d', S_PW, S_PW, S_TMP)
    a.e('s_add_u32 s%d, s%d, 128', S_PW, S_PW)
    a.e('s_mul_i32 s%d, s%d, 12288', S_PW, S_PW)
    a.e('s_mul_i32 s%d, s%d, 3072', S_TMP, S_HG)
    a.e('s_add_u32 s%d, s%d, s%d', S_PW, S_PW, S_TMP)
    S_FREEC = 88
    a.e('s_mov_b32 s%d, 0', S_FREEC)
    a.e('s_waitcnt lgkmcnt(0)')
    a.e('s_barrier')
    def pf(srd, soff, n, off0=0):
        for i in range(n):
            if cfg.NOLOAD or not cfg.PF_ON: continue
            a.e('buffer_load_dwordx4 v[%d:%d], v%d, s[%d:%d], s%d offen offset:%d%s', DUM, DUM+3, LN, srd, srd+3, soff, off0 + 1024*i, nt_pf)
    def late_setup():
        lab = a.newlabel('nn')
        a.e('s_cmp_lg_u32 s%d, 3', S_LI)
        a.e('s_cbranch_scc1 %s', lab)
        a.e('s_cmp_lg_u32 s2, 0')
        a.e('s_cbranch_scc1 %s', lab)
        a.e('s_memrealtime s[60:61]')
        a.e('s_waitcnt lgkmcnt(0)')
        a.e('s_or_b32 s60, s60, 1')
        a.e('v_mov_b32 v%d, s60', t1)
        a.e('v_mov_b32 v%d, 0', t0)
        a.e('s_mov_b64 exec, 1')
        a.e('buffer_store_dword v%d, v%d, s[%d:%d], 0 offen sc1', t1, t0, SRD_DBG, SRD_DBG+3)
        a.e('s_mov_b64 exec, -1')
        a.label(lab)
        for b in range(3):
            a.e('v_add_u32 v%d, %d, v0', t0, 64*b)
            div_const(a, t1, t0, 20, 191)
            a.e('v_mul_u32_u24 v%d, 20, v%d', t2, t1)
            a.e('v_sub_u32 v%d, v%d, v%d', t2, t0, t2)
            a.e('v_mul_u32_u24 v%d, 1280, v%d', t3, t1)
            a.e('v_lshl_add_u32 v%d, v%d, 4, v%d', WO0+b, t2, t3)
        a.e('s_lshl_b32 s%d, s%d, 2', S_GK, S_MB)
        a.e('s_add_u32 s%d, s%d, s%d', S_GK, S_GK, S_LI)
        a.e('s_lshl_b32 s%d, s%d, 5', S_GK, S_GK)
        a.e('s_lshl_b32 s%d, s%d, 3', S_TMP, S_HG)
        a.e('s_add_u32 s%d, s%d, s%d', S_GV, S_GK, S_TMP)
        a.e('s_lshl_b32 s%d, s%d, 2', S_TMP, S_HH)
        a.e('s_add_u32 s%d, s%d, s%d', S_GV, S_GV, S_TMP)
        a.e('s_mul_i32 s%d, s%d, 12288', S_GV, S_GV)
        a.e('s_add_u32 s%d, s%d, s%d', S_GK, S_GK, S_H)
        a.e('s_mul_i32 s%d, s%d, 12288', S_GK, S_GK)
        a.e('s_mov_b32 s%d, s%d', S_PK, S_GK)
        a.e('s_lshl_b32 s%d, s%d, 3', S_GO, S_HG)
        a.e('s_lshl_b32 s%d, s%d, 2', S_TMP, S_HH)
        a.e('s_add_u32 s%d, s%d, s%d', S_GO, S_GO, S_TMP)
        a.e('s_mul_i32 s%d, s%d, 192', S_GO, S_GO)
        a.e('s_lshl_b32 s%d, s%d, 3', S_TMP, S_LI)
        a.e('s_add_u32 s%d, s%d, s%d', S_GO, S_GO, S_TMP)
        a.e('s_mul_i32 s%d, s%d, 1280', S_GO, S_GO)
        a.e('s_mul_i32 s%d, s%d, 320', S_TMP, S_NS)
        a.e('s_add_u32 s%d, s%d, s%d', S_GO, S_GO, S_TMP)
        if cfg.ROTB:
            a.e('s_add_u32 s%d, s%d, s%d', S_RH, S_MB, S_NS)
            a.e('s_and_b32 s%d, s%d, 3', S_RH, S_RH)
            a.e('s_mul_i32 s%d, s%d, 12288', S_TMP, S_RH)
            a.e('s_add_u32 s%d, s%d, s%d', S_GV, S_GV, S_TMP)
            a.e('s_mul_i32 s%d, s%d, %d', S_TMP, S_RH, 192*1280)
            a.e('s_add_u32 s%d, s%d, s%d', S_GO, S_GO, S_TMP)
        labv = a.newlabel('phv'); labe = a.newlabel('phe')
        a.e('s_cmp_ge_u32 s%d, 2', S_LI)
        a.e('s_cbranch_scc0 %s', labv)
        for i in range(4): a.e('s_mov_b32 s%d, s%d', SRD_PH+i, SRD_WO+i)
        a.e('s_mul_i32 s%d, s%d, %d', S_PH, S_HG, 8*245760)
        a.e('s_mul_i32 s%d, s%d, 7680', S_TMP, S_J)
        a.e('s_add_u32 s%d, s%d, s%d', S_PH, S_PH, S_TMP)
        a.e('s_sub_u32 s%d, s%d, 2', S_TMP, S_LI)
        a.e('s_mul_i32 s%d, s%d, 3584', S_TMP, S_TMP)
        a.e('s_add_u32 s%d, s%d, s%d', S_PH, S_PH, S_TMP)
        a.e('s_mov_b32 s%d, 245760', S_PHS)
        a.e('s_branch %s', labe)
        a.label(labv)
        for i in range(4): a.e('s_mov_b32 s%d, s%d', SRD_PH+i, SRD_V+i)
        a.e('s_lshl_b32 s%d, s%d, 2', S_PH, S_MB)
        a.e('s_lshr_b32 s%d, s%d, 1', S_TMP, S_HL)
        a.e('s_add_u32 s%d, s%d, s%d', S_PH, S_PH, S_TMP)
        a.e('s_lshl_b32 s%d, s%d, 5', S_PH, S_PH)
        a.e('s_lshl_b32 s%d, s%d, 3', S_TMP, S_HG)
        a.e('s_add_u32 s%d, s%d, s%d', S_PH, S_PH, S_TMP)
        a.e('s_mul_i32 s%d, s%d, 12288', S_PH, S_PH)
        a.e('s_and_b32 s%d, s%d, 1', S_TMP, S_HL)
        a.e('s_mul_i32 s%d, s%d, %d', S_TMP, S_TMP, 16*384)
        a.e('s_add_u32 s%d, s%d, s%d', S_PH, S_PH, S_TMP)
        a.e('s_lshl_b32 s%d, s%d, 11', S_TMP, S_LI)
        a.e('s_add_u32 s%d, s%d, s%d', S_PH, S_PH, S_TMP)
        a.e('s_mov_b32 s%d, 12288', S_PHS)
        a.label(labe)
    def pfh(hq):
        a.e('s_mul_i32 s%d, s%d, %d', S_TMP, S_PHS, hq)
        a.e('s_add_u32 s%d, s%d, s%d', S_TMP, S_TMP, S_PH)
        pf(SRD_PH, S_TMP, 4)
        a.e('s_lshl_b32 s%d, s%d, 2', S_NEED, S_PHS)
        a.e('s_add_u32 s%d, s%d, s%d', S_TMP, S_TMP, S_NEED)
        pf(SRD_PH, S_TMP, 4)
    def need_calc(ring):
        NX, NW = cfg.NX, cfg.NW
        if ring == 'W':
            a.e('s_sub_i32 s%d, s%d, %d', S_NEED, S_WI, NW-1)
            a.e('s_add_i32 s%d, s%d, 3', S_TMP, S_NEED)
            a.e('s_cmp_ge_i32 s%d, %d', S_WI, 20+NW)
            a.e('s_cselect_b32 s%d, s%d, s%d', S_NEED, S_TMP, S_NEED)
        else:
            a.e('s_sub_i32 s%d, s%d, %d', S_TMP, S_XI, NX)
            a.e('s_lshl_b32 s%d, s%d, 1', S_NEED, S_TMP)
            a.e('s_add_i32 s%d, s%d, 2', S_NEED, S_NEED)
            a.e('s_add_i32 s89, s%d, 11', S_TMP)
            a.e('s_cmp_ge_i32 s%d, 10', S_TMP)
            a.e('s_cselect_b32 s%d, s89, s%d', S_NEED, S_NEED)
            a.e('s_lshl_b32 s89, s%d, 1', S_TMP)
            a.e('s_sub_i32 s89, s89, 1')
            a.e('s_cmp_ge_i32 s%d, 13', S_TMP)
            a.e('s_cselect_b32 s%d, s89, s%d', S_NEED, S_NEED)
    gstate = {'X': 0, 'W': 0, 'done': 0}
    def gate(ring):
        if cfg.BARFREE:
            idx = gstate[ring]; gstate[ring] += 1
            need = (T['xneed'] if ring == 'X' else T['wneed'])[idx]
            if need > 0:
                k = next(i for i, t in enumerate(EVENTS) if t >= need) + 1
                while gstate['done'] < k:
                    a.e('s_barrier'); gstate['done'] += 1
            return
        if cfg.NOGATE: return
        lab = a.newlabel('gate')
        need_calc(ring)
        a.e('s_cmp_ge_i32 s%d, s%d', S_FREEC, S_NEED)
        a.e('s_cbranch_scc1 %s_ok', lab)
        a.label(lab)
        a.e('ds_read_b128 v[%d:%d], v%d offset:16', VQ, VQ+3, VZ)
        a.e('s_waitcnt lgkmcnt(0)')
        a.e('v_min3_u32 v%d, v%d, v%d, v%d', VQ, VQ, VQ+1, VQ+2)
        a.e('v_min_u32 v%d, v%d, v%d', VQ, VQ, VQ+3)
        a.e('s_nop 0')
        a.e('v_readfirstlane_b32 s%d, v%d', S_FREEC, VQ)
        a.e('s_add_u32 s63, s63, 1')
        a.e('s_cmp_ge_i32 s%d, s%d', S_FREEC, S_NEED)
        a.e('s_cbranch_scc1 %s_ok', lab)
        if cfg.GSLEEP: a.e('s_sleep %d', cfg.GSLEEP)
        a.e('s_cmp_gt_u32 s63, 300000')
        a.e('s_cbranch_scc0 %s', lab)
        a.label(lab + '_ok')
    def flagdma(stamp_it=False):
        if cfg.NOFLAG:
            a.e('s_add_u32 s%d, s%d, 1', S_G, S_G); return
        a.e('s_lshl_b32 s%d, s%d, 2', S_TMP, S_G)
        a.e('s_mov_b32 m0, s%d', S_FULLA)
        a.e('s_mov_b64 exec, 1')
        a.e('buffer_load_dword v%d, s[%d:%d], s%d offen lds', VT+1, SRD_T, SRD_T+3, S_TMP)
        a.e('s_mov_b64 exec, -1')
        a.e('s_add_u32 s%d, s%d, 1', S_G, S_G)
    def dma(voff, srd, soff_s, gconst, lbase_s, lconst, half=False):
        if cfg.NOLOAD: return
        if cfg.DUMMYLDS: a.e('s_mov_b32 m0, 0x%x', 152576 + (lconst % 4096))
        else: a.e('s_add_u32 m0, s%d, 0x%x', lbase_s, lconst)
        if cfg.LINV: voff = LN
        a.e('s_add_u32 s%d, s%d, 0x%x', S_TMP, soff_s, gconst)
        if half: a.e('s_mov_b32 exec_hi, 0')
        a.e('buffer_load_dwordx4 v%d, s[%d:%d], s%d offen%s lds', voff, srd, srd+3, S_TMP, nt_r)
        if half: a.e('s_mov_b32 exec_hi, -1')
    def xunit(ve, vo, srd, sg, rowstride, flag=False):
        gate('X')
        a.e('s_waitcnt vmcnt(%d)', cfg.VMCAP)
        a.e('s_lshl_b32 s%d, s%d, 14', S_XS, S_XSA)
        a.e('s_add_u32 s%d, s%d, s%d', S_XS, S_XS, S_LXO)
        a.e('s_add_u32 s%d, s%d, 1', S_XSA, S_XSA)
        a.e('s_cmp_eq_u32 s%d, %d', S_XSA, cfg.NX)
        a.e('s_cselect_b32 s%d, 0, s%d', S_XSA, S_XSA)
        for q in range(4):
            dma(ve if q % 2 == 0 else vo, srd, sg, q*8*rowstride, S_XS, q*1024)
        if flag: flagdma()
        else: a.e('s_add_u32 s%d, s%d, 1', S_G, S_G)
        a.e('s_add_u32 s%d, s%d, 1', S_XI, S_XI)
    def wunit(kind, flag=True):
        gate('W')
        a.e('s_mul_i32 s%d, s%d, %d', S_WS, S_WSA, WSZ)
        a.e('s_add_u32 s%d, s%d, s%d', S_WS, S_WS, S_LWA if kind == 'A' else S_LWB)
        if kind == 'A':
            for b in range(3): dma(W0+b, SRD_WQ, S_GW, 0, S_WS, b*1024)
            if not cfg.SAMEADDR: a.e('s_add_u32 s%d, s%d, %d', S_GW, S_GW, 32*12288)
        else:
            for b in range(3): dma(WO0+b, SRD_WO, S_GO, 0, S_WS, b*1024, half=(b == 2))
            if not cfg.SAMEADDR: a.e('s_add_u32 s%d, s%d, %d', S_GO, S_GO, 32*1280)
        if flag: flagdma()
        else: a.e('s_add_u32 s%d, s%d, 1', S_G, S_G)
        a.e('s_add_u32 s%d, s%d, 1', S_WI, S_WI)
        a.e('s_add_u32 s%d, s%d, 1', S_WSA, S_WSA)
        a.e('s_cmp_eq_u32 s%d, %d', S_WSA, cfg.NW)
        a.e('s_cselect_b32 s%d, 0, s%d', S_WSA, S_WSA)
    def stampx():
        if cfg.DIAG:
            a.e('s_memrealtime s[60:61]')
            a.e('s_mov_b32 m0, s%d', S_XI)
            a.e('s_waitcnt lgkmcnt(0)')
            a.e('v_writelane_b32 v30, s60, m0')
    def chunkA(firstflag=False):
        xunit(XE_, XO, SRD_X, S_GX, 1280)
        if not cfg.SAMEADDR: a.e('s_add_u32 s%d, s%d, 128', S_GX, S_GX)
        wunit('A', firstflag); wunit('A')
        if cfg.ROTA:
            a.e('s_add_u32 s%d, s%d, 1', S_RC, S_RC)
            a.e('s_cmp_eq_u32 s%d, 10', S_RC)
            a.e('s_cselect_b32 s98, 1280, 0')
            a.e('s_cselect_b32 s99, %d, 0', 10*786432)
            a.e('s_cselect_b32 s%d, 0, s%d', S_RC, S_RC)
            a.e('s_sub_u32 s%d, s%d, s98', S_GX, S_GX)
            a.e('s_sub_u32 s%d, s%d, s99', S_GW, S_GW)
        stampx()
    def thirdB(th):
        xunit(VE, VO, SRD_V, S_GV, 384)
        if not cfg.SAMEADDR: a.e('s_add_u32 s%d, s%d, %d', S_GV, S_GV, 128 if th < 2 else 12288-256)
        wunit('B', False); wunit('B')
        if cfg.ROTB and th == 2:
            a.e('s_add_u32 s%d, s%d, 1', S_RH, S_RH)
            a.e('s_cmp_eq_u32 s%d, 4', S_RH)
            a.e('s_cselect_b32 s98, %d, 0', 4*12288)
            a.e('s_cselect_b32 s99, %d, 0', 4*192*1280)
            a.e('s_cselect_b32 s%d, 0, s%d', S_RH, S_RH)
            a.e('s_sub_u32 s%d, s%d, s98', S_GV, S_GV)
            a.e('s_sub_u32 s%d, s%d, s99', S_GO, S_GO)
        stampx()
    S_PHASE, S_PW0 = 90+2, 90+3
    NPH = cfg.NPHASE
    def pf_wq(p):
        if p >= 1: a.e('s_add_u32 s%d, s%d, %d', S_TMP, S_PW, (p-1)*2*786432)
        else: a.e('s_sub_u32 s%d, s%d, %d', S_TMP, S_PW, 2*786432)
        pf(SRD_WQ, S_TMP, 3)
    def pf_head(hd):
        a.e('s_mul_i32 s%d, s%d, %d', S_TMP, S_PHS, hd)
        a.e('s_add_u32 s%d, s%d, s%d', S_TMP, S_TMP, S_PH)
        pf(SRD_PH, S_TMP, 4)
    bursts = cfg.BURSTS
    def maybe_burst(slot):
        for (bs, items) in bursts:
            for ph in range(NPH):
                if bs + ph == slot:
                    lab = a.newlabel('nb')
                    if NPH > 1:
                        a.e('s_cmp_eq_u32 s%d, %d', S_PHASE, ph)
                        a.e('s_cbranch_scc0 %s', lab)
                    if cfg.DIAG3:
                        a.e('s_waitcnt vmcnt(0)')
                        a.e('s_memrealtime s[60:61]'); a.e('s_waitcnt lgkmcnt(0)'); a.e('s_mov_b32 s95, s60')
                    for it in items:
                        if it[0] == 'w': pf_wq(it[1])
                        elif it[0] == 'h': pf_head(it[1])
                        elif it[0] == 'x':
                            pf(SRD_X, S_PX, 4)
                            a.e('s_add_u32 s%d, s%d, 4096', S_TMP, S_PX)
                            pf(SRD_X, S_TMP, 1)
                        elif it[0] == 'k':
                            a.e('s_add_u32 s%d, s%d, %d', S_TMP, S_PK, it[1]*4096)
                            pf(SRD_K, S_TMP, 4)
                    if cfg.DIAG3:
                        a.e('s_waitcnt vmcnt(0)')
                        a.e('s_memrealtime s[60:61]'); a.e('s_waitcnt lgkmcnt(0)'); a.e('s_sub_u32 s60, s60, s95')
                        a.e('s_add_u32 s60, s60, 1')
                        a.e('v_writelane_b32 v30, s60, %d', 52 + bursts.index((bs, items)))
                    a.label(lab)
    if cfg.START == 0:
        chunkA(cfg.FIRST2)
        if cfg.INITPF:
            pf(SRD_X, S_PX, 4)
            a.e('s_add_u32 s%d, s%d, 4096', S_TMP, S_PX)
            pf(SRD_X, S_TMP, 1)
            pf_wq(1)
        late_setup()
    else:
        pf_wq(0); pf_wq(1)
        if cfg.PF_ON and not cfg.NOLOAD:
            a.e('s_mul_i32 s%d, s%d, 5120', S_TMP, S_LI)
            a.e('s_sub_u32 s%d, s%d, s%d', S_NEED, S_PX, S_TMP)
            a.e('s_mul_i32 s%d, s%d, %d', S_TMP, S_LI, 4*1280)
            a.e('s_add_u32 s%d, s%d, s%d', S_TMP, S_TMP, S_NEED)
            for i in range(2):
                a.e('buffer_load_dwordx4 v[%d:%d], v%d, s[%d:%d], s%d offen offset:%d%s', DUM, DUM+3, XPA, SRD_X, SRD_X+3, S_TMP, 2560*i, nt_pf)
        chunkA()
        late_setup()
    if NPH == 3:
        a.e('s_mul_i32 s%d, s%d, 11', S_PHASE, S_J)
        a.e('s_lshr_b32 s%d, s%d, 5', S_PHASE, S_PHASE)
        a.e('s_mul_i32 s%d, s%d, 3', S_PHASE, S_PHASE)
        a.e('s_sub_u32 s%d, s%d, s%d', S_PHASE, S_J, S_PHASE)
    else:
        a.e('s_and_b32 s%d, s%d, %d', S_PHASE, S_J, NPH-1)
    if cfg.DIAG:
        stamp(a, 0)
        a.e('s_memtime s[60:61]')
        a.e('s_waitcnt lgkmcnt(0)')
        a.e('v_writelane_b32 v30, s60, 50')
    for slot in range(1, 23):
        maybe_burst(slot)
        if slot < 10: chunkA()
        elif slot == 10:
            for th in range(3):
                xunit(VE, VO, SRD_K, S_GK, 384, flag=True)
                if not cfg.SAMEADDR: a.e('s_add_u32 s%d, s%d, 128', S_GK, S_GK)
                stampx()
        else: thirdB((slot - 11) % 3)
    a.e('s_waitcnt vmcnt(0)')
    if cfg.DIAG:
        lab = a.newlabel('dge')
        a.e('s_cmp_lg_u32 s%d, 0', S_LI)
        a.e('s_cbranch_scc1 %s', lab)
        stamp(a, 40)
        a.e('v_writelane_b32 v30, s90, 41')
        a.e('s_memtime s[60:61]')
        a.e('s_waitcnt lgkmcnt(0)')
        a.e('v_writelane_b32 v30, s60, 51')
        a.e('s_getreg_b32 s60, hwreg(HW_REG_XCC_ID)')
        a.e('s_add_u32 s60, s60, 100')
        a.e('v_writelane_b32 v30, s60, 63')
        stamp_store(a)
        a.label(lab)
    a.e('s_waitcnt lgkmcnt(0)')
    a.e('s_endpgm')

def main(outpath):
    layout()
    a = Asm()
    T = tables()
    hdr = HEADER + '; @launch grid=(256,1,1) block=(512,1,1) lds=%d\n' % LDS_TOTAL
    hdr += """;
; One fused kernel, 256 workgroups (one per CU), 8 waves each: waves 0-3 compute (MFMA), waves 4-7 stream
; operand tiles global -> LDS (LDS-DMA) through two LDS rings (X: 4 x 16 KiB, W: 7 x 12 KiB).
;   stage A  (head 8hg+hl, batches 4mb..4mb+3): q^T = wq_h^T x^T, S^T = K q^T, softmax (true row max), P (bf16) -> ws
;   stage B  (cols 160*(hl&3).., heads 8hg+4*(hl>>2)..+3): VW = V wo_h, out^T += VW^T P^T  (== (P V) wo, re-associated)
"""
    a.raw(hdr + '.amdgcn_target "amdgcn-amd-amdhsa--gfx950"\n.text')
    kernel_begin(a, KNAME)
    prologue(a, 'kend')
    a.e('s_cmp_ge_u32 s%d, 4', S_WAVE)
    a.e('s_cbranch_scc0 computew')
    ac = Asm(); ac.nlabel = 100000
    gen_compute(ac, T)
    gen_loaders(a, T)
    a.label('computew')
    a.lines += ac.lines
    a.label('kend')
    a.e('s_endpgm')
    a.raw('.p2align 8')
    a.label('seqtab')
    for i in range(128): a.raw('    .long %d' % (i+1))
    a.raw('.section .rodata,"a"\n.p2align 6')
    a.raw(kernel_desc(KNAME, 256))
    open(outpath, 'w').write(a.text())

if __name__ == '__main__':
    for k, v in os.environ.items():
        if k.startswith('CFG_'):
            name = k[4:]
            cur = getattr(cfg, name)
            setattr(cfg, name, (v not in ('0', 'False', '')) if isinstance(cur, bool) else int(v))
    BSETS = {
      0: [(1, [('w', 2), ('w', 3)]), (3, [('w', 4), ('h', 0)]), (6, [('h', 4), ('h', 1)]), (9, [('h', 5), ('h', 2)]), (12, [('h', 6), ('h', 3)]), (15, [('h', 7)])],
      1: [(1, [('w', 2)]), (2, [('w', 3)]), (4, [('w', 4)]), (7, [('h', 0), ('h', 4)]), (11, [('h', 1), ('h', 5)]), (14, [('h', 2), ('h', 6)]), (17, [('h', 3), ('h', 7)])],
      3: [(1, [('x',), ('w', 2)]), (3, [('w', 3), ('w', 4)]), (6, [('h', 0), ('h', 4)]), (11, [('h', 1), ('h', 5)]), (14, [('h', 2), ('h', 6)]), (17, [('h', 3), ('h', 7)])],
      4: [(1, [('x',), ('w', 2)]), (3, [('w', 3), ('w', 4)]), (5, [('k', 0), ('k', 1)]), (7, [('k', 2), ('h', 0)]), (9, [('h', 4), ('h', 1)]), (12, [('h', 5), ('h', 2)]), (15, [('h', 6), ('h', 3)]), (18, [('h', 7)])],
      5: [(1, [('x',), ('w', 2), ('w', 3)]), (4, [('w', 4), ('k', 0)]), (6, [('k', 1), ('k', 2)]), (8, [('h', 0), ('h', 4)]), (11, [('h', 1), ('h', 5)]), (14, [('h', 2), ('h', 6)]), (17, [('h', 3), ('h', 7)])],
      6: [(1, [('w', 2)]), (2, [('w', 3)]), (4, [('w', 4)])],
      7: [(7, [('h', 0), ('h', 4)]), (11, [('h', 1), ('h', 5)]), (14, [('h', 2), ('h', 6)]), (17, [('h', 3), ('h', 7)])],
      8: [(9, [('h', 0), ('h', 4)]), (12, [('h', 1), ('h', 5)]), (15, [('h', 2), ('h', 6)]), (18, [('h', 3), ('h', 7)])],
      9: [(5, [('k', 0), ('k', 1), ('k', 2)])],
      2: [(1, [('w', 2), ('w', 3)]), (4, [('w', 4), ('h', 0)]), (7, [('h', 4), ('h', 1)]), (10, [('h', 5), ('h', 2)]), (13, [('h', 6), ('h', 3)]), (16, [('h', 7)])],
    }
    cfg.BURSTS = BSETS[cfg.BSET]
    cfg.PUB_AT = (cfg.PUB // 2, cfg.PUB % 2); cfg.POLL_AT = (cfg.POLL // 2, cfg.POLL % 2)
    main(sys.argv[1])
```

```python
import sys, os, math, struct
from asmlib import *

NAME = 'concat_heads__gqa_block_cached__mha_block_cached__near_ridge'
KNAME = NAME + '_kernel'
WS_P = 0
WS_PFLAG = 3 << 20
WS_RFLAG = (3 << 20) + (1 << 17)
WS_PART = 4 << 20
WS_DIAG = 24 << 20
WS_SIZE = 32 << 20

EVENTS = []
class Cfg: pass
cfg = Cfg()
cfg.DIAG = False; cfg.NT = False; cfg.NT_PF = False; cfg.PF_ON = False; cfg.NOLOAD = False; cfg.SAMEADDR = False
cfg.VMCAP = 24; cfg.NPHASE = 1; cfg.WO10 = True; cfg.OPF = False; cfg.OPF_T0 = 8; cfg.OPF_STEP = 9; cfg.OUT16 = True; cfg.OUTPOL = 0; cfg.FIRST2 = False; cfg.BARFREE = False; cfg.SMOOTH = False; cfg.FREE1 = True; cfg.FREEX = False; cfg.ROTA = False; cfg.ROTB = False; cfg.INITPF = True; cfg.PUB = 4; cfg.POLL = 4; cfg.START = 0; cfg.DIAG3 = False; cfg.BSET = 3; cfg.SLOWCALL = True; cfg.NOSYNC = False; cfg.NOGATE = False; cfg.GSLEEP = 0; cfg.NOFLAG = False; cfg.DUMMYLDS = False; cfg.LINV = False; cfg.LPRIO = 0; cfg.CPRIO = 0; cfg.PF_K = False; cfg.NX = 4; cfg.NW = 7

S_BETA, S_HG, S_MB, S_HL = 4, 5, 6, 7
SRD_X, SRD_WQ, SRD_K, SRD_V, SRD_WO, SRD_WS, SRD_OUT, SRD_DBG = 8, 12, 16, 20, 24, 28, 32, 36
S_WAVE, S_XCD, S_J, S_H, S_NS, S_HH = 3, 40, 41, 46, 42, 43
LDS_TOTAL = 163840
XB, XSZ = 0, 16384
WSZ = 12288

def layout():
    global WB, FLAG_BASE, F_FULL, F_FREE
    WB = XB + cfg.NX * XSZ
    FLAG_BASE = WB + cfg.NW * WSZ
    assert FLAG_BASE + 64 <= LDS_TOTAL
    F_FULL = FLAG_BASE; F_FREE = FLAG_BASE + 16

def tables():
    xs = [('x', i) for i in range(10)] + [('K', t) for t in range(3)] + [('V', h, t) for h in range(4) for t in range(3)]
    wsq = [('wq', i) for i in range(20)] + [('wo', h, t, f) for h in range(4) for t in range(3) for f in range(2)]
    load = []
    for i in range(10): load += [('x', i), ('wq', 2*i), ('wq', 2*i+1)]
    load += [('K', t) for t in range(3)]
    for h in range(4):
        for t in range(3): load += [('V', h, t), ('wo', h, t, 0), ('wo', h, t, 1)]
    lidx = {u: i for i, u in enumerate(load)}
    tick = {}
    tk = 0
    for i in range(10):
        tk += 1; tick[('wq', 2*i)] = tk
        tk += 1; tick[('wq', 2*i+1)] = tk; tick[('x', i)] = tk
    for t in range(3):
        tk += 1; tick[('K', t)] = tk
    for h in range(4):
        for t in range(3):
            tk += 1; tick[('wo', h, t, 0)] = tk
            tk += 1; tick[('wo', h, t, 1)] = tk; tick[('V', h, t)] = tk
    xsl = {u: (i % cfg.NX) for i, u in enumerate(xs)}
    wsl = {u: (i % cfg.NW) for i, u in enumerate(wsq)}
    xneed = [tick[xs[i-cfg.NX]] if i >= cfg.NX else 0 for i in range(len(xs))]
    wneed = [tick[wsq[i-cfg.NW]] if i >= cfg.NW else 0 for i in range(len(wsq))]
    return dict(xs=xs, ws=wsq, load=load, lidx=lidx, tick=tick, xsl=xsl, wsl=wsl, xneed=xneed, wneed=wneed, ntick=tk)

def stamp(a, idx, vreg=30):
    if not cfg.DIAG: return
    a.e('s_memrealtime s[60:61]')
    a.e('s_waitcnt lgkmcnt(0)')
    a.e('v_writelane_b32 v%d, s60, %d', vreg, idx)
def stamp_store(a, vreg=30, vtmp=31, region=0):
    if not cfg.DIAG: return
    a.e('v_lshlrev_b32 v%d, 2, v0', vtmp)
    a.e('s_lshl_b32 s60, s2, 8')
    a.e('s_add_u32 s60, s60, 0x%x', WS_DIAG + region*65536)
    a.e('buffer_store_dword v%d, v%d, s[%d:%d], s60 offen', vreg, vtmp, SRD_WS, SRD_WS+3)

def prologue(a, endlabel):
    if cfg.DIAG: a.e('s_memrealtime s[90:91]')
    a.e('s_cmp_ge_u32 s2, 256')
    a.e('s_cbranch_scc1 %s', endlabel)
    a.e('s_and_b32 s%d, s2, 7', S_XCD)
    a.e('s_lshr_b32 s%d, s2, 3', S_J)
    a.e('s_lshr_b32 s%d, s%d, 2', S_BETA, S_XCD)
    a.e('s_and_b32 s%d, s%d, 3', S_HG, S_XCD)
    a.e('s_and_b32 s%d, s%d, 3', S_MB, S_J)
    a.e('s_lshr_b32 s%d, s%d, 2', S_HL, S_J)
    a.e('s_mul_i32 s47, s%d, 40', S_BETA)
    a.e('s_add_u32 s44, s0, s47')
    a.e('s_addc_u32 s45, s1, 0')
    a.e('s_load_dwordx2 s[%d:%d], s[44:45], 0', SRD_X, SRD_X+1)
    a.e('s_load_dwordx2 s[%d:%d], s[44:45], 24', SRD_WQ, SRD_WQ+1)
    a.e('s_load_dwordx2 s[%d:%d], s[44:45], 8', SRD_K, SRD_K+1)
    a.e('s_load_dwordx2 s[%d:%d], s[44:45], 16', SRD_V, SRD_V+1)
    a.e('s_load_dwordx2 s[%d:%d], s[44:45], 32', SRD_WO, SRD_WO+1)
    a.e('s_load_dwordx2 s[%d:%d], s[0:1], 80', SRD_OUT, SRD_OUT+1)
    a.e('s_load_dwordx2 s[%d:%d], s[0:1], 88', SRD_DBG, SRD_DBG+1)
    a.e('s_load_dwordx2 s[%d:%d], s[0:1], 96', SRD_WS, SRD_WS+1)
    a.e('v_lshrrev_b32 v1, 6, v0')
    a.e('v_and_b32 v0, 63, v0')
    for srd, sz in ((SRD_X, 655360), (SRD_WQ, 7864320), (SRD_K, 6291456), (SRD_V, 6291456), (SRD_WO, 7864320),
                    (SRD_WS, WS_SIZE), (SRD_OUT, 1310720), (SRD_DBG, 256)):
        a.e('s_mov_b32 s%d, 0x%x', srd+2, sz)
        a.e('s_mov_b32 s%d, 0x20000', srd+3)
    a.e('v_readfirstlane_b32 s%d, v1', S_WAVE)
    a.e('s_lshl_b32 s%d, s%d, 3', S_H, S_HG)
    a.e('s_add_u32 s%d, s%d, s%d', S_H, S_H, S_HL)
    a.e('s_and_b32 s%d, s%d, 3', S_NS, S_HL)
    a.e('s_lshr_b32 s%d, s%d, 2', S_HH, S_HL)

def div_const(a, vd, vs, d, maxv):
    M = -(-65536 // d)
    for x in range(maxv+1):
        assert (x*M) >> 16 == x // d, (x, d)
    a.e('v_mul_u32_u24 v%d, 0x%x, v%d', vd, M, vs)
    a.e('v_lshrrev_b32 v%d, 16, v%d', vd, vd)

class LdsTrack:
    def __init__(self, a):
        self.a = a; self.q = []
    def read(self, text, lo, n):
        self.a.e(text); self.q.append((lo, lo+n-1))
    def other(self, text):
        self.a.e(text); self.q.append((-1, -1))
    def need(self, *ranges):
        last = -1
        for i, (lo, hi) in enumerate(self.q):
            for (l, n) in ranges:
                if not (hi < l or lo > l+n-1): last = i
        if last >= 0:
            k = min(15, len(self.q) - 1 - last)
            self.a.e('s_waitcnt lgkmcnt(%d)', k)
            self.q = self.q[len(self.q)-k:] if k else []
    def drain(self):
        if self.q:
            self.a.e('s_waitcnt lgkmcnt(0)'); self.q = []

def spin_flags(a, off, need, vz, vt, stmp, sleep=0):
    lab = a.newlabel('sp')
    a.label(lab)
    a.e('ds_read_b128 v[%d:%d], v%d offset:%d', vt, vt+3, vz, off)
    a.e('s_waitcnt lgkmcnt(0)')
    a.e('v_min3_u32 v%d, v%d, v%d, v%d', vt, vt, vt+1, vt+2)
    a.e('v_min_u32 v%d, v%d, v%d', vt, vt, vt+3)
    a.e('s_nop 0')
    a.e('v_readfirstlane_b32 s%d, v%d', stmp, vt)
    a.e('s_add_u32 s63, s63, 1')
    a.e('s_cmp_gt_u32 s63, 0x%x', 300000)
    a.e('s_cbranch_scc1 %s_ok', lab)
    a.e('s_cmp_ge_u32 s%d, %d', stmp, need)
    if sleep:
        a.e('s_cbranch_scc1 %s_ok', lab)
        a.e('s_sleep %d', sleep)
        a.e('s_branch %s', lab)
    else:
        a.e('s_cbranch_scc0 %s', lab)
    a.label(lab + '_ok')

def gen_compute(a, T):
    lidx, tick, xsl, wsl = T['lidx'], T['tick'], T['xsl'], T['wsl']
    XREL = 2
    WEl, WOl, WEh, WOh = 6, 7, 8, 9
    WBl, WBh = 6, 8
    VFA, VFR, VCNT, PV = 10, 1, 15, 11
    VZ, VFL, TMP = 14, 252, 248
    VF1 = 12
    t0, t1, t2, t3 = TMP, TMP+1, TMP+2, TMP+3
    ACC = 16
    AF = [112, 136]; XF = [160, 164]
    VW, OA, SACC = 16, 168, 96
    QBm = [OA+0, OA+4, OA+8, OA+12] + [OA+16*k+q for k in range(1, 5) for q in (0, 4)]
    QBm += []
    VWB0 = [OA+16*(nt+1)+8 for nt in range(4)] + [104]
    PA = [96, 100]; PBq = [132, 156]
    PK = OA
    S_NONCE = 62
    L = LdsTrack(a)
    a.e('s_mov_b32 s63, 0')
    if cfg.DIAG: a.e('s_mov_b32 s99, 0'); a.e('s_mov_b32 s98, 0')
    if cfg.CPRIO: a.e('s_setprio %d', cfg.CPRIO)
    a.e('v_mov_b32 v%d, 0x%x', VZ, FLAG_BASE)
    a.e('v_and_b32 v%d, 3, v0', t0)
    a.e('v_lshl_add_u32 v%d, v%d, 2, v%d', VFA, t0, VZ)
    a.e('v_lshlrev_b32 v%d, 2, v0', t0)
    a.e('v_add_u32 v%d, 0x%x, v%d', VFR, FLAG_BASE + 64, t0)
    a.e('s_lshl_b32 s58, s%d, 2', S_WAVE)
    a.e('s_add_u32 s58, s58, 0x%x', F_FREE)
    a.e('v_writelane_b32 v%d, s58, 0', VFR)
    a.e('v_mov_b32 v%d, 0', VCNT)
    a.e('v_and_b32 v%d, 31, v0', t0)
    a.e('v_lshrrev_b32 v%d, 5, v0', t1)
    a.e('v_bfe_u32 v%d, v0, 1, 3', t2)
    a.e('v_xor_b32 v%d, v%d, v%d', t2, t2, t1)
    a.e('s_lshl_b32 s47, s%d, 12', S_WAVE)
    a.e('v_lshlrev_b32 v%d, 7, v%d', t3, t0)
    a.e('v_add_u32 v%d, s47, v%d', t3, t3)
    if XB: a.e('v_add_u32 v%d, %d, v%d', t3, XB, t3)
    for s_ in range(4):
        a.e('v_xor_b32 v%d, %d, v%d', XREL+s_, 2*s_, t2)
        a.e('v_lshl_add_u32 v%d, v%d, 4, v%d', XREL+s_, XREL+s_, t3)
        a.e('v_add_u32 v%d, 0x10000, v%d', 252+s_, XREL+s_)
    a.e('v_bfe_u32 v%d, v0, 2, 2', t0)
    a.e('v_lshrrev_b32 v%d, 5, v0', t1)
    a.e('v_lshl_add_u32 v%d, v%d, 3, v%d', t0, t1, t0)
    a.e('v_mul_u32_u24 v%d, 384, v%d', t0, t0)
    a.e('v_bfe_u32 v%d, v0, 4, 1', t1)
    a.e('v_lshl_add_u32 v%d, v%d, 5, v%d', t0, t1, t0)
    a.e('v_and_b32 v%d, 1, v0', t1)
    a.e('v_lshl_add_u32 v%d, v%d, 4, v%d', t0, t1, t0)
    a.e('v_bfe_u32 v%d, v0, 1, 1', t1)
    a.e('v_lshl_add_u32 v%d, v%d, 3, v%d', t0, t1, t0)
    a.e('v_add_u32 v%d, 0x%x, v%d', t0, WB, t0)
    a.e('v_bfe_u32 v%d, v0, 3, 1', t1)
    a.e('v_lshlrev_b32 v%d, 6, v%d', t1, t1)
    a.e('v_add_u32 v%d, v%d, v%d', WEl, t0, t1)
    a.e('v_sub_u32 v%d, v%d, v%d', WOl, t0, t1)
    a.e('v_add_u32 v%d, %d, v%d', WEh, 4*WSZ, WEl)
    a.e('v_add_u32 v%d, %d, v%d', WOh, 4*WSZ, WOl)
    a.e('v_lshlrev_b32 v%d, 4, v0', PV)
    a.e('s_waitcnt lgkmcnt(0)')
    a.e('s_barrier')

    slow = []
    bg = []
    def emit_bg(n):
        for _ in range(n):
            if bg: a.e(bg.pop(0))
    def flag_prefetch():
        L.read('ds_read_b32 v%d, v%d' % (VF1, VFA), VF1, 1)
    pend = {}
    def flag_cmp(unit):
        L.need((VF1, 1))
        need = lidx[unit] + 1
        a.e('v_cmp_gt_u32 vcc, %d, v%d', need, VF1)
        pend['need'] = need
    def flag_branch():
        if cfg.NOSYNC: return
        if cfg.SLOWCALL:
            a.e('s_mov_b32 s61, %d', pend['need'])
            a.e('s_getpc_b64 s[56:57]')
            a.e('s_cbranch_vccnz common_slow')
        else:
            lab = a.newlabel('fl')
            a.e('s_cbranch_vccnz %s_slow', lab)
            a.label(lab)
            slow.append((lab, pend['need']))
    def flag_check(unit):
        flag_cmp(unit); a.e('s_nop 4'); flag_branch()
    ticknow = [0]
    def signal_free(skip=False):
        if cfg.BARFREE:
            ticknow[0] += 1
            if skip: return
            EVENTS.append(ticknow[0])
            a.e('s_barrier')
            return
        a.e('v_add_u32 v%d, 1, v%d', VCNT, VCNT)
        if skip and cfg.FREE1: return
        if cfg.FREEX:
            a.e('s_mov_b64 exec, 1')
            L.other('ds_write_b32 v%d, v%d' % (VFR, VCNT))
            a.e('s_mov_b64 exec, -1')
        else:
            L.other('ds_write_b32 v%d, v%d' % (VFR, VCNT))
    XRELH = 252
    def xread(dst, xu, xs_):
        sl = xsl[xu]
        if sl >= 4: return ('ds_read_b128 v[%d:%d], v%d offset:%d' % (dst, dst+3, XRELH+xs_, (sl-4)*XSZ), dst, 4)
        return ('ds_read_b128 v[%d:%d], v%d offset:%d' % (dst, dst+3, XREL+xs_, sl*XSZ), dst, 4)
    def reads(kind, xu, xs_, wu, ws_, k):
        r = [xread(XF[k], xu, xs_)]
        sl = wsl[wu]; hi = sl >= 4; so = (sl - 4 if hi else sl)*WSZ
        for t in range(6 if kind == 'A' else 5):
            for u in range(2):
                d = AF[k]+4*t+2*u
                if kind == 'A':
                    base = (WEh if hi else WEl) if t % 2 == 0 else (WOh if hi else WOl)
                    off = so + (16*ws_+4*u)*384 + 64*t
                else:
                    base = WBh if hi else WBl
                    off = so + (16*ws_+4*u)*320 + 64*t
                r.append(('ds_read_b64_tr_b16 v[%d:%d], v%d offset:%d' % (d, d+1, base, off), d, 2))
        return r
    def step(kind, k, nreads, per, first=False, hooks=None, nbg=0):
        nt_ = 6 if kind == 'A' else 5
        idx = 0
        for t in range(nt_):
            L.need((AF[k]+4*t, 4), (XF[k], 4))
            D = (ACC if kind == 'A' else VW) + 16*t
            c = '0' if first else 'v[%d:%d]' % (D, D+15)
            if kind == 'A':
                a.e('v_mfma_f32_32x32x16_bf16 v[%d:%d], v[%d:%d], v[%d:%d], %s', D, D+15, AF[k]+4*t, AF[k]+4*t+3, XF[k], XF[k]+3, c)
            else:
                a.e('v_mfma_f32_32x32x16_bf16 v[%d:%d], v[%d:%d], v[%d:%d], %s', D, D+15, XF[k], XF[k]+3, AF[k]+4*t, AF[k]+4*t+3, c)
            if hooks and t in hooks:
                for h in (hooks[t] if isinstance(hooks[t], list) else [hooks[t]]):
                    r = h()
                    if r is not None: nreads = r
            n = 0
            for _ in range(per[t]):
                if idx < len(nreads):
                    L.read(*nreads[idx]); idx += 1; n += 1
            emit_bg(max(0, min(nbg, 5 - n)))
        assert idx == len(nreads), (idx, len(nreads), kind)
    def stampc(i):
        if cfg.DIAG:
            a.e('s_memrealtime s[%d:%d]', 64+2*i, 65+2*i)
            a.e('s_mov_b32 s%d, s63', 80+i)
            if i < 3:
                a.e('s_memtime s[%d:%d]', 88+2*i, 89+2*i)
                a.e('v_writelane_b32 v13, s99, %d', i); a.e('v_writelane_b32 v13, s98, %d', 4+i)
    def needflag(u):
        if u[0] == 'wq': return u[1] % 2 == 0 or (cfg.FIRST2 and u[1] == 1)
        if u[0] == 'wo': return u[3] == 0
        return True
    def flagunit(u):
        if u[0] == 'wq': return ('wq', u[1] + 1) if u[1] % 2 == 0 else u
        if u[0] == 'wo': return ('wo', u[1], u[2], 1)
        return u
    def unit(kind, wu, xu, xs0, first, nxt_unit, nxt_reads, extra0=None, nbg=0):
        nt_ = 6 if kind == 'A' else 5
        chk = nxt_unit is not None and needflag(nxt_unit)
        rd1 = reads(kind, xu, xs0+1, wu, 1, 1)
        if cfg.SMOOTH:
            sm = [3,2,2,2,2,2] if kind == 'A' else [3,2,2,2,2]
            hk0 = {}
            if extra0: hk0.update(extra0)
            step(kind, 0, rd1, sm, first=first, hooks=hk0, nbg=nbg)
            if chk: flag_prefetch()
            if nxt_unit and not chk:
                def h0():
                    signal_free(skip=True)
                    return nxt_reads()
                step(kind, 1, [], sm, hooks={0: h0}, nbg=nbg)
            elif nxt_unit:
                def h1(): flag_cmp(flagunit(nxt_unit)); signal_free()
                def h2(): flag_branch(); return nxt_reads()
                nr = len(nxt_reads())
                if kind == 'A': per1 = [0,0,4,3,3,3] if nr == 13 else [0,0,2,2,0,0]
                else: per1 = [0,0,4,4,3] if nr == 11 else [0,0,2,2,0]
                step(kind, 1, [], per1, hooks={1: h1, 2: h2}, nbg=nbg)
            else:
                def h0(): L.drain(); signal_free()
                step(kind, 1, [], [0]*nt_, hooks={1: h0}, nbg=nbg)
            return
        per0 = [4,3,3,3,0,0] if kind == 'A' else [4,4,3,0,0]
        hk0 = {(4 if kind == 'A' else 3): flag_prefetch} if chk else {}
        if extra0: hk0.update(extra0)
        step(kind, 0, rd1, per0, first=first, hooks=hk0, nbg=nbg)
        if nxt_unit:
            def h0():
                if chk: flag_cmp(flagunit(nxt_unit))
                else: L.need((rd1[-1][1], rd1[-1][2]))
                signal_free(skip=not chk)
            def h1():
                if chk: flag_branch()
                return nxt_reads()
            nr = len(nxt_reads())
            if kind == 'A': per1 = [0,4,3,3,3,0] if nr == 13 else [0,2,2,0,0,0]
            else: per1 = [0,4,4,3,0] if nr == 11 else [0,2,2,0,0]
            step(kind, 1, [], per1, hooks={0: h0, 1: h1}, nbg=nbg)
        else:
            def h0(): L.drain(); signal_free()
            step(kind, 1, [], [0]*nt_, hooks={1: h0}, nbg=nbg)

    KF = [AF[0]+4*i for i in range(6)] + [AF[1]+4*i for i in range(6)]
    flag_prefetch(); flag_check(('wq', 0) if cfg.FIRST2 else ('wq', 1))
    if cfg.DIAG:
        a.e('s_memrealtime s[76:77]'); a.e('s_memtime s[94:95]'); a.e('s_waitcnt lgkmcnt(0)')
    for r in reads('A', ('x', 0), 0, ('wq', 0), 0, 0): L.read(*r)
    for wi in range(20):
        i, hf = wi // 2, wi % 2
        ex0 = None
        if wi == 8:
            def nl():
                a.e('v_mov_b32 v%d, 0', t0)
                a.e('buffer_load_dword v%d, v%d, s[%d:%d], 0 offen sc1', t1, t0, SRD_DBG, SRD_DBG+3)
            ex0 = {0: nl}
        if wi < 19:
            nu = ('wq', wi+1)
            nr = (lambda i=i, hf=hf, nu=nu: reads('A', ('x', i+1 if hf else i), 0 if hf else 2, nu, 0, 0))
        else:
            nu = ('K', 0)
            nr = (lambda: [xread(KF[s_], ('K', 0), s_) for s_ in range(4)])
        unit('A', ('wq', wi), ('x', i), 2*hf, wi == 0, nu, nr, extra0=ex0)
    lab = a.newlabel('nonce')
    a.e('s_waitcnt vmcnt(0)')
    a.e('s_nop 0')
    a.e('v_readfirstlane_b32 s%d, v%d', S_NONCE, t1)
    a.e('s_nop 0')
    a.e('s_cmp_lg_u32 s%d, 0', S_NONCE)
    a.e('s_cbranch_scc0 %s', lab)
    a.label(lab + '_ok')
    slow_nonce = lab
    a.e('v_bfe_u32 v%d, v0, 2, 2', t0)
    a.e('v_lshrrev_b32 v%d, 5, v0', t1)
    a.e('v_lshl_add_u32 v%d, v%d, 3, v%d', t0, t1, t0)
    a.e('v_mul_u32_u24 v%d, 320, v%d', t0, t0)
    a.e('v_bfe_u32 v%d, v0, 4, 1', t1)
    a.e('v_lshl_add_u32 v%d, v%d, 5, v%d', t0, t1, t0)
    a.e('v_and_b32 v%d, 3, v0', t1)
    a.e('v_lshl_add_u32 v%d, v%d, 3, v%d', t0, t1, t0)
    a.e('v_add_u32 v%d, 0x%x, v%d', WBl, WB, t0)
    a.e('v_add_u32 v%d, %d, v%d', WBh, 4*WSZ, WBl)
    a.e('s_lshl_b32 s51, s%d, 4', S_BETA)
    a.e('s_lshl_b32 s47, s%d, 2', S_MB)
    a.e('s_add_u32 s51, s51, s47')
    a.e('s_add_u32 s51, s51, s%d', S_WAVE)
    a.e('s_lshl_b32 s51, s51, 5')
    a.e('s_lshl_b32 s52, s%d, 3', S_HG)
    a.e('s_lshl_b32 s47, s%d, 2', S_HH)
    a.e('s_add_u32 s52, s52, s47')
    a.e('s_add_u32 s52, s52, s51')
    a.e('s_lshl_b32 s52, s52, 11')
    a.e('s_add_u32 s52, s52, 0x%x', WS_P)
    stampc(0)
    def cvtq(sp):
        t, hf = sp // 2, sp % 2
        return ['v_cvt_pk_bf16_f32 v%d, v%d, v%d' % (QBm[sp]+j, ACC+16*t+8*hf+2*j, ACC+16*t+8*hf+2*j+1) for j in range(4)]
    for sp in range(4):
        for x in cvtq(sp): a.e(x)
    L.drain(); signal_free()
    flag_prefetch(); flag_check(('K', 1))
    for s_ in range(4): L.read(*xread(KF[4+s_], ('K', 1), s_))
    for sp in range(4, 8):
        for x in cvtq(sp): a.e(x)
    L.drain(); signal_free()
    flag_prefetch(); flag_check(('K', 2))
    for s_ in range(4): L.read(*xread(KF[8+s_], ('K', 2), s_))
    for sp in range(8, 12): bg.extend(cvtq(sp))
    emit_bg(16)
    for sp in range(12):
        L.need((KF[sp], 4))
        c = '0' if sp == 0 else 'v[%d:%d]' % (SACC, SACC+15)
        a.e('v_mfma_f32_32x32x16_bf16 v[%d:%d], v[%d:%d], v[%d:%d], %s', SACC, SACC+15, KF[sp], KF[sp]+3, QBm[sp], QBm[sp]+3, c)
        if sp == 7:
            L.drain(); signal_free(); flag_prefetch()
        if sp == 9: flag_cmp(('wo', 0, 0, 1))
        if sp == 10:
            flag_branch()
            for r in reads('B', ('V', 0, 0), 0, ('wo', 0, 0, 0), 0, 0): L.read(*r)
    cval = (192 ** -0.5) * math.log2(math.e)
    cb = struct.unpack('<I', struct.pack('<f', cval))[0]
    a.e('s_mov_b32 s50, 0x%x', cb)
    a.e('s_add_u32 s53, s51, s%d', S_H)
    a.e('s_lshl_b32 s53, s53, 11')
    a.e('s_add_u32 s53, s53, 0x%x', WS_P)
    q = []
    q.append('s_nop 7')
    q.append('v_max3_f32 v%d, v%d, v%d, v%d' % (t0, SACC, SACC+1, SACC+2))
    for r in range(3, 15, 2):
        q.append('v_max3_f32 v%d, v%d, v%d, v%d' % (t0, t0, SACC+r, SACC+r+1))
    q.append('v_max_f32 v%d, v%d, v%d' % (t0, t0, SACC+15))
    q.append('v_mov_b32 v%d, v%d' % (t1, t0))
    q.append('s_nop 1')
    q.append('v_permlane32_swap_b32 v%d, v%d' % (t0, t1))
    q.append('v_max_f32 v%d, v%d, v%d' % (t0, t0, t1))
    q.append('v_mul_f32 v%d, s50, v%d' % (t2, t0))
    for r in range(16): q.append('v_fma_f32 v%d, v%d, s50, -v%d' % (SACC+r, SACC+r, t2))
    for r in range(16): q.append('v_exp_f32 v%d, v%d' % (SACC+r, SACC+r))
    q.append('s_nop 0')
    q.append('v_add_f32 v%d, v%d, v%d' % (t0, SACC, SACC+1))
    q.append('v_add_f32 v%d, v%d, v%d' % (t1, SACC+2, SACC+3))
    for r in range(4, 16, 2):
        q.append('v_add_f32 v%d, v%d, v%d' % (t0, t0, SACC+r))
        q.append('v_add_f32 v%d, v%d, v%d' % (t1, t1, SACC+r+1))
    q.append('v_add_f32 v%d, v%d, v%d' % (t0, t0, t1))
    q.append('v_mov_b32 v%d, v%d' % (t1, t0))
    q.append('s_nop 1')
    q.append('v_permlane32_swap_b32 v%d, v%d' % (t0, t1))
    q.append('v_add_f32 v%d, v%d, v%d' % (t0, t0, t1))
    q.append('v_rcp_f32 v%d, v%d' % (t0, t0))
    q.append('s_nop 0')
    for r in range(16): q.append('v_mul_f32 v%d, v%d, v%d' % (SACC+r, SACC+r, t0))
    for j in range(8): q.append('v_cvt_pk_bf16_f32 v%d, v%d, v%d' % (PK+j, SACC+2*j, SACC+2*j+1))
    q.append('buffer_store_dwordx4 v[%d:%d], v%d, s[%d:%d], s53 offen sc1' % (PK, PK+3, PV, SRD_WS, SRD_WS+3))
    q.append('buffer_store_dwordx4 v[%d:%d], v%d, s[%d:%d], s53 offen offset:1024 sc1' % (PK+4, PK+7, PV, SRD_WS, SRD_WS+3))
    bg.extend(q)

    def g2cvt(dst_first, p, first=False, src=None):
        pass
    def cvt_tile(nt, dst):
        d = VW + 16*nt
        o = d if dst is None else dst[nt]
        return ['v_cvt_pk_bf16_f32 v%d, v%d, v%d' % (o+j, d+2*j, d+2*j+1) for j in range(8)]
    def g2(src, p, first=False, fill=None):
        j = 0
        for nt in range(5):
            s_ = VW+16*nt if src is None else src[nt]
            D = OA + 16*nt
            for z in range(2):
                c = '0' if (first and z == 0) else 'v[%d:%d]' % (D, D+15)
                a.e('v_mfma_f32_32x32x16_bf16 v[%d:%d], v[%d:%d], v[%d:%d], %s', D, D+15, s_+4*z, s_+4*z+3, p[z], p[z]+3, c)
                if fill and j < len(fill):
                    for x in fill[j]: a.e(x)
                j += 1
    def g2_inplace(p):
        for x in cvt_tile(0, None): a.e(x)
        a.e('s_nop 1')
        fill = []
        for nt in range(1, 5):
            c = cvt_tile(nt, None)
            fill += [c[:4], c[4:] + ['s_nop 1']]
        g2(None, p, fill=fill)
    def p_load(hq, p):
        if cfg.ROTB:
            a.e('s_add_u32 s47, s%d, s%d', S_MB, S_NS)
            a.e('s_add_u32 s47, s47, %d', hq)
            a.e('s_and_b32 s47, s47, 3')
            a.e('s_lshl_b32 s47, s47, 11')
            a.e('s_add_u32 s47, s47, s52')
        else:
            a.e('s_add_u32 s47, s52, %d', hq*2048)
        for z in range(2):
            a.e('buffer_load_dwordx4 v[%d:%d], v%d, s[%d:%d], s47 offen offset:%d sc1', p[z], p[z]+3, PV, SRD_WS, SRD_WS+3, z*1024)
    def publish_p():
        assert not bg
        a.e('s_waitcnt vmcnt(0)')
        a.e('s_lshl_b32 s47, s2, 2')
        a.e('s_add_u32 s47, s47, s%d', S_WAVE)
        a.e('s_lshl_b32 s47, s47, 6')
        a.e('s_add_u32 s47, s47, 0x%x', WS_PFLAG)
        a.e('v_mov_b32 v%d, 0', t0)
        a.e('v_mov_b32 v%d, s%d', t1, S_NONCE)
        a.e('s_mov_b64 exec, 1')
        a.e('buffer_store_dword v%d, v%d, s[%d:%d], s47 offen sc1', t1, t0, SRD_WS, SRD_WS+3)
        a.e('s_mov_b64 exec, -1')
    def poll_p():
        lab = a.newlabel('pollp')
        a.e('v_and_b32 v%d, 3, v0', t0)
        a.e('v_lshlrev_b32 v%d, 5, v%d', t0, t0)
        a.e('s_lshl_b32 s47, s%d, 7', S_HH)
        a.e('s_lshl_b32 s48, s%d, 3', S_MB)
        a.e('s_add_u32 s47, s47, s48')
        a.e('s_add_u32 s47, s47, s%d', S_XCD)
        a.e('v_add_u32 v%d, s47, v%d', t0, t0)
        a.e('v_lshlrev_b32 v%d, 8, v%d', t0, t0)
        a.e('s_lshl_b32 s47, s%d, 6', S_WAVE)
        a.e('s_add_u32 s47, s47, 0x%x', WS_PFLAG)
        a.label(lab)
        a.e('buffer_load_dword v%d, v%d, s[%d:%d], s47 offen sc1', t2, t0, SRD_WS, SRD_WS+3)
        a.e('s_waitcnt vmcnt(0)')
        a.e('v_cmp_ne_u32 vcc, s%d, v%d', S_NONCE, t2)
        a.e('s_add_u32 s63, s63, 64')
        a.e('s_cmp_gt_u32 s63, 300000')
        a.e('s_cbranch_scc1 %s_done', lab)
        a.e('s_nop 2')
        a.e('s_cbranch_vccnz %s', lab)
        a.label(lab + '_done')
    def head(hq):
        for th in range(3):
            for hf in range(2):
                wu = ('wo', hq, th, hf)
                last = (th == 2 and hf == 1)
                if not last:
                    nu = ('wo', hq, th + hf, 1 - hf)
                    nr = (lambda nu=nu, hf=hf: reads('B', ('V', hq, nu[2]), 0 if hf else 2, nu, 0, 0))
                elif hq < 3:
                    nu = ('wo', hq+1, 0, 0)
                    nr = (lambda nu=nu: reads('B', ('V', hq+1, 0), 0, nu, 0, 0))
                else:
                    nu = None; nr = None
                ex0 = None
                if hq == 0 and (th, hf) == cfg.PUB_AT: ex0 = {0: publish_p}
                if hq == 1 and (th, hf) == cfg.POLL_AT: ex0 = {0: (lambda: (poll_p(), p_load(0, PA), p_load(1, PBq), None)[-1])}
                if hq == 2 and th == 1 and hf == 0: ex0 = {0: (lambda: p_load(2, PA))}
                if hq == 3 and th == 1 and hf == 0: ex0 = {0: (lambda: p_load(3, PBq))}
                unit('B', wu, ('V', hq, th), 2*hf, th == 0 and hf == 0, nu, nr, extra0=ex0, nbg=(5 if bg else 0))
    head(0)
    stampc(1)
    a.e('s_nop 7'); a.e('s_nop 3')
    for nt in range(5):
        for x in cvt_tile(nt, VWB0): a.e(x)
    head(1)
    a.e('s_nop 7'); a.e('s_nop 3')
    a.e('s_waitcnt vmcnt(0)')
    fill = []
    for nt in range(5):
        c = cvt_tile(nt, None)
        fill += [c[:4], c[4:]]
    g2(VWB0, PA, first=True, fill=fill)
    a.e('s_nop 1')
    g2(None, PBq)
    head(2)
    a.e('s_nop 7'); a.e('s_nop 3')
    a.e('s_waitcnt vmcnt(0)')
    g2_inplace(PA)
    head(3)
    a.e('s_nop 7'); a.e('s_nop 3')
    a.e('s_waitcnt vmcnt(0)')
    g2_inplace(PBq)
    stampc(2)
    a.e('s_lshl_b32 s53, s%d, 2', S_BETA)
    a.e('s_add_u32 s53, s53, s%d', S_MB)
    a.e('s_lshl_b32 s53, s53, 2')
    a.e('s_add_u32 s53, s53, s%d', S_NS)
    a.e('s_lshl_b32 s53, s53, 3')
    a.e('s_lshl_b32 s54, s%d, 1', S_HG)
    a.e('s_add_u32 s54, s54, s%d', S_HH)
    a.e('s_nop 7'); a.e('s_nop 3')
    Tq = 16
    for ih in range(2):
        for nt in range(5):
            for j in range(4):
                a.e('v_cvt_pk_bf16_f32 v%d, v%d, v%d', Tq+20*ih+4*nt+j, OA+16*nt+8*ih+2*j, OA+16*nt+8*ih+2*j+1)
    for ih in range(2):
        a.e('s_lshl_b32 s47, s%d, 1', S_WAVE)
        a.e('s_add_u32 s47, s47, %d', ih)
        a.e('s_add_u32 s47, s47, s53')
        a.e('s_lshl_b32 s47, s47, 3')
        a.e('s_add_u32 s47, s47, s54')
        a.e('s_mul_i32 s47, s47, 5120')
        a.e('s_add_u32 s47, s47, 0x%x', WS_PART)
        for nt in range(5):
            if nt == 4: a.e('s_add_u32 s47, s47, 4096')
            a.e('buffer_store_dwordx4 v[%d:%d], v%d, s[%d:%d], s47 offen offset:%d sc1', Tq+20*ih+4*nt, Tq+20*ih+4*nt+3, PV, SRD_WS, SRD_WS+3, 1024*(nt % 4))
    a.e('s_waitcnt vmcnt(0)')
    stampc(3)
    a.e('s_lshl_b32 s47, s2, 2')
    a.e('s_add_u32 s47, s47, s%d', S_WAVE)
    a.e('s_lshl_b32 s47, s47, 6')
    a.e('s_add_u32 s47, s47, 0x%x', WS_RFLAG)
    a.e('v_mov_b32 v%d, 0', t0)
    a.e('v_mov_b32 v%d, s%d', t1, S_NONCE)
    a.e('s_mov_b64 exec, 1')
    a.e('buffer_store_dword v%d, v%d, s[%d:%d], s47 offen sc1', t1, t0, SRD_WS, SRD_WS+3)
    a.e('s_mov_b64 exec, -1')
    a.e('v_bfe_u32 v%d, v0, 1, 2', t0)
    a.e('v_and_b32 v%d, 1, v0', t1)
    a.e('v_lshl_add_u32 v%d, v%d, 7, v%d', t0, t1, t0)
    a.e('s_lshl_b32 s47, s%d, 2', S_BETA)
    a.e('s_lshl_b32 s48, s%d, 3', S_MB)
    a.e('s_add_u32 s47, s47, s48')
    a.e('s_lshl_b32 s48, s%d, 5', S_NS)
    a.e('s_add_u32 s47, s47, s48')
    a.e('v_add_u32 v%d, s47, v%d', t0, t0)
    a.e('v_lshlrev_b32 v%d, 8, v%d', t0, t0)
    a.e('s_lshr_b32 s48, s54, 1')
    a.e('s_lshl_b32 s48, s48, 6')
    a.e('s_add_u32 s47, s48, 0x%x', WS_RFLAG)
    lab = a.newlabel('pollr')
    a.label(lab)
    a.e('buffer_load_dword v%d, v%d, s[%d:%d], s47 offen sc1', t2, t0, SRD_WS, SRD_WS+3)
    a.e('s_waitcnt vmcnt(0)')
    a.e('v_cmp_ne_u32 vcc, s%d, v%d', S_NONCE, t2)
    a.e('s_add_u32 s63, s63, 64')
    a.e('s_cmp_gt_u32 s63, 600000')
    a.e('s_cbranch_scc1 %s_done', lab)
    a.e('s_nop 2')
    a.e('s_cbranch_vccnz %s', lab)
    a.label(lab + '_done')
    stampc(4)
    a.e('s_add_u32 s47, s53, s54')
    a.e('s_mul_i32 s47, s47, 40960')
    a.e('s_add_u32 s47, s47, 0x%x', WS_PART)
    a.e('s_lshl_b32 s48, s%d, 10', S_WAVE)
    a.e('s_add_u32 s48, s48, s47')
    a.e('s_add_u32 s49, s47, 4096')
    Rq = 16; Rq2 = 48
    for src in range(8):
        a.e('buffer_load_dwordx4 v[%d:%d], v%d, s[%d:%d], s48 offen sc1', Rq+4*src, Rq+4*src+3, PV, SRD_WS, SRD_WS+3)
        a.e('s_add_u32 s48, s48, 5120')
    if cfg.OUT16:
        a.e('s_lshl_b32 s55, s%d, 3', S_WAVE)
        a.e('s_lshl_b32 s56, 0xff, s55')
        a.e('s_mov_b32 s57, s56')
    else:
        a.e('s_lshl_b32 s55, s%d, 4', S_WAVE)
        a.e('s_mov_b64 s[56:57], 0xffff')
        a.e('s_lshl_b64 s[56:57], s[56:57], s55')
    a.e('s_mov_b64 exec, s[56:57]')
    for src in range(8):
        a.e('buffer_load_dwordx4 v[%d:%d], v%d, s[%d:%d], s49 offen sc1', Rq2+4*src, Rq2+4*src+3, PV, SRD_WS, SRD_WS+3)
        a.e('s_add_u32 s49, s49, 5120')
    a.e('s_mov_b64 exec, -1')
    a.e('s_lshl_b32 s47, s%d, 2', S_MB)
    a.e('s_lshr_b32 s48, s54, 1')
    a.e('s_add_u32 s47, s47, s48')
    a.e('s_mul_i32 s47, s47, %d', 32*2560)
    a.e('s_mul_i32 s48, s%d, 1280', S_BETA)
    a.e('s_add_u32 s47, s47, s48')
    a.e('s_mul_i32 s48, s%d, 320', S_NS)
    a.e('s_add_u32 s47, s47, s48')
    a.e('s_and_b32 s48, s54, 1')
    a.e('s_lshl_b32 s48, s48, 5')
    a.e('s_add_u32 s47, s47, s48')
    a.e('v_and_b32 v%d, 31, v0', t0)
    a.e('v_mul_u32_u24 v%d, 2560, v%d', t0, t0)
    a.e('v_lshrrev_b32 v%d, 5, v0', t1)
    a.e('v_lshl_add_u32 v%d, v%d, %d, v%d', t0, t1, 4 if cfg.OUT16 else 3, t0)
    def reduce_store(R, A8, soff, mask=None):
        for src in range(8):
            a.e('s_waitcnt vmcnt(%d)', remaining[0]); remaining[0] -= 1
            for j in range(4):
                s = R+4*src+j
                if src == 0:
                    a.e('v_lshlrev_b32 v%d, 16, v%d', A8+2*j, s)
                    a.e('v_and_b32 v%d, 0xffff0000, v%d', A8+2*j+1, s)
                else:
                    a.e('v_lshlrev_b32 v%d, 16, v%d', t2, s)
                    a.e('v_and_b32 v%d, 0xffff0000, v%d', t3, s)
                    a.e('v_add_f32 v%d, v%d, v%d', A8+2*j, A8+2*j, t2)
                    a.e('v_add_f32 v%d, v%d, v%d', A8+2*j+1, A8+2*j+1, t3)
        for j in range(4):
            a.e('v_cvt_pk_bf16_f32 v%d, v%d, v%d', A8+j, A8+2*j, A8+2*j+1)
        pol = {0: '', 1: ' sc1', 2: ' nt', 3: ' sc0 sc1'}[cfg.OUTPOL]
        if cfg.OUT16:
            a.e('s_mov_b64 exec, -1')
            a.e('s_nop 1')
            a.e('v_permlane32_swap_b32 v%d, v%d', A8, A8+2)
            a.e('v_permlane32_swap_b32 v%d, v%d', A8+1, A8+3)
            if mask: a.e('s_mov_b64 exec, s[%d:%d]', mask, mask+1)
            a.e('buffer_store_dwordx4 v[%d:%d], v%d, s[%d:%d], s%d offen%s', A8, A8+3, t0, SRD_OUT, SRD_OUT+3, soff, pol)
        else:
            a.e('buffer_store_dwordx2 v[%d:%d], v%d, s[%d:%d], s%d offen%s', A8, A8+1, t0, SRD_OUT, SRD_OUT+3, soff, pol)
            a.e('buffer_store_dwordx2 v[%d:%d], v%d, s[%d:%d], s%d offen offset:16%s', A8+2, A8+3, t0, SRD_OUT, SRD_OUT+3, soff, pol)
    remaining = [15]
    a.e('s_lshl_b32 s48, s%d, 6', S_WAVE)
    a.e('s_add_u32 s48, s48, s47')
    a.e('s_add_u32 s49, s47, 256')
    reduce_store(Rq, 80, 48)
    remaining[0] = 7 + (1 if cfg.OUT16 else 2)
    a.e('s_mov_b64 exec, s[56:57]')
    reduce_store(Rq2, 88, 49, mask=56)
    a.e('s_mov_b64 exec, -1')
    if cfg.DIAG:
        a.e('s_waitcnt vmcnt(0)')
        stampc(5)
        a.e('s_waitcnt lgkmcnt(0)')
        a.e('v_mov_b32 v9, 0')
        for i in range(6):
            a.e('v_writelane_b32 v9, s%d, %d', 64+2*i, i)
            a.e('v_writelane_b32 v9, s%d, %d', 80+i, 10+i)
            if i < 3: a.e('v_writelane_b32 v9, s%d, %d', 88+2*i, 20+i)
        a.e('v_writelane_b32 v9, s76, 30'); a.e('v_writelane_b32 v9, s94, 31')
        for k in range(7):
            a.e('v_readlane_b32 s100, v13, %d', k); a.e('s_nop 3'); a.e('v_writelane_b32 v9, s100, %d', 52+k)
        lab = a.newlabel('nost')
        a.e('s_cmp_lg_u32 s%d, 0', S_WAVE)
        a.e('s_cbranch_scc1 %s', lab)
        stamp_store(a, 9, 10, region=1)
        a.label(lab)
    a.e('s_endpgm')
    for (lab, need) in slow:
        a.label(lab + '_slow')
        spin_flags(a, 0, need, VZ, VFL, 59)
        a.e('s_branch %s', lab)
    if cfg.SLOWCALL:
        a.label('common_slow')
        if cfg.DIAG:
            a.e('s_memrealtime s[100:101]'); a.e('s_waitcnt lgkmcnt(0)'); a.e('s_sub_u32 s99, s99, s100'); a.e('s_add_u32 s98, s98, 1')
        a.label('common_slow2')
        a.e('ds_read_b32 v%d, v%d', VF1, VFA)
        a.e('s_waitcnt lgkmcnt(0)')
        a.e('v_cmp_gt_u32 vcc, s61, v%d', VF1)
        a.e('s_add_u32 s63, s63, 1')
        a.e('s_cmp_gt_u32 s63, 300000')
        a.e('s_cbranch_scc1 common_ret')
        a.e('s_nop 1')
        a.e('s_cbranch_vccnz common_slow2')
        a.label('common_ret')
        if cfg.DIAG:
            a.e('s_memrealtime s[100:101]'); a.e('s_waitcnt lgkmcnt(0)'); a.e('s_add_u32 s99, s99, s100')
        a.e('s_add_u32 s56, s56, 4')
        a.e('s_addc_u32 s57, s57, 0')
        a.e('s_setpc_b64 s[56:57]')
    lab = slow_nonce
    a.label(lab)
    a.e('buffer_load_dword v%d, v%d, s[%d:%d], 0 offen sc1', t1, t0, SRD_DBG, SRD_DBG+3)
    a.e('s_waitcnt vmcnt(0)')
    a.e('v_readfirstlane_b32 s%d, v%d', S_NONCE, t1)
    a.e('s_add_u32 s63, s63, 64')
    a.e('s_cmp_gt_u32 s63, 300000')
    a.e('s_cbranch_scc1 %s_ok', lab)
    a.e('s_cmp_lg_u32 s%d, 0', S_NONCE)
    a.e('s_cbranch_scc0 %s', lab)
    a.e('s_branch %s_ok', lab)

def gen_loaders(a, T):
    XE_, XO, W0, VE, VO, WO0 = 2, 3, 4, 8, 9, 10
    LN = 14
    VZ = 22
    VQ, VT = 36, 44
    DUM = 48
    t0, t1, t2, t3 = 32, 33, 34, 35
    S_TMP, S_FULLA, S_LI, S_G = 56, 57, 58, 62
    S_GX, S_GW, S_GV, S_GO, S_GK = 52, 53, 54, 55, 64
    S_PW, S_PK, S_PH, S_PHS, S_PX = 68, 69, 70, 71, 76
    SRD_PH, SRD_T = 72, 84
    S_XI, S_WI, S_XS, S_WS, S_CNT, S_NEED = 77, 78, 79, 80, 81, 82
    S_WSA = 83; S_XSA = 94
    S_LXO, S_LWA, S_LWB = 65, 66, 67
    nt_pf = ' nt' if cfg.NT_PF else ''
    nt_r = ' nt' if cfg.NT else ''
    a.e('s_mov_b32 s63, 0')
    if cfg.LPRIO: a.e('s_setprio %d', cfg.LPRIO)
    a.e('s_sub_u32 s%d, s%d, 4', S_LI, S_WAVE)
    if cfg.DIAG: a.e('v_mov_b32 v30, 0')
    a.e('v_lshlrev_b32 v%d, 4, v0', LN)
    a.e('v_mov_b32 v%d, 0x%x', VZ, FLAG_BASE)
    lab = a.newlabel('init')
    a.e('s_cmp_lg_u32 s%d, 3', S_LI)
    a.e('s_cbranch_scc1 %s', lab)
    a.e('v_lshlrev_b32 v%d, 2, v0', t0)
    a.e('v_and_b32 v%d, 63, v%d', t0, t0)
    a.e('v_add_u32 v%d, v%d, v%d', t0, t0, VZ)
    a.e('v_mov_b32 v%d, 0', t1)
    a.e('ds_write_b32 v%d, v%d', t0, t1)
    a.label(lab)
    XPA = 15
    a.e('v_lshrrev_b32 v%d, 5, v0', t0)
    a.e('v_mul_u32_u24 v%d, 1280, v%d', t0, t0)
    a.e('v_and_b32 v%d, 31, v0', t1)
    a.e('v_lshl_add_u32 v%d, v%d, 4, v%d', XPA, t1, t0)
    a.e('v_lshrrev_b32 v%d, 3, v0', t0)
    a.e('v_and_b32 v%d, 7, v0', t1)
    a.e('v_lshrrev_b32 v%d, 4, v0', t2)
    a.e('v_xor_b32 v%d, v%d, v%d', t1, t1, t2)
    a.e('v_mul_u32_u24 v%d, 1280, v%d', t3, t0)
    a.e('v_lshl_add_u32 v%d, v%d, 4, v%d', XE_, t1, t3)
    a.e('v_xor_b32 v%d, 64, v%d', XO, XE_)
    a.e('v_mul_u32_u24 v%d, 384, v%d', t3, t0)
    a.e('v_lshl_add_u32 v%d, v%d, 4, v%d', VE, t1, t3)
    a.e('v_xor_b32 v%d, 64, v%d', VO, VE)
    for b in range(3):
        a.e('v_add_u32 v%d, %d, v0', t0, 64*b)
        div_const(a, t1, t0, 24, 191)
        a.e('v_mul_u32_u24 v%d, 24, v%d', t2, t1)
        a.e('v_sub_u32 v%d, v%d, v%d', t2, t0, t2)
        a.e('v_bfe_u32 v%d, v%d, 1, 1', t3, t1)
        a.e('v_lshlrev_b32 v%d, 2, v%d', t3, t3)
        a.e('v_xor_b32 v%d, v%d, v%d', t3, t3, t2)
        a.e('v_lshlrev_b32 v%d, 4, v%d', t3, t3)
        a.e('v_mul_u32_u24 v%d, 0x3000, v%d', W0+b, t1)
        a.e('v_add_u32 v%d, v%d, v%d', W0+b, W0+b, t3)
    a.e('s_lshl_b32 s%d, s%d, 7', S_GX, S_MB)
    a.e('s_lshl_b32 s%d, s%d, 5', S_TMP, S_LI)
    a.e('s_add_u32 s%d, s%d, s%d', S_GX, S_GX, S_TMP)
    a.e('s_mul_i32 s%d, s%d, 1280', S_GX, S_GX)
    a.e('s_mul_i32 s%d, s%d, 384', S_GW, S_H)
    a.e('s_mul_i32 s%d, s%d, %d', S_TMP, S_LI, 8*12288)
    a.e('s_add_u32 s%d, s%d, s%d', S_GW, S_GW, S_TMP)
    S_RC, S_RH = 96, 97
    if cfg.ROTA:
        a.e('s_mul_i32 s%d, s%d, 5', S_RC, S_MB)
        a.e('s_add_u32 s%d, s%d, 1', S_RC, S_RC)
        a.e('s_lshr_b32 s%d, s%d, 1', S_RC, S_RC)
        a.e('s_add_u32 s%d, s%d, s%d', S_RC, S_RC, S_HL)
        a.e('s_sub_u32 s%d, s%d, 10', S_TMP, S_RC)
        a.e('s_cmp_ge_u32 s%d, 10', S_RC)
        a.e('s_cselect_b32 s%d, s%d, s%d', S_RC, S_TMP, S_RC)
        a.e('s_lshl_b32 s%d, s%d, 7', S_TMP, S_RC)
        a.e('s_add_u32 s%d, s%d, s%d', S_GX, S_GX, S_TMP)
        a.e('s_mul_i32 s%d, s%d, 786432', S_TMP, S_RC)
        a.e('s_add_u32 s%d, s%d, s%d', S_GW, S_GW, S_TMP)
    a.e('s_lshl_b32 s%d, s%d, 12', S_LXO, S_LI)
    a.e('s_add_u32 s%d, s%d, %d', S_LXO, S_LXO, XB)
    a.e('s_mul_i32 s%d, s%d, 3072', S_LWA, S_LI)
    a.e('s_add_u32 s%d, s%d, %d', S_LWA, S_LWA, WB)
    if cfg.WO10:
        a.e('s_mul_i32 s101, s%d, 3', S_LI)
        a.e('s_cmp_eq_u32 s%d, 3', S_LI)
        a.e('s_cselect_b32 s101, 8, s101')
        a.e('s_lshl_b32 s%d, s101, 10', S_LWB)
    else:
        a.e('s_mul_i32 s%d, s%d, 2560', S_LWB, S_LI)
    a.e('s_add_u32 s%d, s%d, %d', S_LWB, S_LWB, WB)
    a.e('s_lshl_b32 s%d, s%d, 2', S_TMP, S_LI)
    a.e('s_add_u32 s%d, s%d, 0x%x', S_FULLA, S_TMP, F_FULL)
    a.e('v_mov_b32 v%d, 0', VT+1)
    a.e('s_getpc_b64 s[%d:%d]', SRD_T, SRD_T+1)
    a.label('pc_here')
    a.e('s_add_u32 s%d, s%d, seqtab-pc_here', SRD_T, SRD_T)
    a.e('s_addc_u32 s%d, s%d, 0', SRD_T+1, SRD_T+1)
    a.e('s_mov_b32 s%d, 512', SRD_T+2)
    a.e('s_mov_b32 s%d, 0x20000', SRD_T+3)
    for r in (S_G, S_XI, S_WI, S_WSA, S_XSA): a.e('s_mov_b32 s%d, 0', r)
    a.e('s_lshl_b32 s%d, s%d, 7', S_PX, S_MB)
    a.e('s_lshl_b32 s%d, s%d, 4', S_TMP, S_HL)
    a.e('s_add_u32 s%d, s%d, s%d', S_PX, S_PX, S_TMP)
    a.e('s_mul_i32 s%d, s%d, 1280', S_PX, S_PX)
    a.e('s_mul_i32 s%d, s%d, 5120', S_TMP, S_LI)
    a.e('s_add_u32 s%d, s%d, s%d', S_PX, S_PX, S_TMP)
    a.e('s_lshl_b32 s%d, s%d, 1', S_PW, S_J)
    a.e('s_lshr_b32 s%d, s%d, 1', S_TMP, S_LI)
    a.e('s_lshl_b32 s%d, s%d, 6', S_TMP, S_TMP)
    a.e('s_add_u32 s%d, s%d, s%d', S_PW, S_PW, S_TMP)
    a.e('s_and_b32 s%d, s%d, 1', S_TMP, S_LI)
    a.e('s_add_u32 s%d, s%d, s%d', S_PW, S_PW, S_TMP)
    a.e('s_add_u32 s%d, s%d, 128', S_PW, S_PW)
    a.e('s_mul_i32 s%d, s%d, 12288', S_PW, S_PW)
    a.e('s_mul_i32 s%d, s%d, 3072', S_TMP, S_HG)
    a.e('s_add_u32 s%d, s%d, s%d', S_PW, S_PW, S_TMP)
    S_FREEC = 88
    a.e('s_mov_b32 s%d, 0', S_FREEC)
    a.e('s_waitcnt lgkmcnt(0)')
    a.e('s_barrier')
    def pf(srd, soff, n, off0=0):
        for i in range(n):
            if cfg.NOLOAD or not cfg.PF_ON: continue
            a.e('buffer_load_dwordx4 v[%d:%d], v%d, s[%d:%d], s%d offen offset:%d%s', DUM, DUM+3, LN, srd, srd+3, soff, off0 + 1024*i, nt_pf)
    def late_setup():
        lab = a.newlabel('nn')
        a.e('s_cmp_lg_u32 s%d, 3', S_LI)
        a.e('s_cbranch_scc1 %s', lab)
        a.e('s_cmp_lg_u32 s2, 0')
        a.e('s_cbranch_scc1 %s', lab)
        a.e('s_memrealtime s[60:61]')
        a.e('s_waitcnt lgkmcnt(0)')
        a.e('s_or_b32 s60, s60, 1')
        a.e('v_mov_b32 v%d, s60', t1)
        a.e('v_mov_b32 v%d, 0', t0)
        a.e('s_mov_b64 exec, 1')
        a.e('buffer_store_dword v%d, v%d, s[%d:%d], 0 offen sc1', t1, t0, SRD_DBG, SRD_DBG+3)
        a.e('s_mov_b64 exec, -1')
        a.label(lab)
        for b in range(3):
            a.e('v_add_u32 v%d, %d, v0', t0, 64*b)
            if cfg.WO10:
                a.e('s_lshl_b32 s%d, s101, 6', S_TMP)
                a.e('v_add_u32 v%d, s%d, v%d', t0, S_TMP, t0)
            div_const(a, t1, t0, 20, 703 if cfg.WO10 else 191)
            a.e('v_mul_u32_u24 v%d, 20, v%d', t2, t1)
            a.e('v_sub_u32 v%d, v%d, v%d', t2, t0, t2)
            a.e('v_mul_u32_u24 v%d, 1280, v%d', t3, t1)
            a.e('v_lshl_add_u32 v%d, v%d, 4, v%d', WO0+b, t2, t3)
        a.e('s_lshl_b32 s%d, s%d, 2', S_GK, S_MB)
        a.e('s_add_u32 s%d, s%d, s%d', S_GK, S_GK, S_LI)
        a.e('s_lshl_b32 s%d, s%d, 5', S_GK, S_GK)
        a.e('s_lshl_b32 s%d, s%d, 3', S_TMP, S_HG)
        a.e('s_add_u32 s%d, s%d, s%d', S_GV, S_GK, S_TMP)
        a.e('s_lshl_b32 s%d, s%d, 2', S_TMP, S_HH)
        a.e('s_add_u32 s%d, s%d, s%d', S_GV, S_GV, S_TMP)
        a.e('s_mul_i32 s%d, s%d, 12288', S_GV, S_GV)
        a.e('s_add_u32 s%d, s%d, s%d', S_GK, S_GK, S_H)
        a.e('s_mul_i32 s%d, s%d, 12288', S_GK, S_GK)
        a.e('s_mov_b32 s%d, s%d', S_PK, S_GK)
        a.e('s_lshl_b32 s%d, s%d, 3', S_GO, S_HG)
        a.e('s_lshl_b32 s%d, s%d, 2', S_TMP, S_HH)
        a.e('s_add_u32 s%d, s%d, s%d', S_GO, S_GO, S_TMP)
        a.e('s_mul_i32 s%d, s%d, 192', S_GO, S_GO)
        if not cfg.WO10:
            a.e('s_lshl_b32 s%d, s%d, 3', S_TMP, S_LI)
            a.e('s_add_u32 s%d, s%d, s%d', S_GO, S_GO, S_TMP)
        a.e('s_mul_i32 s%d, s%d, 1280', S_GO, S_GO)
        a.e('s_mul_i32 s%d, s%d, 320', S_TMP, S_NS)
        a.e('s_add_u32 s%d, s%d, s%d', S_GO, S_GO, S_TMP)
        if cfg.ROTB:
            a.e('s_add_u32 s%d, s%d, s%d', S_RH, S_MB, S_NS)
            a.e('s_and_b32 s%d, s%d, 3', S_RH, S_RH)
            a.e('s_mul_i32 s%d, s%d, 12288', S_TMP, S_RH)
            a.e('s_add_u32 s%d, s%d, s%d', S_GV, S_GV, S_TMP)
            a.e('s_mul_i32 s%d, s%d, %d', S_TMP, S_RH, 192*1280)
            a.e('s_add_u32 s%d, s%d, s%d', S_GO, S_GO, S_TMP)
        labv = a.newlabel('phv'); labe = a.newlabel('phe')
        a.e('s_cmp_ge_u32 s%d, 2', S_LI)
        a.e('s_cbranch_scc0 %s', labv)
        for i in range(4): a.e('s_mov_b32 s%d, s%d', SRD_PH+i, SRD_WO+i)
        a.e('s_mul_i32 s%d, s%d, %d', S_PH, S_HG, 8*245760)
        a.e('s_mul_i32 s%d, s%d, 7680', S_TMP, S_J)
        a.e('s_add_u32 s%d, s%d, s%d', S_PH, S_PH, S_TMP)
        a.e('s_sub_u32 s%d, s%d, 2', S_TMP, S_LI)
        a.e('s_mul_i32 s%d, s%d, 3584', S_TMP, S_TMP)
        a.e('s_add_u32 s%d, s%d, s%d', S_PH, S_PH, S_TMP)
        a.e('s_mov_b32 s%d, 245760', S_PHS)
        a.e('s_branch %s', labe)
        a.label(labv)
        for i in range(4): a.e('s_mov_b32 s%d, s%d', SRD_PH+i, SRD_V+i)
        a.e('s_lshl_b32 s%d, s%d, 2', S_PH, S_MB)
        a.e('s_lshr_b32 s%d, s%d, 1', S_TMP, S_HL)
        a.e('s_add_u32 s%d, s%d, s%d', S_PH, S_PH, S_TMP)
        a.e('s_lshl_b32 s%d, s%d, 5', S_PH, S_PH)
        a.e('s_lshl_b32 s%d, s%d, 3', S_TMP, S_HG)
        a.e('s_add_u32 s%d, s%d, s%d', S_PH, S_PH, S_TMP)
        a.e('s_mul_i32 s%d, s%d, 12288', S_PH, S_PH)
        a.e('s_and_b32 s%d, s%d, 1', S_TMP, S_HL)
        a.e('s_mul_i32 s%d, s%d, %d', S_TMP, S_TMP, 16*384)
        a.e('s_add_u32 s%d, s%d, s%d', S_PH, S_PH, S_TMP)
        a.e('s_lshl_b32 s%d, s%d, 11', S_TMP, S_LI)
        a.e('s_add_u32 s%d, s%d, s%d', S_PH, S_PH, S_TMP)
        a.e('s_mov_b32 s%d, 12288', S_PHS)
        a.label(labe)
        a.e('s_mov_b32 s100, 0')
        gstate['late'] = True
    def pfh(hq):
        a.e('s_mul_i32 s%d, s%d, %d', S_TMP, S_PHS, hq)
        a.e('s_add_u32 s%d, s%d, s%d', S_TMP, S_TMP, S_PH)
        pf(SRD_PH, S_TMP, 4)
        a.e('s_lshl_b32 s%d, s%d, 2', S_NEED, S_PHS)
        a.e('s_add_u32 s%d, s%d, s%d', S_TMP, S_TMP, S_NEED)
        pf(SRD_PH, S_TMP, 4)
    def need_calc(ring):
        NX, NW = cfg.NX, cfg.NW
        if ring == 'W':
            a.e('s_sub_i32 s%d, s%d, %d', S_NEED, S_WI, NW-1)
            a.e('s_add_i32 s%d, s%d, 3', S_TMP, S_NEED)
            a.e('s_cmp_ge_i32 s%d, %d', S_WI, 20+NW)
            a.e('s_cselect_b32 s%d, s%d, s%d', S_NEED, S_TMP, S_NEED)
        else:
            a.e('s_sub_i32 s%d, s%d, %d', S_TMP, S_XI, NX)
            a.e('s_lshl_b32 s%d, s%d, 1', S_NEED, S_TMP)
            a.e('s_add_i32 s%d, s%d, 2', S_NEED, S_NEED)
            a.e('s_add_i32 s89, s%d, 11', S_TMP)
            a.e('s_cmp_ge_i32 s%d, 10', S_TMP)
            a.e('s_cselect_b32 s%d, s89, s%d', S_NEED, S_NEED)
            a.e('s_lshl_b32 s89, s%d, 1', S_TMP)
            a.e('s_sub_i32 s89, s89, 1')
            a.e('s_cmp_ge_i32 s%d, 13', S_TMP)
            a.e('s_cselect_b32 s%d, s89, s%d', S_NEED, S_NEED)
    gstate = {'X': 0, 'W': 0, 'done': 0, 'late': False}
    def gate(ring):
        if cfg.BARFREE:
            idx = gstate[ring]; gstate[ring] += 1
            need = (T['xneed'] if ring == 'X' else T['wneed'])[idx]
            if need > 0:
                k = next(i for i, t in enumerate(EVENTS) if t >= need) + 1
                while gstate['done'] < k:
                    a.e('s_barrier'); gstate['done'] += 1
            return
        if cfg.NOGATE: return
        lab = a.newlabel('gate')
        need_calc(ring)
        a.e('s_cmp_ge_i32 s%d, s%d', S_FREEC, S_NEED)
        a.e('s_cbranch_scc1 %s_ok', lab)
        a.label(lab)
        a.e('ds_read_b128 v[%d:%d], v%d offset:16', VQ, VQ+3, VZ)
        a.e('s_waitcnt lgkmcnt(0)')
        a.e('v_min3_u32 v%d, v%d, v%d, v%d', VQ, VQ, VQ+1, VQ+2)
        a.e('v_min_u32 v%d, v%d, v%d', VQ, VQ, VQ+3)
        a.e('s_nop 0')
        a.e('v_readfirstlane_b32 s%d, v%d', S_FREEC, VQ)
        a.e('s_add_u32 s63, s63, 1')
        a.e('s_cmp_ge_i32 s%d, s%d', S_FREEC, S_NEED)
        a.e('s_cbranch_scc1 %s_ok', lab)
        if cfg.OPF and gstate['late']:
            a.e('s_cmp_ge_u32 s100, 32')
            a.e('s_cbranch_scc1 %s_np', lab)
            a.e('s_lshr_b32 s98, s100, 3')
            a.e('s_mul_i32 s99, s98, %d', cfg.OPF_STEP)
            a.e('s_add_u32 s99, s99, %d', cfg.OPF_T0)
            a.e('s_cmp_lt_i32 s%d, s99', S_FREEC)
            a.e('s_cbranch_scc1 %s_np', lab)
            a.e('s_bfe_u32 s99, s100, 0x10002')
            a.e('s_lshl_b32 s99, s99, 2')
            a.e('s_add_u32 s98, s98, s99')
            a.e('s_mul_i32 s98, s98, s%d', S_PHS)
            a.e('s_add_u32 s98, s98, s%d', S_PH)
            a.e('s_and_b32 s99, s100, 3')
            a.e('s_lshl_b32 s99, s99, 10')
            a.e('s_add_u32 s98, s98, s99')
            a.e('s_waitcnt vmcnt(%d)', cfg.VMCAP)
            a.e('buffer_load_dwordx4 v[%d:%d], v%d, s[%d:%d], s98 offen', DUM, DUM+3, LN, SRD_PH, SRD_PH+3)
            a.e('s_add_u32 s100, s100, 1')
            a.label(lab + '_np')
        if cfg.GSLEEP: a.e('s_sleep %d', cfg.GSLEEP)
        a.e('s_cmp_gt_u32 s63, 300000')
        a.e('s_cbranch_scc0 %s', lab)
        a.label(lab + '_ok')
    def flagdma(stamp_it=False):
        if cfg.NOFLAG:
            a.e('s_add_u32 s%d, s%d, 1', S_G, S_G); return
        a.e('s_lshl_b32 s%d, s%d, 2', S_TMP, S_G)
        a.e('s_mov_b32 m0, s%d', S_FULLA)
        a.e('s_mov_b64 exec, 1')
        a.e('buffer_load_dword v%d, s[%d:%d], s%d offen lds', VT+1, SRD_T, SRD_T+3, S_TMP)
        a.e('s_mov_b64 exec, -1')
        a.e('s_add_u32 s%d, s%d, 1', S_G, S_G)
    def dma(voff, srd, soff_s, gconst, lbase_s, lconst, half=False):
        if cfg.NOLOAD: return
        if cfg.DUMMYLDS: a.e('s_mov_b32 m0, 0x%x', 152576 + (lconst % 4096))
        else: a.e('s_add_u32 m0, s%d, 0x%x', lbase_s, lconst)
        if cfg.LINV: voff = LN
        a.e('s_add_u32 s%d, s%d, 0x%x', S_TMP, soff_s, gconst)
        if half: a.e('s_mov_b32 exec_hi, 0')
        a.e('buffer_load_dwordx4 v%d, s[%d:%d], s%d offen%s lds', voff, srd, srd+3, S_TMP, nt_r)
        if half: a.e('s_mov_b32 exec_hi, -1')
    def xunit(ve, vo, srd, sg, rowstride, flag=False):
        gate('X')
        a.e('s_waitcnt vmcnt(%d)', cfg.VMCAP)
        a.e('s_lshl_b32 s%d, s%d, 14', S_XS, S_XSA)
        a.e('s_add_u32 s%d, s%d, s%d', S_XS, S_XS, S_LXO)
        a.e('s_add_u32 s%d, s%d, 1', S_XSA, S_XSA)
        a.e('s_cmp_eq_u32 s%d, %d', S_XSA, cfg.NX)
        a.e('s_cselect_b32 s%d, 0, s%d', S_XSA, S_XSA)
        for q in range(4):
            dma(ve if q % 2 == 0 else vo, srd, sg, q*8*rowstride, S_XS, q*1024)
        if flag: flagdma()
        else: a.e('s_add_u32 s%d, s%d, 1', S_G, S_G)
        a.e('s_add_u32 s%d, s%d, 1', S_XI, S_XI)
    def wunit(kind, flag=True):
        gate('W')
        a.e('s_mul_i32 s%d, s%d, %d', S_WS, S_WSA, WSZ)
        a.e('s_add_u32 s%d, s%d, s%d', S_WS, S_WS, S_LWA if kind == 'A' else S_LWB)
        if kind == 'A':
            for b in range(3): dma(W0+b, SRD_WQ, S_GW, 0, S_WS, b*1024)
            if not cfg.SAMEADDR: a.e('s_add_u32 s%d, s%d, %d', S_GW, S_GW, 32*12288)
        else:
            if cfg.WO10:
                dma(WO0, SRD_WO, S_GO, 0, S_WS, 0); dma(WO0+1, SRD_WO, S_GO, 0, S_WS, 1024)
                lab = a.newlabel('w3')
                a.e('s_cmp_ge_u32 s%d, 2', S_LI)
                a.e('s_cbranch_scc1 %s', lab)
                dma(WO0+2, SRD_WO, S_GO, 0, S_WS, 2048)
                a.label(lab)
            else:
                for b in range(3): dma(WO0+b, SRD_WO, S_GO, 0, S_WS, b*1024, half=(b == 2))
            if not cfg.SAMEADDR: a.e('s_add_u32 s%d, s%d, %d', S_GO, S_GO, 32*1280)
        if flag: flagdma()
        else: a.e('s_add_u32 s%d, s%d, 1', S_G, S_G)
        a.e('s_add_u32 s%d, s%d, 1', S_WI, S_WI)
        a.e('s_add_u32 s%d, s%d, 1', S_WSA, S_WSA)
        a.e('s_cmp_eq_u32 s%d, %d', S_WSA, cfg.NW)
        a.e('s_cselect_b32 s%d, 0, s%d', S_WSA, S_WSA)
    def stampx():
        if cfg.DIAG:
            a.e('s_memrealtime s[60:61]')
            a.e('s_mov_b32 m0, s%d', S_XI)
            a.e('s_waitcnt lgkmcnt(0)')
            a.e('v_writelane_b32 v30, s60, m0')
    def chunkA(firstflag=False):
        xunit(XE_, XO, SRD_X, S_GX, 1280)
        if not cfg.SAMEADDR: a.e('s_add_u32 s%d, s%d, 128', S_GX, S_GX)
        wunit('A', firstflag); wunit('A')
        if cfg.ROTA:
            a.e('s_add_u32 s%d, s%d, 1', S_RC, S_RC)
            a.e('s_cmp_eq_u32 s%d, 10', S_RC)
            a.e('s_cselect_b32 s98, 1280, 0')
            a.e('s_cselect_b32 s99, %d, 0', 10*786432)
            a.e('s_cselect_b32 s%d, 0, s%d', S_RC, S_RC)
            a.e('s_sub_u32 s%d, s%d, s98', S_GX, S_GX)
            a.e('s_sub_u32 s%d, s%d, s99', S_GW, S_GW)
        stampx()
    def thirdB(th):
        xunit(VE, VO, SRD_V, S_GV, 384)
        if not cfg.SAMEADDR: a.e('s_add_u32 s%d, s%d, %d', S_GV, S_GV, 128 if th < 2 else 12288-256)
        wunit('B', False); wunit('B')
        if cfg.ROTB and th == 2:
            a.e('s_add_u32 s%d, s%d, 1', S_RH, S_RH)
            a.e('s_cmp_eq_u32 s%d, 4', S_RH)
            a.e('s_cselect_b32 s98, %d, 0', 4*12288)
            a.e('s_cselect_b32 s99, %d, 0', 4*192*1280)
            a.e('s_cselect_b32 s%d, 0, s%d', S_RH, S_RH)
            a.e('s_sub_u32 s%d, s%d, s98', S_GV, S_GV)
            a.e('s_sub_u32 s%d, s%d, s99', S_GO, S_GO)
        stampx()
    S_PHASE, S_PW0 = 90+2, 90+3
    NPH = cfg.NPHASE
    def pf_wq(p):
        if p >= 1: a.e('s_add_u32 s%d, s%d, %d', S_TMP, S_PW, (p-1)*2*786432)
        else: a.e('s_sub_u32 s%d, s%d, %d', S_TMP, S_PW, 2*786432)
        pf(SRD_WQ, S_TMP, 3)
    def pf_head(hd):
        a.e('s_mul_i32 s%d, s%d, %d', S_TMP, S_PHS, hd)
        a.e('s_add_u32 s%d, s%d, s%d', S_TMP, S_TMP, S_PH)
        pf(SRD_PH, S_TMP, 4)
    bursts = cfg.BURSTS
    def maybe_burst(slot):
        for (bs, items) in bursts:
            for ph in range(NPH):
                if bs + ph == slot:
                    lab = a.newlabel('nb')
                    if NPH > 1:
                        a.e('s_cmp_eq_u32 s%d, %d', S_PHASE, ph)
                        a.e('s_cbranch_scc0 %s', lab)
                    if cfg.DIAG3:
                        a.e('s_waitcnt vmcnt(0)')
                        a.e('s_memrealtime s[60:61]'); a.e('s_waitcnt lgkmcnt(0)'); a.e('s_mov_b32 s95, s60')
                    for it in items:
                        if it[0] == 'w': pf_wq(it[1])
                        elif it[0] == 'h': pf_head(it[1])
                        elif it[0] == 'x':
                            pf(SRD_X, S_PX, 4)
                            a.e('s_add_u32 s%d, s%d, 4096', S_TMP, S_PX)
                            pf(SRD_X, S_TMP, 1)
                        elif it[0] == 'k':
                            a.e('s_add_u32 s%d, s%d, %d', S_TMP, S_PK, it[1]*4096)
                            pf(SRD_K, S_TMP, 4)
                    if cfg.DIAG3:
                        a.e('s_waitcnt vmcnt(0)')
                        a.e('s_memrealtime s[60:61]'); a.e('s_waitcnt lgkmcnt(0)'); a.e('s_sub_u32 s60, s60, s95')
                        a.e('s_add_u32 s60, s60, 1')
                        a.e('v_writelane_b32 v30, s60, %d', 52 + bursts.index((bs, items)))
                    a.label(lab)
    if cfg.START == 0:
        chunkA(cfg.FIRST2)
        if cfg.INITPF:
            pf(SRD_X, S_PX, 4)
            a.e('s_add_u32 s%d, s%d, 4096', S_TMP, S_PX)
            pf(SRD_X, S_TMP, 1)
            pf_wq(1)
        late_setup()
    else:
        pf_wq(0); pf_wq(1)
        if cfg.PF_ON and not cfg.NOLOAD:
            a.e('s_mul_i32 s%d, s%d, 5120', S_TMP, S_LI)
            a.e('s_sub_u32 s%d, s%d, s%d', S_NEED, S_PX, S_TMP)
            a.e('s_mul_i32 s%d, s%d, %d', S_TMP, S_LI, 4*1280)
            a.e('s_add_u32 s%d, s%d, s%d', S_TMP, S_TMP, S_NEED)
            for i in range(2):
                a.e('buffer_load_dwordx4 v[%d:%d], v%d, s[%d:%d], s%d offen offset:%d%s', DUM, DUM+3, XPA, SRD_X, SRD_X+3, S_TMP, 2560*i, nt_pf)
        chunkA()
        late_setup()
    if NPH == 3:
        a.e('s_mul_i32 s%d, s%d, 11', S_PHASE, S_J)
        a.e('s_lshr_b32 s%d, s%d, 5', S_PHASE, S_PHASE)
        a.e('s_mul_i32 s%d, s%d, 3', S_PHASE, S_PHASE)
        a.e('s_sub_u32 s%d, s%d, s%d', S_PHASE, S_J, S_PHASE)
    else:
        a.e('s_and_b32 s%d, s%d, %d', S_PHASE, S_J, NPH-1)
    if cfg.DIAG:
        stamp(a, 0)
        a.e('s_memtime s[60:61]')
        a.e('s_waitcnt lgkmcnt(0)')
        a.e('v_writelane_b32 v30, s60, 50')
    for slot in range(1, 23):
        maybe_burst(slot)
        if slot < 10: chunkA()
        elif slot == 10:
            for th in range(3):
                xunit(VE, VO, SRD_K, S_GK, 384, flag=True)
                if not cfg.SAMEADDR: a.e('s_add_u32 s%d, s%d, 128', S_GK, S_GK)
                stampx()
        else: thirdB((slot - 11) % 3)
    a.e('s_waitcnt vmcnt(0)')
    if cfg.DIAG:
        lab = a.newlabel('dge')
        a.e('s_cmp_lg_u32 s%d, 0', S_LI)
        a.e('s_cbranch_scc1 %s', lab)
        stamp(a, 40)
        a.e('v_writelane_b32 v30, s90, 41')
        a.e('s_memtime s[60:61]')
        a.e('s_waitcnt lgkmcnt(0)')
        a.e('v_writelane_b32 v30, s60, 51')
        a.e('s_getreg_b32 s60, hwreg(HW_REG_XCC_ID)')
        a.e('s_add_u32 s60, s60, 100')
        a.e('v_writelane_b32 v30, s60, 63')
        stamp_store(a)
        a.label(lab)
    a.e('s_waitcnt lgkmcnt(0)')
    a.e('s_endpgm')

def main(outpath):
    layout()
    a = Asm()
    T = tables()
    hdr = HEADER + '; @launch grid=(256,1,1) block=(512,1,1) lds=%d\n' % LDS_TOTAL
    hdr += """;
; One fused kernel, 256 workgroups (one per CU), 8 waves each: waves 0-3 compute (MFMA), waves 4-7 stream
; operand tiles global -> LDS (LDS-DMA) through two LDS rings (X: 4 x 16 KiB, W: 7 x 12 KiB).
;   stage A  (head 8hg+hl, batches 4mb..4mb+3): q^T = wq_h^T x^T, S^T = K q^T, softmax (true row max), P (bf16) -> ws
;   stage B  (cols 160*(hl&3).., heads 8hg+4*(hl>>2)..+3): VW = V wo_h, out^T += VW^T P^T  (== (P V) wo, re-associated)
"""
    a.raw(hdr + '.amdgcn_target "amdgcn-amd-amdhsa--gfx950"\n.text')
    kernel_begin(a, KNAME)
    prologue(a, 'kend')
    a.e('s_cmp_ge_u32 s%d, 4', S_WAVE)
    a.e('s_cbranch_scc0 computew')
    ac = Asm(); ac.nlabel = 100000
    gen_compute(ac, T)
    gen_loaders(a, T)
    a.label('computew')
    a.lines += ac.lines
    a.label('kend')
    a.e('s_endpgm')
    a.raw('.p2align 8')
    a.label('seqtab')
    for i in range(128): a.raw('    .long %d' % (i+1))
    a.raw('.section .rodata,"a"\n.p2align 6')
    a.raw(kernel_desc(KNAME, 256))
    open(outpath, 'w').write(a.text())

if __name__ == '__main__':
    for k, v in os.environ.items():
        if k.startswith('CFG_'):
            name = k[4:]
            cur = getattr(cfg, name)
            setattr(cfg, name, (v not in ('0', 'False', '')) if isinstance(cur, bool) else int(v))
    BSETS = {
      0: [(1, [('w', 2), ('w', 3)]), (3, [('w', 4), ('h', 0)]), (6, [('h', 4), ('h', 1)]), (9, [('h', 5), ('h', 2)]), (12, [('h', 6), ('h', 3)]), (15, [('h', 7)])],
      1: [(1, [('w', 2)]), (2, [('w', 3)]), (4, [('w', 4)]), (7, [('h', 0), ('h', 4)]), (11, [('h', 1), ('h', 5)]), (14, [('h', 2), ('h', 6)]), (17, [('h', 3), ('h', 7)])],
      3: [(1, [('x',), ('w', 2)]), (3, [('w', 3), ('w', 4)]), (6, [('h', 0), ('h', 4)]), (11, [('h', 1), ('h', 5)]), (14, [('h', 2), ('h', 6)]), (17, [('h', 3), ('h', 7)])],
      4: [(1, [('x',), ('w', 2)]), (3, [('w', 3), ('w', 4)]), (5, [('k', 0), ('k', 1)]), (7, [('k', 2), ('h', 0)]), (9, [('h', 4), ('h', 1)]), (12, [('h', 5), ('h', 2)]), (15, [('h', 6), ('h', 3)]), (18, [('h', 7)])],
      5: [(1, [('x',), ('w', 2), ('w', 3)]), (4, [('w', 4), ('k', 0)]), (6, [('k', 1), ('k', 2)]), (8, [('h', 0), ('h', 4)]), (11, [('h', 1), ('h', 5)]), (14, [('h', 2), ('h', 6)]), (17, [('h', 3), ('h', 7)])],
      6: [(1, [('w', 2)]), (2, [('w', 3)]), (4, [('w', 4)])],
      7: [(7, [('h', 0), ('h', 4)]), (11, [('h', 1), ('h', 5)]), (14, [('h', 2), ('h', 6)]), (17, [('h', 3), ('h', 7)])],
      8: [(9, [('h', 0), ('h', 4)]), (12, [('h', 1), ('h', 5)]), (15, [('h', 2), ('h', 6)]), (18, [('h', 3), ('h', 7)])],
      9: [(5, [('k', 0), ('k', 1), ('k', 2)])],
      2: [(1, [('w', 2), ('w', 3)]), (4, [('w', 4), ('h', 0)]), (7, [('h', 4), ('h', 1)]), (10, [('h', 5), ('h', 2)]), (13, [('h', 6), ('h', 3)]), (16, [('h', 7)])],
    }
    cfg.BURSTS = BSETS[cfg.BSET]
    cfg.PUB_AT = (cfg.PUB // 2, cfg.PUB % 2); cfg.POLL_AT = (cfg.POLL // 2, cfg.POLL % 2)
    main(sys.argv[1])
```
